```python
import torch

def _softmax(x, axis=-1):
    return torch.softmax(x, dim=axis)

def _gelu(x):
    return torch.nn.functional.gelu(x, approximate='tanh')

def _silu(x):
    return torch.nn.functional.silu(x)

def _sigmoid(x):
    return torch.sigmoid(x)

def _layernorm(x, axis=-1, eps=1e-05):
    m = x.mean(dim=axis, keepdim=True)
    v = x.var(dim=axis, keepdim=True, unbiased=False)
    return (x - m) / torch.sqrt(v + eps)

def _scatter_add(tgt, idx, src, axis=0):
    return tgt.clone().index_add_(axis, idx, src)

def _segment_sum(src, seg, n):
    out = torch.zeros((n,) + src.shape[1:], dtype=src.dtype)
    return out.index_add_(0, seg, src)

def _pad(x, pw):
    flat = tuple((v for pair in reversed(pw) for v in pair))
    return torch.nn.functional.pad(x, flat)
kernel_name = 'adaLN_cond__sliding_block_cached__geglu_ffn__decode'

def setup_inputs():

    _w = lambda a: (lambda t: t.to(torch.bfloat16) if t.is_floating_point() else t)(torch.as_tensor(a))

    def _A_setup():
        B, Sq, D = (4, 1, 512)
        Hq, Hkv, Sk, Dh = (32, 8, 16384, 128)
        assert Hq % Hkv == 0, (Hq, Hkv)
        return {'x': _w((lambda *s: torch.randn(*s, dtype=torch.bfloat16) * 0.05)(B, Sq, D)), 'k_cache': _w((lambda *s: torch.randn(*s, dtype=torch.bfloat16) * 1.6)(B, Hkv, Sk, Dh)), 'v_cache': _w((lambda *s: torch.randn(*s, dtype=torch.bfloat16) * 1.6)(B, Hkv, Sk, Dh)), 'wq': _w((lambda *s: torch.randn(*s, dtype=torch.bfloat16) * 1.6)(D, Hq * Dh) * D ** (-0.5)), 'wo': _w((lambda *s: torch.randn(*s, dtype=torch.bfloat16) * 1.6)(Hq * Dh, D) * (Hq * Dh) ** (-0.5))}
    _A_in = _A_setup()

    def _B_setup():
        B, S, D, F = (4, 1, 512, 1792)
        return {'x': _w((lambda *s: torch.randn(*s, dtype=torch.bfloat16) * 0.05)(B, S, D)), 'w_gate': _w((lambda *s: torch.randn(*s, dtype=torch.bfloat16) * 0.05)(D, F)), 'w_up': _w((lambda *s: torch.randn(*s, dtype=torch.bfloat16) * 0.05)(D, F)), 'w_down': _w((lambda *s: torch.randn(*s, dtype=torch.bfloat16) * 0.05)(F, D))}
    _B_in = _B_setup()
    return {'A_x': _A_in['x'], 'A_k_cache': _A_in['k_cache'], 'A_v_cache': _A_in['v_cache'], 'A_wq': _A_in['wq'], 'A_wo': _A_in['wo'], 'B_x': _B_in['x'], 'B_w_gate': _B_in['w_gate'], 'B_w_up': _B_in['w_up'], 'B_w_down': _B_in['w_down'], 'c': _w((lambda *s: torch.randn(*s, dtype=torch.bfloat16) * 0.2)(4, 512) * 8.0), 'w_mod': _w((lambda *s: torch.randn(*s, dtype=torch.bfloat16) * 0.2)(512, 6 * 512) * 512 ** (-0.5) * 8.0)}

def reference(A_x, A_k_cache, A_v_cache, A_wq, A_wo, B_x, B_w_gate, B_w_up, B_w_down, c, w_mod):

    def _A_ref(x, k_cache, v_cache, wq, wo):
        B, Sq, D = x.shape
        Hq, Dh = (32, 128)
        Hkv, Sk = (k_cache.shape[1], k_cache.shape[2])
        W = min(4096, max(256, Sk // 4))
        rep = Hq // Hkv
        q = (lambda x, *d: x.permute(*d))((x @ wq).reshape(B, Sq, Hq, Dh), 0, 2, 1, 3)
        k = (lambda x, n, axis: torch.repeat_interleave(x, n, dim=axis))(k_cache[:, :, Sk - W:, :], rep, axis=1)
        v = (lambda x, n, axis: torch.repeat_interleave(x, n, dim=axis))(v_cache[:, :, Sk - W:, :], rep, axis=1)
        scores = torch.einsum('bhqd,bhkd->bhqk', q, k) * Dh ** (-0.5)
        p = _softmax(scores, axis=-1)
        o = torch.einsum('bhqk,bhkd->bhqd', p, v)
        return (lambda x, *d: x.permute(*d))(o, 0, 2, 1, 3).reshape(B, Sq, Hq * Dh) @ wo

    def _B_ref(x, w_gate, w_up, w_down):
        return _gelu(x @ w_gate) * (x @ w_up) @ w_down
    x = A_x
    mod = (_silu(c) @ w_mod).reshape(c.shape[0], 6, 1, -1)
    sa, ca, ga, sb, cb, gb = (mod[:, 0].clone(), mod[:, 1].clone(), mod[:, 2].clone(), mod[:, 3].clone(), mod[:, 4].clone(), mod[:, 5].clone())
    h = _layernorm(x, axis=-1) * (1 + ca) + sa
    x = x + ga * _A_ref(h, A_k_cache, A_v_cache, A_wq, A_wo)
    h = _layernorm(x, axis=-1) * (1 + cb) + sb
    x = x + gb * _B_ref(h, B_w_gate, B_w_up, B_w_down)
    return x
```

```python
import re
KN = "adaLN_cond__sliding_block_cached__geglu_ffn__decode_kernel"
HEADER_COMMENT = "; generated\n"

TRANS = ("v_exp_f32","v_log_f32","v_rcp_f32","v_rsq_f32","v_sqrt_f32","v_sin_f32","v_cos_f32","v_rcp_iflag_f32")

def _regs(tok):
    tok = tok.strip()
    tok = re.sub(r"^-|^abs\(|^\||\)$|\|$", "", tok)
    m = re.fullmatch(r"([vsa])(\d+)", tok)
    if m: return {(m.group(1), int(m.group(2)))}
    m = re.fullmatch(r"([vsa])\[(\d+):(\d+)\]", tok)
    if m: return {(m.group(1), i) for i in range(int(m.group(2)), int(m.group(3))+1)}
    if tok in ("vcc","vcc_lo","vcc_hi"): return {("vcc",0)}
    if tok in ("exec","exec_lo","exec_hi"): return {("exec",0)}
    if tok == "m0": return {("m0",0)}
    return set()

class Ins:
    def __init__(self, text):
        self.text = text
        t = text.split(";")[0].strip()
        self.is_label = t.endswith(":")
        self.empty = (t == "") or t.startswith(".")
        self.mn = ""; self.ops = []; self.mods = ""
        self.wr = set(); self.rd = set()
        if self.is_label or self.empty: return
        p = t.split(None, 1)
        self.mn = p[0]
        rest = p[1] if len(p) > 1 else ""
        toks = [x.strip() for x in re.split(r",(?![^\[]*\])", rest)] if rest else []
        if toks:
            last = toks[-1].split()
            if last:
                toks[-1] = last[0]; self.mods = " ".join(last[1:])
        self.ops = toks
        mn = self.mn
        self.valu = mn.startswith("v_")
        self.mfma = mn.startswith("v_mfma")
        self.dpp = ("quad_perm" in t) or ("row_" in t) or ("wave_" in t)
        self.permlane = mn.startswith("v_permlane")
        self.trans = any(mn.startswith(x) for x in TRANS)
        self.vmem = mn.startswith(("buffer_","global_","flat_"))
        self.ds = mn.startswith("ds_")
        self.salu = mn.startswith("s_")
        self.dot = mn.startswith("v_dot")
        R = [_regs(x) for x in toks]
        if self.valu:
            if mn.startswith("v_cmp"):
                self.wr = R[0]; self.rd = set().union(*R[1:])
            elif self.permlane:
                self.wr = R[0] | R[1]; self.rd = R[0] | R[1]
            elif mn.startswith(("v_add_co","v_sub_co","v_subrev_co","v_addc_co","v_subb_co","v_div_scale","v_mad_u64")):
                self.wr = R[0] | R[1]; self.rd = set().union(*R[2:])
            elif mn == "v_nop":
                pass
            else:
                self.wr = R[0]; self.rd = set().union(*R[1:]) if len(R) > 1 else set()
                if mn.startswith(("v_fmac","v_dot2c","v_pk_fmac","v_writelane")) or self.dpp: self.rd |= R[0]
                if mn.startswith("v_cndmask") and len(toks) == 3: self.rd |= {("vcc",0)}
        elif self.vmem:
            if "load" in mn and "lds" not in self.mods.split():
                self.wr = R[0]; self.rd = set().union(*R[1:])
            else:
                self.rd = set().union(*R) if R else set()
            self.store_data = set()
            if "store" in mn:
                self.store_data = R[0] if mn.startswith("buffer_") else R[1]
        elif self.ds:
            if mn.startswith(("ds_read","ds_bpermute","ds_permute","ds_swizzle")) or "_rtn" in mn:
                self.wr = R[0]; self.rd = set().union(*R[1:])
            else:
                self.rd = set().union(*R) if R else set()
        elif self.salu:
            if mn.startswith(("s_cmp","s_cbranch","s_branch","s_waitcnt","s_barrier","s_nop","s_endpgm","s_sleep","s_setprio")):
                self.rd = set().union(*R) if R else set()
            else:
                self.wr = R[0] if R else set(); self.rd = set().union(*R[1:]) if len(R) > 1 else set()
                if "saveexec" in mn: self.wr = self.wr | {("exec",0)}
    def states(self):
        if self.mn == "s_nop": return int(self.ops[0], 0) + 1
        return 1
    def passes(self):
        m = self.mn
        if "32x32" in m: return 8
        if "16x16" in m: return 4
        return 2

def vg(rs): return {r for r in rs if r[0] in ("v","a")}
def sg(rs): return {r for r in rs if r[0] in ("s","vcc")}

def need(p, c):
    n = 0
    if p.valu and not p.mfma:
        w = vg(p.wr); ws = sg(p.wr)
        if c.mfma and (w & c.rd): n = max(n, 3 if p.dot else 2)
        if c.valu and c.dpp and (w & c.rd): n = max(n, 2)
        if c.permlane and (w & c.rd): n = max(n, 2)
        if c.mn.startswith(("v_readfirstlane","v_readlane")) and (w & c.rd): n = max(n, 1)
        if p.trans and c.valu and (w & c.rd): n = max(n, 1)
        if p.trans and (c.vmem or c.ds) and (w & c.rd): n = max(n, 1)
        if p.dot and not c.mfma and (c.valu or c.vmem or c.ds) and (w & (c.rd | c.wr)) and c.mn != p.mn: n = max(n, 3)
        if p.dot and c.mn == p.mn and (w & set().union(*[_regs(x) for x in c.ops[1:3]])): n = max(n, 3)
        if ws:
            if c.valu and (ws & c.rd): n = max(n, 4 if c.mn.startswith(("v_readlane","v_writelane")) else 2)
            if c.vmem and (ws & c.rd): n = max(n, 5)
            if c.salu and (ws & c.rd): n = max(n, 1)
        if ("exec",0) in p.wr and c.valu: n = max(n, 5)
    if p.mfma:
        ps = p.passes(); d = p.wr
        big = {2:5,4:8,8:12,16:20}[ps]
        if c.mfma:
            ab = _regs(c.ops[1]) | _regs(c.ops[2]); cc = _regs(c.ops[3])
            if d & ab: n = max(n, big)
            if d & cc:
                if cc == d and c.passes() == ps: n = max(n, 2 if ps == 2 else 0)
                else: n = max(n, {2:4,4:6,8:10,16:18}[ps])
            elif d & c.wr: n = max(n, big)
        elif (c.valu or c.vmem or c.ds) and (d & (c.rd | c.wr)): n = max(n, big)
        if c.valu and not c.mfma and (_regs(p.ops[3]) & c.wr): n = max(n, {2:1,4:3,8:7,16:15}[ps])
    if p.vmem and getattr(p, "store_data", None) and ("x4" in p.mn or "x3" in p.mn):
        if (p.store_data & c.wr) and (c.valu or c.vmem or c.ds): n = max(n, 2)
    if p.salu and ("m0",0) in p.wr and (c.vmem and "lds" in c.mods): n = max(n, 1)
    return n

def fix_hazards(lines):
    out = []
    for text in lines:
        c = Ins(text)
        if c.is_label or c.empty:
            out.append(c); continue
        dist = 0; pad = 0
        for p in reversed(out):
            if p.empty: continue
            if p.is_label:
                if c.mfma or (c.valu and (c.dpp or c.permlane)): pad = max(pad, 2 - dist)
                elif c.valu and (c.mn.startswith(("v_readfirstlane","v_readlane")) ): pad = max(pad, 1 - dist)
                elif c.valu and sg(c.rd): pad = max(pad, 2 - dist)
                continue
            n = need(p, c)
            if n > dist: pad = max(pad, n - dist)
            dist += p.states()
            if dist >= 20: break
        while pad > 0:
            k = min(pad, 16)
            out.append(Ins(f"    s_nop {k-1}"))
            pad -= k
        out.append(c)
    return [i.text for i in out]

class Asm:
    def __init__(self):
        self.lines = []
        self.nlabel = 0
    def __call__(self, s):
        for l in s.strip("\n").split("\n"):
            l = l.strip()
            if not l: continue
            self.lines.append(l if l.split(";")[0].strip().endswith(":") else "    " + l)
    def label(self, name): self.lines.append(name + ":")
    def newlabel(self, p="L"):
        self.nlabel += 1
        return f"{p}_{self.nlabel}"
    def c(self, s): self.lines.append("    ; " + s)
    def text(self, hazards=True):
        ls = fix_hazards(self.lines) if hazards else self.lines
        return "\n".join(ls) + "\n"

def kernel_file(kernels, launches, header=None):
    out = header or HEADER_COMMENT
    if len(launches) == 1 and launches[0][0] == KN:
        n, g, b, l = launches[0]
        out += f"; @launch grid=({g},1,1) block=({b},1,1) lds={l}\n"
    else:
        for n, g, b, l in launches:
            out += f"; @launch kernel={n} grid=({g},1,1) block=({b},1,1) lds={l}\n"
    out += '.amdgcn_target "amdgcn-amd-amdhsa--gfx950"\n.text\n'
    for name, body, nv, ns, ao in kernels:
        out += f".globl {name}\n.p2align 8\n.type {name},@function\n{name}:\n{body}"
    out += '.section .rodata,"a"\n'
    for name, body, nv, ns, ao in kernels:
        out += f""".p2align 6
.amdhsa_kernel {name}
  .amdhsa_next_free_vgpr {nv}
  .amdhsa_next_free_sgpr {ns}
  .amdhsa_accum_offset {ao}
  .amdhsa_group_segment_fixed_size 0
  .amdhsa_kernarg_size 112
  .amdhsa_user_sgpr_count 2
  .amdhsa_user_sgpr_kernarg_segment_ptr 1
  .amdhsa_system_sgpr_workgroup_id_x 1
.end_amdhsa_kernel
"""
    return out
```

```python
import sys, argparse
from asmlib import *

WS_EPOCH = 0x0
WS_MOD = 0x1000
WS_X1 = 0xE000
WS_QG = 0x10000
WS_OP = 0x20000
WS_ST = 0xA0000
WS_AP = 0xB0000
WS_DP = 0xF0000
WS_END = 0x160000
WS_STAMP = 0x200000
WS_SIZE = 0x400000
L_CNT = 0x0
L_ZERO = 0x40
L_QF = 0x100
L_MX = 0x500
L_LS = 0x580
L_ACT = 0x600
L_AV = 0x800
AVS = 1024 + 64
L_PART = 0x1A00
PS = 1024 + 16
L_OL = 0x4000
OLS = 2048 + 32
LDS_BYTES = 0x4000 + 8 * OLS

LOG2E = 0x3FB8AA3B
SCALE = 0x3DB504F3
TMO = 40000

S_X, S_K, S_V, S_WQ, S_WO, S_WG, S_WU = 4, 6, 8, 10, 12, 16, 18
S_WD, S_C, S_WM, S_OUT, S_DBG, S_WS = 20, 22, 24, 26, 28, 30
S_WAVE, S_HKV, S_IDX, S_B, S_CH = 32, 33, 34, 35, 36
S_TAG, S_EPOCH, S_TMO = 37, 38, 39
SRD_WS = 40
SRD_A = 44
SRD_B = 48
S_PLO, S_PHI = 52, 53
S_T0, S_T1, S_T2, S_T3 = 54, 55, 56, 57
S_M = 58
S_HI = 72
S_ST = 74


def q(r, n=4): return f"v[{r}:{r+n-1}]"
def sp(r, n=2): return f"s[{r}:{r+n-1}]"


class G:
    def __init__(self, o):
        self.o = o
        self.a = Asm()
        self.nst = 0

    def stamp(self, k):
        if self.o.stamps:
            self.a(f"s_memrealtime {sp(S_ST+2*k)}")

    def flush_stamps(self, n, slot, cond_wave):
        if not self.o.stamps: return
        a = self.a
        L = a.newlabel("Lst")
        a(f"""
        s_cmp_lg_u32 s{S_WAVE}, {cond_wave}
        s_cbranch_scc1 {L}
        s_waitcnt lgkmcnt(0)
        s_mov_b64 exec, 1
        s_lshl_b32 s{S_T0}, s2, 8
        s_add_u32 s{S_T0}, s{S_T0}, {WS_STAMP + slot*128}
        v_mov_b32 v1, s{S_T0}
        """)
        for k in range(n):
            a(f"""
            v_mov_b32 v2, s{S_ST+2*k}
            v_mov_b32 v3, s{S_ST+2*k+1}
            buffer_store_dwordx2 v[2:3], v1, {sp(SRD_WS,4)}, 0 offen offset:{8*k}
            s_waitcnt vmcnt(0)
            """)
        a.label(L)

    def srd(self, dst, ptr, size):
        self.a(f"""
        s_mov_b32 s{dst}, s{ptr}
        s_mov_b32 s{dst+1}, s{ptr+1}
        s_mov_b32 s{dst+2}, {size}
        s_mov_b32 s{dst+3}, 0x20000
        """)

    def transpose(self, src, dst, nrows=8):
        a = self.a
        ne = nrows // 2
        for e in range(ne):
            self.transpose_pair(src, dst, e, ne)

    def transpose_pair(self, src, dst, e, ne):
        a = self.a
        for d in range(4):
            lo, hi = src + 8*e + d, src + 8*e + 4 + d
            a(f"v_perm_b32 v{dst + (2*d)*ne + e}, v{hi}, v{lo}, s{S_PLO}")
            a(f"v_perm_b32 v{dst + (2*d+1)*ne + e}, v{hi}, v{lo}, s{S_PHI}")

    def transpose_inplace(self, b, t0, t1):
        a = self.a
        R = lambda row, d: b + 4*row + d
        for e in range(4):
            a(f"v_perm_b32 v{t0}, v{R(2*e+1,e)}, v{R(2*e,e)}, s{S_PLO}")
            a(f"v_perm_b32 v{R(2*e+1,e)}, v{R(2*e+1,e)}, v{R(2*e,e)}, s{S_PHI}")
            a(f"v_mov_b32 v{R(2*e,e)}, v{t0}")
            for d in range(e+1, 4):
                a(f"v_perm_b32 v{t0}, v{R(2*e+1,d)}, v{R(2*e,d)}, s{S_PLO}")
                a(f"v_perm_b32 v{t1}, v{R(2*e+1,d)}, v{R(2*e,d)}, s{S_PHI}")
                a(f"v_perm_b32 v{R(2*e,d)}, v{R(2*d+1,e)}, v{R(2*d,e)}, s{S_PLO}")
                a(f"v_perm_b32 v{R(2*e+1,d)}, v{R(2*d+1,e)}, v{R(2*d,e)}, s{S_PHI}")
                a(f"v_mov_b32 v{R(2*d,e)}, v{t0}")
                a(f"v_mov_b32 v{R(2*d+1,e)}, v{t1}")

    def rows_allreduce(self, op, r, t):
        self.a(f"""
        v_mov_b32 v{t}, v{r}
        v_permlane16_swap_b32 v{r}, v{t}
        {op} v{r}, v{r}, v{t}
        v_mov_b32 v{t}, v{r}
        v_permlane32_swap_b32 v{r}, v{t}
        {op} v{r}, v{r}, v{t}
        """)

    def wave_allreduce2(self, r0, r1, t0, t1):
        a = self.a
        for m in ("quad_perm:[1,0,3,2]", "quad_perm:[2,3,0,1]", "row_half_mirror", "row_mirror"):
            a(f"v_add_f32_dpp v{r0}, v{r0}, v{r0} {m} row_mask:0xf bank_mask:0xf")
            a(f"v_add_f32_dpp v{r1}, v{r1}, v{r1} {m} row_mask:0xf bank_mask:0xf")
        for sw in ("16", "32"):
            a(f"""
            v_mov_b32 v{t0}, v{r0}
            v_mov_b32 v{t1}, v{r1}
            v_permlane{sw}_swap_b32 v{r0}, v{t0}
            v_permlane{sw}_swap_b32 v{r1}, v{t1}
            v_add_f32 v{r0}, v{r0}, v{t0}
            v_add_f32 v{r1}, v{r1}, v{t1}
            """)

    def scatter4(self, r):
        self.a(f"""
        v_permlane32_swap_b32 v{r}, v{r+2}
        v_permlane32_swap_b32 v{r+1}, v{r+3}
        v_add_f32 v{r}, v{r}, v{r+2}
        v_add_f32 v{r+1}, v{r+1}, v{r+3}
        v_permlane16_swap_b32 v{r}, v{r+1}
        v_add_f32 v{r}, v{r}, v{r+1}
        """)

    def unpack(self, pk, lo, hi):
        self.a(f"""
        v_and_b32 v{hi}, s{S_HI}, v{pk}
        v_lshlrev_b32 v{lo}, 16, v{pk}
        """) if lo == pk else self.a(f"""
        v_lshlrev_b32 v{lo}, 16, v{pk}
        v_and_b32 v{hi}, s{S_HI}, v{pk}
        """)

    def round2(self, r0, r1, t):
        self.a(f"v_cvt_pk_bf16_f32 v{t}, v{r0}, v{r1}")
        self.unpack(t, r0, r1)

    def round1(self, r):
        self.a(f"""
        v_cvt_pk_bf16_f32 v{r}, v{r}, v{r}
        v_and_b32 v{r}, s{S_HI}, v{r}
        """)

    def lds_sync(self, cnt, target, vt0, vt1):
        a = self.a
        L = a.newlabel("Lsync"); E = a.newlabel("Lsyncx")
        a(f"""
        v_mov_b32 v{vt0}, {cnt}
        v_mov_b32 v{vt1}, 1
        s_waitcnt lgkmcnt(0)
        s_mov_b64 exec, 1
        ds_add_u32 v{vt0}, v{vt1}
        s_mov_b64 exec, -1
        s_mov_b32 s{S_TMO}, {TMO*8}
        {L}:
        ds_read_b32 v{vt1}, v{vt0}
        s_sub_u32 s{S_TMO}, s{S_TMO}, 1
        s_cbranch_scc1 {E}
        s_waitcnt lgkmcnt(0)
        v_readfirstlane_b32 s{S_T0}, v{vt1}
        s_cmp_lt_u32 s{S_T0}, {target}
        s_cbranch_scc1 {L}
        {E}:
        s_waitcnt lgkmcnt(0)
        """)

    def poll_tagged(self, loads, tagregs, pre=None):
        a = self.a
        L = a.newlabel("Lpt"); E = a.newlabel("Lptx"); C = a.newlabel("Lptc")
        a(f"s_mov_b32 s{S_TMO}, {TMO}")
        if pre:
            for l in loads: a(l)
            pre()
            a(f"s_branch {C}")
        a.label(L)
        for l in loads: a(l)
        a.label(C)
        a(f"""
        s_sub_u32 s{S_TMO}, s{S_TMO}, 1
        s_cbranch_scc1 {E}
        s_waitcnt vmcnt(0)
        """)
        for i, r in enumerate(tagregs):
            if i == 0: a(f"v_cmp_ne_u32 vcc, s{S_TAG}, v{r}")
            else:
                a(f"v_cmp_ne_u32 {sp(S_T0)}, s{S_TAG}, v{r}")
                a(f"s_or_b64 vcc, vcc, {sp(S_T0)}")
        a(f"""
        s_cmp_lg_u64 vcc, 0
        s_cbranch_scc1 {L}
        {E}:
        s_waitcnt vmcnt(0)
        """)

    def poll_sent(self, groups, tmp, pre=None):
        a = self.a
        L = a.newlabel("Lps"); E = a.newlabel("Lpsx"); C = a.newlabel("Lpsc")
        a(f"s_mov_b32 s{S_TMO}, {TMO}")
        for i, (loads, regs, init) in enumerate(groups):
            if isinstance(init, tuple):
                a(f"s_mov_b32 s{S_M+2*i}, {init[0]}\ns_mov_b32 s{S_M+2*i+1}, {init[1]}")
            else:
                a(f"s_mov_b64 {sp(S_M+2*i)}, {init}")
        def issue():
            for i, (loads, regs, init) in enumerate(groups):
                a(f"s_mov_b64 exec, {sp(S_M+2*i)}")
                for l in loads: a(l)
            a("s_mov_b64 exec, -1")
        if pre:
            issue(); pre(); a(f"s_branch {C}")
        a.label(L)
        issue()
        a.label(C)
        a(f"""
        s_sub_u32 s{S_TMO}, s{S_TMO}, 1
        s_cbranch_scc1 {E}
        s_waitcnt vmcnt(0)
        """)
        for i, (loads, regs, init) in enumerate(groups):
            rs = list(regs)
            a(f"v_max3_u32 v{tmp}, v{rs[0]}, v{rs[1]}, v{rs[2]}")
            rs = rs[3:]
            while rs:
                if len(rs) >= 2:
                    a(f"v_max3_u32 v{tmp}, v{tmp}, v{rs[0]}, v{rs[1]}"); rs = rs[2:]
                else:
                    a(f"v_max_u32 v{tmp}, v{tmp}, v{rs[0]}"); rs = rs[1:]
            a(f"v_cmp_eq_u32 {sp(S_M+2*i)}, -1, v{tmp}")
        a(f"s_or_b64 vcc, {sp(S_M)}, {sp(S_M+2)}")
        for i in range(2, len(groups)):
            a(f"s_or_b64 vcc, vcc, {sp(S_M+2*i)}")
        a(f"""
        s_cbranch_scc1 {L}
        {E}:
        s_waitcnt vmcnt(0)
        """)

    def prologue(self):
        a = self.a
        self.stamp(0)
        a(f"""
        s_cmp_ge_u32 s2, 256
        s_cbranch_scc1 L_end
        s_load_dwordx16 s[4:19], s[0:1], 0
        s_load_dwordx8 s[20:27], s[0:1], 64
        s_load_dwordx4 s[28:31], s[0:1], 96
        v_lshrrev_b32 v1, 6, v0
        v_and_b32 v0, 63, v0
        s_and_b32 s{S_HKV}, s2, 7
        v_readfirstlane_b32 s{S_WAVE}, v1
        s_lshr_b32 s{S_IDX}, s2, 3
        s_and_b32 s{S_B}, s{S_IDX}, 3
        s_lshr_b32 s{S_CH}, s{S_IDX}, 2
        s_mov_b32 s{S_PLO}, 0x05040100
        s_mov_b32 s{S_PHI}, 0x07060302
        s_mov_b32 s{S_HI}, 0xffff0000
        s_cmp_lt_u32 s{S_WAVE}, 4
        s_cbranch_scc1 L_aux
        """)

    def stream(self):
        a = self.a; o = self.o
        nt = o.kvpol
        kreg = lambda t, u: 32 + 16*t + 4*u
        vreg = lambda t, u: 96 + 16*t + 4*u
        dreg = lambda t, u: (8 + 4*u) if t == 0 else (32 + 16*(t-1) + 4*u)
        S_W = 3
        a(f"""
        s_sub_u32 s{S_W}, s{S_WAVE}, 4
        s_lshl_b32 s{S_T0}, s{S_B}, 3
        s_add_u32 s{S_T0}, s{S_T0}, s{S_HKV}
        s_lshl_b32 s{S_T0}, s{S_T0}, 22
        s_lshl_b32 s{S_T1}, s{S_CH}, 17
        s_add_u32 s{S_T0}, s{S_T0}, s{S_T1}
        s_lshl_b32 s{S_T1}, s{S_W}, 12
        s_add_u32 s{S_T0}, s{S_T0}, s{S_T1}
        s_add_u32 s{S_T0}, s{S_T0}, 3145728
        v_bfe_u32 v1, v0, 2, 2
        v_lshrrev_b32 v2, 4, v0
        v_and_b32 v3, 3, v0
        v_lshlrev_b32 v4, 8, v1
        v_lshl_add_u32 v4, v2, 6, v4
        v_lshl_add_u32 v4, v3, 4, v4
        v_add_u32 v4, s{S_T0}, v4
        v_lshlrev_b32 v5, 4, v0
        v_add_u32 v5, s{S_T0}, v5
        s_mov_b32 s{S_T1}, 32768
        s_mov_b32 s{S_T2}, 65536
        s_mov_b32 s{S_T3}, 98304
        s_waitcnt lgkmcnt(0)
        """)
        self.srd(SRD_A, S_K, 0x8000000)
        self.srd(SRD_B, S_V, 0x8000000)
        so = ["0", f"s{S_T1}", f"s{S_T2}", f"s{S_T3}"]
        n = 0
        for (rf, va, srd) in ((kreg, 4, SRD_A), (vreg, 5, SRD_B)):
            for t in range(4):
                for u in range(4):
                    if n >= o.depth and n < 32 - o.tailfree:
                        a(f"s_waitcnt vmcnt({o.depth-1})")
                    a(f"buffer_load_dwordx4 {q(rf(t,u))}, v{va}, {sp(srd,4)}, {so[t]} offen offset:{u*1024} {nt}")
                    n += 1
                    if n == 4:
                        a("s_barrier")
                        self.srd(SRD_WS, S_WS, WS_SIZE)
                        a(f"""
                        v_cmp_eq_u32 {sp(S_M)}, 1, v3
                        v_cmp_eq_u32 {sp(S_M+2)}, 2, v3
                        v_cmp_eq_u32 {sp(S_M+4)}, 3, v3
                        v_cmp_eq_u32 {sp(S_M+6)}, 0, v3
                        v_lshlrev_b32 v6, 4, v0
                        v_lshlrev_b32 v7, 5, v1                 ; h*32
                        s_lshl_b32 s{S_T0}, s{S_W}, 2
                        v_add_u32 v164, s{S_T0}, v7             ; h*32+w*4
                        s_mul_i32 s{S_T0}, s{S_W}, {OLS}
                        v_lshlrev_b32 v165, 2, v0
                        v_add_u32 v165, s{S_T0}, v165
                        v_mul_u32_u24 v166, {2*OLS}, v3
                        v_lshrrev_b32 v2, 2, v0                 ; t16
                        v_lshl_add_u32 v166, v2, 4, v166
                        s_lshl_b32 s{S_T0}, s{S_W}, 8
                        v_add_u32 v166, s{S_T0}, v166
                        s_lshl_b32 s{S_T0}, s{S_HKV}, 16
                        s_lshl_b32 s{S_TMO}, s{S_B}, 12
                        s_add_u32 s{S_T0}, s{S_T0}, s{S_TMO}
                        s_lshl_b32 s{S_TMO}, s{S_CH}, 9
                        s_add_u32 s{S_T0}, s{S_T0}, s{S_TMO}
                        s_lshl_b32 s{S_TMO}, s{S_W}, 6
                        s_add_u32 s{S_T0}, s{S_T0}, s{S_TMO}
                        s_add_u32 s{S_T0}, s{S_T0}, {WS_OP}
                        v_lshrrev_b32 v2, 4, v0
                        v_lshlrev_b32 v167, 14, v2
                        v_lshl_add_u32 v167, v1, 4, v167
                        v_add_u32 v167, s{S_T0}, v167
                        """)
        self.stamp(1)
        a("s_barrier")
        a(f"ds_read_b128 v[0:3], v6 offset:{L_QF}")
        self.stamp(2)
        a(f"s_waitcnt vmcnt(16) lgkmcnt(0)")
        for t in range(4):
            for u in range(4):
                a(f"v_mfma_f32_16x16x32_bf16 {q(dreg(t,u))}, {q(kreg(t,u))}, v[0:3], 0")
        qp = {1: "[1,0,3,2]", 2: "[2,3,0,1]", 3: "[3,2,1,0]"}
        for t in range(4):
            for rho in range(4):
                w = 24 + t if rho == 0 else 27 + rho
                c = [dreg(t, x ^ rho) + x for x in range(4)]
                a(f"""
                v_cndmask_b32 v{w}, v{c[0]}, v{c[1]}, {sp(S_M)}
                v_cndmask_b32 v{w}, v{w}, v{c[2]}, {sp(S_M+2)}
                v_cndmask_b32 v{w}, v{w}, v{c[3]}, {sp(S_M+4)}
                """)
            for rho in range(1, 4):
                a(f"v_add_f32_dpp v{24+t}, v{27+rho}, v{24+t} quad_perm:{qp[rho]} row_mask:0xf bank_mask:0xf")
        self.round2(24, 25, 28); self.round2(26, 27, 29)
        a(f"s_mov_b32 s{S_T0}, {SCALE}")
        for t in range(4): a(f"v_mul_f32 v{24+t}, s{S_T0}, v{24+t}")
        self.round2(24, 25, 28); self.round2(26, 27, 29)
        a(f"""
        v_max3_f32 v28, v24, v25, v26
        v_max_f32 v28, v28, v27
        v_max_f32_dpp v28, v28, v28 quad_perm:[1,0,3,2] row_mask:0xf bank_mask:0xf
        v_max_f32_dpp v28, v28, v28 quad_perm:[2,3,0,1] row_mask:0xf bank_mask:0xf
        """)
        self.rows_allreduce("v_max_f32", 28, 29)
        a(f"""
        ds_write_b32 v164, v28 offset:{L_MX}
        """)
        a(f"s_waitcnt vmcnt(8)")
        self.transpose(96, 32)
        a(f"""
        s_waitcnt lgkmcnt(0)
        s_barrier
        ds_read_b128 v[8:11], v7 offset:{L_MX}
        ds_read_b128 v[12:15], v7 offset:{L_MX+16}
        """)
        self.stamp(3)
        a(f"s_waitcnt vmcnt(4)")
        self.transpose_pair(128, 64, 0, 4)
        self.transpose_pair(128, 64, 1, 4)
        a(f"""
        s_mov_b32 s{S_T0}, {LOG2E}
        s_waitcnt lgkmcnt(0)
        v_max3_f32 v8, v8, v9, v10
        v_max3_f32 v12, v11, v12, v13
        v_max3_f32 v8, v8, v14, v15
        v_max_f32 v8, v8, v12
        v_mul_f32 v8, s{S_T0}, v8
        """)
        for t in range(4): a(f"v_fma_f32 v{24+t}, v{24+t}, s{S_T0}, -v8")
        for t in range(4): a(f"v_exp_f32 v{24+t}, v{24+t}")
        for t in range(4):
            a(f"v_mov_b32_dpp v{28+t}, v{24+t} quad_perm:[1,1,3,3] row_mask:0xf bank_mask:0xf")
        for t in range(4):
            a(f"v_cvt_pk_bf16_f32 v{8+2*t}, v{24+t}, v{28+t}")
        for t in range(4):
            a(f"v_mov_b32_dpp v{9+2*t}, v{8+2*t} quad_perm:[2,2,2,2] row_mask:0xf bank_mask:0xf")
        for c in range(8):
            a(f"v_mfma_f32_16x16x32_bf16 {q(96+4*c)}, v[8:11], {q(32+4*c)}, 0")
        a(f"""
        v_add_f32 v24, v24, v25
        v_add_f32 v26, v26, v27
        v_add_f32 v24, v24, v26
        v_add_f32_dpp v24, v24, v24 quad_perm:[1,0,3,2] row_mask:0xf bank_mask:0xf
        v_add_f32_dpp v24, v24, v24 quad_perm:[2,3,0,1] row_mask:0xf bank_mask:0xf
        """)
        self.rows_allreduce("v_add_f32", 24, 25)
        a(f"ds_write_b32 v164, v24 offset:{L_LS}")
        a(f"s_waitcnt vmcnt(2)")
        self.transpose_pair(128, 64, 2, 4)
        a(f"s_waitcnt vmcnt(0)")
        self.stamp(4)
        self.transpose_pair(128, 64, 3, 4)
        for c in range(8):
            a(f"v_mfma_f32_16x16x32_bf16 {q(96+4*c)}, v[12:15], {q(64+4*c)}, {q(96+4*c)}")
        for c in range(8):
            a(f"ds_write_b32 v165, v{96+4*c} offset:{L_OL + c*256}")
        a(f"""
        s_waitcnt lgkmcnt(0)
        s_barrier
        ds_read_b128 v[8:11], v166 offset:{L_OL}
        ds_read_b128 v[12:15], v166 offset:{L_OL+OLS}
        s_waitcnt lgkmcnt(0)
        """)
        self.quad_reduce(8, 12)
        a(f"""
        s_mov_b64 exec, {sp(S_M+6)}
        buffer_store_dwordx4 v[8:11], v167, {sp(SRD_WS,4)}, 0 offen sc1
        """)
        self.stamp(5)
        self.flush_stamps(6, 1, 4)
        a("s_endpgm")

    def quad_reduce(self, r, r2):
        a = self.a
        for i in range(4): a(f"v_add_f32 v{r+i}, v{r+i}, v{r2+i}")
        for m in ("[1,0,3,2]", "[2,3,0,1]"):
            for i in range(4):
                a(f"v_add_f32_dpp v{r+i}, v{r+i}, v{r+i} quad_perm:{m} row_mask:0xf bank_mask:0xf")
        for i in range(4): a(f"v_min_u32 v{r+i}, -2, v{r+i}")

    def tile_loads(self, nkb, srd, rs, s_base, pol):
        a = self.a
        sh = 3 if nkb == 2 else 2
        a(f"""
        v_lshrrev_b32 v1, {sh}, v0
        v_and_b32 v2, {(1<<sh)-1}, v0           ; n''
        v_mul_u32_u24 v1, {8*rs}, v1
        v_lshl_add_u32 v1, v2, 4, v1
        v_add_u32 v1, s{s_base}, v1
        """)
        for s in range(2):
            for j in range(8):
                off = (s*32*nkb + j) * rs
                if off == 0: so = "0"
                else:
                    a(f"s_mov_b32 s{S_T0}, {off}"); so = f"s{S_T0}"
                a(f"buffer_load_dwordx4 {q(32+32*s+4*j)}, v1, {sp(srd,4)}, {so} offen {pol}")

    def wo_loads(self):
        a = self.a
        self.srd(SRD_B, S_WO, 4096*1024)
        a(f"""
        s_lshl_b32 s{S_T0}, s{S_HKV}, 2
        s_add_u32 s{S_T0}, s{S_T0}, s{S_B}          ; head
        s_lshl_b32 s{S_T0}, s{S_T0}, 17
        s_lshl_b32 s{S_T1}, s{S_WAVE}, 11
        s_add_u32 s{S_T0}, s{S_T0}, s{S_T1}
        s_lshl_b32 s{S_T1}, s{S_CH}, 7
        s_add_u32 s{S_T0}, s{S_T0}, s{S_T1}
        v_lshrrev_b32 v1, 4, v0
        v_bfe_u32 v2, v0, 3, 1
        v_and_b32 v3, 7, v0
        v_lshlrev_b32 v1, 15, v1
        v_lshl_add_u32 v1, v2, 10, v1
        v_lshl_add_u32 v1, v3, 4, v1
        v_add_u32 v1, s{S_T0}, v1
        """)
        for e in range(4):
            if e == 0: so = "0"
            else:
                a(f"s_mov_b32 s{S_T0}, {e*8192}"); so = f"s{S_T0}"
            a(f"buffer_load_dwordx4 {q(128+4*e)}, v1, {sp(SRD_B,4)}, {so} offen {self.o.wpol}")

    def av_write(self, pk):
        self.a(f"""
        s_mul_i32 s{S_T0}, s{S_WAVE}, {AVS}
        v_lshlrev_b32 v1, 4, v0
        v_add_u32 v1, s{S_T0}, v1
        ds_write_b128 v1, {q(pk)} offset:{L_AV}
        """)

    def gemv_addrs(self, nkb, va, vd, vr):
        a = self.a
        if nkb == 2:
            a(f"""
            v_and_b32 v1, 3, v0                    ; b
            v_bfe_u32 v2, v0, 2, 1                 ; kb
            v_lshrrev_b32 v3, 4, v0                ; g
            v_mul_u32_u24 v{va}, {AVS}, v1
            v_lshl_add_u32 v{va}, v2, 4, v{va}
            v_lshl_add_u32 v{va}, v3, 5, v{va}
            s_lshl_b32 s{S_T0}, s{S_WAVE}, 8
            v_add_u32 v{va}, s{S_T0}, v{va}
            v_bfe_u32 v2, v0, 3, 1                 ; kb'
            v_cmp_eq_u32 {sp(S_M+12)}, v2, v3
            v_mul_u32_u24 v{vd}, {PS}, v2
            v_and_b32 v1, 7, v0
            v_lshl_add_u32 v{vd}, v1, 4, v{vd}
            s_mul_i32 s{S_T0}, s{S_WAVE}, {2*PS}
            v_add_u32 v{vd}, s{S_T0}, v{vd}
            v_mul_u32_u24 v{vr}, {2*PS}, v3
            v_lshl_add_u32 v{vr}, v1, 7, v{vr}
            v_lshl_add_u32 v{vr}, v2, 4, v{vr}
            s_lshl_b32 s{S_T0}, s{S_WAVE}, 5
            v_add_u32 v{vr}, s{S_T0}, v{vr}
            """)
        else:
            a(f"""
            v_and_b32 v1, 3, v0                    ; b / n''
            v_bfe_u32 v2, v0, 2, 2
            v_lshrrev_b32 v3, 4, v0                ; g
            v_mul_u32_u24 v{va}, {AVS}, v1
            v_lshl_add_u32 v{va}, v2, 4, v{va}
            v_lshl_add_u32 v{va}, v3, 6, v{va}
            s_lshr_b32 s{S_T1}, s{S_WAVE}, 1
            s_lshl_b32 s{S_T0}, s{S_T1}, 9
            v_add_u32 v{va}, s{S_T0}, v{va}
            v_cmp_eq_u32 {sp(S_M+12)}, v2, v3
            v_mul_u32_u24 v{vd}, {PS}, v2
            v_lshl_add_u32 v{vd}, v1, 4, v{vd}
            s_mul_i32 s{S_T0}, s{S_T1}, {4*PS}
            s_and_b32 s{S_T1}, s{S_WAVE}, 1
            s_lshl_b32 s{S_T1}, s{S_T1}, 9
            s_add_u32 s{S_T0}, s{S_T0}, s{S_T1}
            v_add_u32 v{vd}, s{S_T0}, v{vd}
            v_mul_u32_u24 v{vr}, {2*PS}, v3
            v_and_b32 v1, 15, v0
            v_lshl_add_u32 v{vr}, v1, 6, v{vr}
            s_lshl_b32 s{S_T0}, s{S_WAVE}, 4
            v_add_u32 v{vr}, s{S_T0}, v{vr}
            """)

    def gemv_mfma(self, nkb, va, vd, A, B0, B1, D):
        a = self.a
        a(f"""
        ds_read_b128 {q(A)}, v{va} offset:{L_AV}
        ds_read_b128 {q(A+4)}, v{va} offset:{L_AV + 64*nkb}
        s_waitcnt lgkmcnt(1)
        """)
        for c in range(8):
            a(f"v_mfma_f32_16x16x32_bf16 {q(D+4*c)}, {q(A)}, {q(B0+4*c)}, 0")
        a("s_waitcnt lgkmcnt(0)")
        for c in range(8):
            a(f"v_mfma_f32_16x16x32_bf16 {q(D+4*c)}, {q(A+4)}, {q(B1+4*c)}, {q(D+4*c)}")
        a(f"s_mov_b64 exec, {sp(S_M+12)}")
        cs = 128 if nkb == 2 else 64
        for c in range(8):
            a(f"ds_write_b128 v{vd}, {q(D+4*c)} offset:{L_PART + c*cs}")
        a("s_mov_b64 exec, -1")

    def gemv_reduce(self, vr, R):
        a = self.a
        a(f"""
        ds_read_b128 {q(R)}, v{vr} offset:{L_PART}
        ds_read_b128 {q(R+4)}, v{vr} offset:{L_PART+PS}
        s_waitcnt lgkmcnt(0)
        """)
        for i in range(4): a(f"v_add_f32 v{R+i}, v{R+i}, v{R+4+i}")
        self.scatter4(R)

    def publish4(self, R, vaddr):
        self.a(f"""
        v_mov_b32_dpp v{R+1}, v{R} quad_perm:[1,1,3,3] row_mask:0xf bank_mask:0xf
        v_cvt_pk_bf16_f32 v{R}, v{R}, v{R+1}
        v_mov_b32 v{R+1}, s{S_TAG}
        v_mov_b32 v{R+3}, s{S_TAG}
        v_mov_b32_dpp v{R+2}, v{R} quad_perm:[2,2,2,2] row_mask:0xf bank_mask:0xf
        s_mov_b32 s{S_T0}, 0x11111111
        s_mov_b32 s{S_T1}, 0x11111111
        s_waitcnt vmcnt(0)
        s_mov_b64 exec, {sp(S_T0)}
        buffer_store_dwordx4 {q(R)}, v{vaddr}, {sp(SRD_WS,4)}, 0 offen sc1
        s_mov_b64 exec, -1
        """)

    def layernorm(self, X, T):
        a = self.a
        a(f"v_readfirstlane_b32 s{S_T0}, v{X}")
        for i in range(8): a(f"v_subrev_f32 v{T+i}, s{S_T0}, v{X+i}")
        a(f"""
        v_add_f32 v{T+8}, v{T}, v{T+1}
        v_mul_f32 v{T+9}, v{T}, v{T}
        v_fmac_f32 v{T+9}, v{T+1}, v{T+1}
        """)
        for i in range(2, 8):
            a(f"v_add_f32 v{T+8}, v{T+8}, v{T+i}")
            a(f"v_fmac_f32 v{T+9}, v{T+i}, v{T+i}")
        self.wave_allreduce2(T+8, T+9, T+10, T+11)
        a(f"""
        s_mov_b32 s{S_T1}, 0x3b000000
        v_mul_f32 v{T+8}, s{S_T1}, v{T+8}           ; E[d]
        v_mul_f32 v{T+9}, s{S_T1}, v{T+9}           ; E[d^2]
        v_fma_f32 v{T+9}, -v{T+8}, v{T+8}, v{T+9}   ; var
        v_max_f32 v{T+9}, 0, v{T+9}
        v_add_f32 v{T+8}, s{S_T0}, v{T+8}           ; mean
        """)
        self.round2(T+8, T+9, T+10)
        a(f"v_add_f32 v{T+9}, 0x3727c5ac, v{T+9}")
        self.round1(T+9)
        a(f"v_sqrt_f32 v{T+9}, v{T+9}")
        self.round1(T+9)
        a(f"v_rcp_f32 v{T+9}, v{T+9}")
        for i in range(8): a(f"v_sub_f32 v{X+i}, v{X+i}, v{T+8}")
        for i in range(0, 8, 2): self.round2(X+i, X+i+1, T+i//2)
        for i in range(8): a(f"v_mul_f32 v{X+i}, v{X+i}, v{T+9}")
        for i in range(0, 8, 2): self.round2(X+i, X+i+1, T+i//2)

    def modulate(self, X, C1, SH, T, out):
        a = self.a
        for i in range(4):
            self.unpack(C1[i], T, T+1)
            a(f"v_mul_f32 v{X+2*i}, v{X+2*i}, v{T}")
            a(f"v_mul_f32 v{X+2*i+1}, v{X+2*i+1}, v{T+1}")
        for i in range(4): self.round2(X+2*i, X+2*i+1, T+2)
        for i in range(4):
            self.unpack(SH[i], T, T+1)
            a(f"v_add_f32 v{X+2*i}, v{X+2*i}, v{T}")
            a(f"v_add_f32 v{X+2*i+1}, v{X+2*i+1}, v{T+1}")
        for i in range(4): a(f"v_cvt_pk_bf16_f32 v{out+i}, v{X+2*i}, v{X+2*i+1}")

    def oneplus(self, src, dst, T):
        a = self.a
        for s, d in zip(src, dst):
            self.unpack(s, T, T+1)
            a(f"""
            v_add_f32 v{T}, 1.0, v{T}
            v_add_f32 v{T+1}, 1.0, v{T+1}
            v_cvt_pk_bf16_f32 v{d}, v{T}, v{T+1}
            """)

    def mod_poll(self, shift_col, scale_col, R, pre=None):
        a = self.a
        a(f"""
        s_mul_i32 s{S_T0}, s{S_WAVE}, 12288
        s_add_u32 s{S_T0}, s{S_T0}, {WS_MOD + shift_col*4}
        v_lshlrev_b32 v4, 5, v0
        v_add_u32 v4, s{S_T0}, v4
        """)
        d = (scale_col - shift_col) * 4
        loads = [f"buffer_load_dwordx4 {q(R)}, v4, {sp(SRD_WS,4)}, 0 offen sc1",
                 f"buffer_load_dwordx4 {q(R+4)}, v4, {sp(SRD_WS,4)}, 0 offen offset:16 sc1",
                 f"buffer_load_dwordx4 {q(R+8)}, v4, {sp(SRD_WS,4)}, 0 offen offset:{d} sc1",
                 f"buffer_load_dwordx4 {q(R+12)}, v4, {sp(SRD_WS,4)}, 0 offen offset:{d+16} sc1"]
        self.poll_tagged(loads, [R+1+2*i for i in range(8)], pre)
        return [R+2*i for i in range(4)], [R+8+2*i for i in range(4)]

    def aux(self):
        a = self.a; o = self.o
        a.label("L_aux")
        a(f"""
        v_mov_b32 v1, 0
        v_lshlrev_b32 v2, 2, v0
        s_cmp_lg_u32 s{S_WAVE}, 0
        s_cbranch_scc1 L_noinit
        ds_write_b32 v2, v1
        L_noinit:
        s_waitcnt lgkmcnt(0)
        s_load_dword s{S_EPOCH}, {sp(S_WS)}, {WS_EPOCH} glc
        """)
        self.srd(SRD_WS, S_WS, WS_SIZE)
        a(f"""
        s_cmp_lt_u32 s{S_IDX}, 6
        s_cbranch_scc1 L_M
        s_cmp_lt_u32 s{S_IDX}, 14
        s_cbranch_scc1 L_Q
        s_cmp_lt_u32 s{S_IDX}, 21
        s_cbranch_scc1 L_F
        s_cmp_lt_u32 s{S_IDX}, 25
        s_cbranch_scc1 L_R
        """)
        self.wo_loads()
        a("s_barrier")
        self.gettag()
        a("s_branch L_front_done")

        a.label("L_M")
        self.srd(SRD_A, S_C, 4096)
        a(f"""
        s_lshl_b32 s{S_T0}, s{S_WAVE}, 10
        v_lshlrev_b32 v1, 4, v0
        buffer_load_dwordx4 v[8:11], v1, {sp(SRD_A,4)}, s{S_T0} offen
        """)
        self.srd(SRD_A, S_WM, 512*6144)
        a(f"""
        s_lshl_b32 s3, s{S_IDX}, 3
        s_add_u32 s3, s3, s{S_HKV}
        s_mul_i32 s{S_T1}, s{S_WAVE}, {128*6144}
        s_lshl_b32 s{S_T2}, s3, 7
        s_add_u32 s{S_T1}, s{S_T1}, s{S_T2}
        """)
        self.tile_loads(2, SRD_A, 6144, S_T1, o.wpol)
        self.wo_loads()
        a("s_barrier")
        a(f"""
        s_cmp_ge_u32 s{S_IDX}, 2
        s_cbranch_scc1 L_M_noclr
        s_lshl_b32 s{S_T0}, s3, 2
        s_add_u32 s{S_T0}, s{S_T0}, s{S_WAVE}
        s_mul_i32 s{S_T0}, s{S_T0}, 11264
        s_add_u32 s{S_T0}, s{S_T0}, {WS_AP}
        v_lshlrev_b32 v1, 4, v0
        v_add_u32 v1, s{S_T0}, v1
        v_mov_b32 v4, -1
        v_mov_b32 v5, -1
        v_mov_b32 v6, -1
        v_mov_b32 v7, -1
        """)
        for i in range(11):
            if i % 4 == 0: a(f"s_mov_b32 s{S_T0}, {i*1024}")
            a(f"buffer_store_dwordx4 v[4:7], v1, {sp(SRD_WS,4)}, s{S_T0} offen offset:{(i%4)*1024} sc1")
        a(f"""
        s_waitcnt vmcnt(31)
        s_branch L_M_c
        L_M_noclr:
        s_waitcnt vmcnt(20)
        L_M_c:
        """)
        for i in range(4): self.unpack(8+i, 16+2*i, 17+2*i)
        a(f"s_mov_b32 s{S_T0}, {LOG2E ^ 0x80000000}")
        for i in range(8): a(f"v_mul_f32 v{24+i}, s{S_T0}, v{16+i}")
        for i in range(8): a(f"v_exp_f32 v{24+i}, v{24+i}")
        for i in range(8): a(f"v_add_f32 v{24+i}, 1.0, v{24+i}")
        for i in range(8): a(f"v_rcp_f32 v{24+i}, v{24+i}")
        for i in range(8): a(f"v_mul_f32 v{16+i}, v{16+i}, v{24+i}")
        for i in range(4): a(f"v_cvt_pk_bf16_f32 v{8+i}, v{16+2*i}, v{17+2*i}")
        self.av_write(8)
        self.gettag()
        a(f"""
        s_lshl_b32 s{S_T2}, s3, 8
        s_add_u32 s{S_T2}, s{S_T2}, {WS_MOD}
        s_mov_b32 s{S_T3}, 12288
        s_branch L_MQ
        """)

        a.label("L_Q")
        self.srd(SRD_A, S_X, 4096)
        a(f"""
        s_lshl_b32 s{S_T0}, s{S_WAVE}, 10
        v_lshlrev_b32 v1, 4, v0
        buffer_load_dwordx4 v[8:11], v1, {sp(SRD_A,4)}, s{S_T0} offen
        """)
        self.srd(SRD_A, S_WQ, 512*8192)
        a(f"""
        s_lshl_b32 s3, s{S_HKV}, 3
        s_add_u32 s3, s3, s{S_IDX}
        s_sub_u32 s3, s3, 6
        s_lshl_b32 s{S_T1}, s{S_WAVE}, 20
        s_lshl_b32 s{S_T2}, s3, 7
        s_add_u32 s{S_T1}, s{S_T1}, s{S_T2}
        """)
        self.tile_loads(2, SRD_A, 8192, S_T1, o.wpol)
        self.wo_loads()
        a("s_barrier")
        a(f"""
        s_lshl_b32 s{S_T0}, s3, 2
        s_add_u32 s{S_T0}, s{S_T0}, s{S_WAVE}
        s_lshl_b32 s{S_T1}, s{S_T0}, 11
        s_add_u32 s{S_T1}, s{S_T1}, {WS_OP}
        s_lshl_b32 s{S_T0}, s{S_T0}, 5
        s_add_u32 s{S_T0}, s{S_T0}, {WS_ST}
        v_lshlrev_b32 v1, 4, v0
        v_mov_b32 v4, -1
        v_mov_b32 v5, -1
        v_mov_b32 v6, -1
        v_mov_b32 v7, -1
        buffer_store_dwordx4 v[4:7], v1, {sp(SRD_WS,4)}, s{S_T1} offen sc1
        buffer_store_dwordx4 v[4:7], v1, {sp(SRD_WS,4)}, s{S_T1} offen offset:1024 sc1
        s_mov_b64 exec, 3
        buffer_store_dwordx4 v[4:7], v1, {sp(SRD_WS,4)}, s{S_T0} offen sc1
        s_mov_b64 exec, -1
        s_waitcnt vmcnt(23)
        """)
        for i in range(4): self.unpack(8+i, 96+2*i, 97+2*i)
        self.layernorm(96, 104)
        self.gettag()
        sh, sc = self.mod_poll(0, 512, 8)
        self.oneplus(sc, sc, 24)
        self.modulate(96, sc, sh, 24, 28)
        self.av_write(28)
        a(f"""
        s_lshl_b32 s{S_T2}, s3, 8
        s_add_u32 s{S_T2}, s{S_T2}, {WS_QG}
        s_mov_b32 s{S_T3}, 16384
        """)
        a.label("L_MQ")
        a(f"""
        v_lshrrev_b32 v1, 4, v0
        v_mul_lo_u32 v7, s{S_T3}, v1
        v_and_b32 v1, 15, v0
        v_lshl_add_u32 v7, v1, 2, v7
        s_lshl_b32 s{S_T0}, s{S_WAVE}, 6
        s_add_u32 s{S_T2}, s{S_T2}, s{S_T0}
        v_add_u32 v7, s{S_T2}, v7
        """)
        self.gemv_addrs(2, 4, 5, 6)
        self.lds_sync(L_CNT, 4, 1, 2)
        self.stamp(1)
        a("s_waitcnt vmcnt(0)")
        self.transpose(32, 96)
        self.transpose(64, 32)
        self.gemv_mfma(2, 4, 5, 8, 96, 32, 64)
        self.lds_sync(L_CNT+4, 4, 1, 2)
        self.gemv_reduce(6, 8)
        self.publish4(8, 7)
        self.stamp(2)
        a("s_branch L_front_done")

        a.label("L_F")
        a(f"""
        s_mul_i32 s3, s{S_HKV}, 7
        s_add_u32 s3, s3, s{S_IDX}
        s_sub_u32 s3, s3, 14                        ; f
        s_and_b32 s{S_T0}, s{S_WAVE}, 1
        s_cmp_eq_u32 s{S_T0}, 0
        s_cselect_b32 s{SRD_A}, s{S_WG}, s{S_WU}
        s_cselect_b32 s{SRD_A+1}, s{S_WG+1}, s{S_WU+1}
        s_mov_b32 s{SRD_A+2}, {512*3584}
        s_mov_b32 s{SRD_A+3}, 0x20000
        s_lshr_b32 s{S_T1}, s{S_WAVE}, 1
        s_mul_i32 s{S_T1}, s{S_T1}, {256*3584}
        s_lshl_b32 s{S_T2}, s3, 6
        s_add_u32 s{S_T1}, s{S_T1}, s{S_T2}
        """)
        self.tile_loads(4, SRD_A, 3584, S_T1, o.wpol)
        self.srd(SRD_A, S_WD, 1792*1024)
        a(f"""
        s_lshl_b32 s{S_T0}, s3, 15
        s_lshl_b32 s{S_T1}, s{S_WAVE}, 8
        s_add_u32 s{S_T0}, s{S_T0}, s{S_T1}
        v_lshrrev_b32 v1, 4, v0
        v_and_b32 v2, 15, v0
        v_lshlrev_b32 v1, 13, v1
        v_lshl_add_u32 v1, v2, 4, v1
        v_add_u32 v1, s{S_T0}, v1
        s_mov_b32 s{S_T0}, 4096
        """)
        for j in range(8):
            so = "0" if j < 4 else f"s{S_T0}"
            a(f"buffer_load_dwordx4 {q(96+4*j)}, v1, {sp(SRD_A,4)}, {so} offen offset:{(j%4)*1024} {o.wpol}")
        self.wo_loads()
        a("s_barrier")
        self.gettag()
        sh, sc = self.mod_poll(1536, 2048, 8)
        self.oneplus(sc, [160, 161, 162, 163], 24)
        for i in range(4): a(f"v_mov_b32 v{164+i}, v{sh[i]}")
        self.transpose_inplace(32, 1, 2)
        self.transpose_inplace(64, 1, 2)
        self.transpose_inplace(96, 1, 2)
        a("s_branch L_front_done")

        a.label("L_R")
        self.wo_loads()
        a("s_barrier")
        self.srd(SRD_A, S_X, 4096)
        a(f"""
        s_sub_u32 s3, s{S_IDX}, 21
        s_lshl_b32 s3, s3, 3
        s_add_u32 s3, s3, s{S_HKV}
        s_lshl_b32 s3, s3, 2
        s_add_u32 s3, s3, s{S_WAVE}                 ; colquad 0..127
        v_lshrrev_b32 v1, 4, v0                     ; b
        v_and_b32 v2, 3, v0                         ; col
        v_lshlrev_b32 v3, 10, v1
        v_lshl_add_u32 v3, v2, 1, v3
        s_lshl_b32 s{S_T0}, s3, 3
        buffer_load_ushort v160, v3, {sp(SRD_A,4)}, s{S_T0} offen
        v_mul_u32_u24 v4, 12288, v1
        v_and_b32 v3, 2, v0
        v_lshl_add_u32 v4, v3, 2, v4
        s_lshl_b32 s{S_T0}, s3, 4
        s_add_u32 s{S_T0}, s{S_T0}, {WS_MOD + 1024*4}
        v_add_u32 v4, s{S_T0}, v4
        v_add_u32 v5, {1536*4}, v4
        """)
        self.gettag()
        self.poll_tagged([f"buffer_load_dwordx2 v[8:9], v4, {sp(SRD_WS,4)}, 0 offen sc1",
                          f"buffer_load_dwordx2 v[10:11], v5, {sp(SRD_WS,4)}, 0 offen sc1"], [9, 11])
        a(f"""
        v_lshlrev_b32 v160, 16, v160                ; x
        v_and_b32 v2, 1, v0
        v_cmp_eq_u32 vcc, 1, v2
        v_lshlrev_b32 v12, 16, v8
        v_and_b32 v13, s{S_HI}, v8
        v_cndmask_b32 v161, v12, v13, vcc           ; ga
        v_lshlrev_b32 v12, 16, v10
        v_and_b32 v13, s{S_HI}, v10
        v_cndmask_b32 v162, v12, v13, vcc           ; gb
        """)

        a.label("L_front_done")
        a(f"""
        s_cmp_lg_u32 s{S_WAVE}, 0
        s_cbranch_scc1 L_qdone
        s_lshl_b32 s{S_T0}, s{S_B}, 14
        s_lshl_b32 s{S_T1}, s{S_HKV}, 11
        s_add_u32 s{S_T0}, s{S_T0}, s{S_T1}
        s_add_u32 s{S_T0}, s{S_T0}, {WS_QG}
        v_bfe_u32 v1, v0, 2, 2
        v_lshrrev_b32 v2, 4, v0
        v_and_b32 v3, 3, v0
        v_lshlrev_b32 v4, 9, v1
        v_lshl_add_u32 v4, v2, 7, v4
        v_lshl_add_u32 v4, v3, 5, v4
        v_add_u32 v4, s{S_T0}, v4
        """)
        self.poll_tagged([f"buffer_load_dwordx4 v[8:11], v4, {sp(SRD_WS,4)}, 0 offen sc1",
                          f"buffer_load_dwordx4 v[12:15], v4, {sp(SRD_WS,4)}, 0 offen offset:16 sc1"], [9, 11, 13, 15])
        a(f"""
        v_mov_b32 v9, v10
        v_mov_b32 v10, v12
        v_mov_b32 v11, v14
        v_lshlrev_b32 v1, 4, v0
        ds_write_b128 v1, v[8:11] offset:{L_QF}
        s_waitcnt lgkmcnt(0)
        L_qdone:
        """)
        self.stamp(3)
        a("s_barrier")
        a("s_waitcnt vmcnt(0)")
        self.transpose(128, 144, nrows=4)
        a(f"""
        s_lshl_b32 s{S_T2}, s{S_HKV}, 2
        s_add_u32 s{S_T2}, s{S_T2}, s{S_B}          ; head
        v_and_b32 v1, 3, v0                         ; b
        v_bfe_u32 v2, v0, 2, 1                      ; kb
        v_bfe_u32 v3, v0, 3, 1
        v_lshrrev_b32 v8, 4, v0                     ; g
        v_lshl_add_u32 v9, v1, 1, v3                ; b*2+chh
        v_lshlrev_b32 v4, 11, v9
        v_lshl_add_u32 v4, v2, 6, v4
        v_lshl_add_u32 v4, v8, 4, v4
        s_lshl_b32 s{S_T0}, s{S_T2}, 14
        s_lshl_b32 s{S_T1}, s{S_WAVE}, 7
        s_add_u32 s{S_T0}, s{S_T0}, s{S_T1}
        s_add_u32 s{S_T0}, s{S_T0}, {WS_OP}
        v_add_u32 v4, s{S_T0}, v4
        s_lshl_b32 s{S_T0}, s{S_T2}, 8
        s_add_u32 s{S_T0}, s{S_T0}, {WS_ST}
        v_lshlrev_b32 v5, 5, v9
        v_add_u32 v5, s{S_T0}, v5
        v_mul_u32_u24 v6, {PS}, v3
        v_and_b32 v9, 7, v0
        v_lshl_add_u32 v6, v9, 4, v6
        v_lshrrev_b32 v9, 5, v0
        v_lshl_add_u32 v6, v9, 7, v6
        s_mul_i32 s{S_T0}, s{S_WAVE}, {2*PS}
        v_add_u32 v6, s{S_T0}, v6
        v_and_b32 v9, 1, v8
        v_cmp_eq_u32 {sp(S_M+12)}, v3, v9
        v_cmp_eq_u32 {sp(S_M+10)}, 1, v3            ; i>=8
        v_mul_u32_u24 v7, {2*PS}, v1
        v_bfe_u32 v9, v0, 2, 3
        v_lshl_add_u32 v7, v9, 7, v7
        v_lshrrev_b32 v9, 5, v0
        v_lshl_add_u32 v7, v9, 4, v7
        s_lshl_b32 s{S_T0}, s{S_WAVE}, 5
        v_add_u32 v7, s{S_T0}, v7
        s_lshl_b32 s{S_T0}, s{S_T2}, 13
        s_lshl_b32 s{S_T1}, s{S_CH}, 10
        s_add_u32 s{S_T0}, s{S_T0}, s{S_T1}
        s_lshl_b32 s{S_T1}, s{S_WAVE}, 8
        s_add_u32 s{S_T0}, s{S_T0}, s{S_T1}
        s_add_u32 s{S_T0}, s{S_T0}, {WS_AP}
        v_lshrrev_b32 v3, 2, v0
        v_lshlrev_b32 v3, 4, v3
        v_add_u32 v3, s{S_T0}, v3
        s_lshl_b32 s{S_T0}, s{S_HKV}, 10
        s_lshl_b32 s{S_T1}, s{S_B}, 6
        s_add_u32 s{S_T0}, s{S_T0}, s{S_T1}
        s_lshl_b32 s{S_T1}, s{S_CH}, 3
        s_add_u32 s{S_T0}, s{S_T0}, s{S_T1}
        s_add_u32 s{S_T0}, s{S_T0}, {WS_ST}
        v_lshlrev_b32 v2, 8, v1
        v_add_u32 v2, s{S_T0}, v2
        v_lshlrev_b32 v1, 5, v1                     ; h*32
        s_barrier
        s_barrier
        """)
        self.stamp(4)
        a(f"""
        s_cmp_lg_u32 s{S_WAVE}, 3
        s_cbranch_scc1 L_nost
        ds_read_b128 v[8:11], v1 offset:{L_MX}
        ds_read_b128 v[12:15], v1 offset:{L_MX+16}
        ds_read_b128 v[16:19], v1 offset:{L_LS}
        ds_read_b128 v[20:23], v1 offset:{L_LS+16}
        s_mov_b32 s{S_T0}, {LOG2E}
        s_waitcnt lgkmcnt(0)
        v_max3_f32 v8, v8, v9, v10
        v_max3_f32 v12, v11, v12, v13
        v_max3_f32 v8, v8, v14, v15
        v_max_f32 v8, v8, v12
        v_mul_f32 v8, s{S_T0}, v8
        v_add_f32 v16, v16, v17
        v_add_f32 v18, v18, v19
        v_add_f32 v20, v20, v21
        v_add_f32 v22, v22, v23
        v_add_f32 v16, v16, v18
        v_add_f32 v20, v20, v22
        v_add_f32 v9, v16, v20
        v_min_u32 v8, -2, v8
        v_min_u32 v9, -2, v9
        s_mov_b64 exec, 15
        buffer_store_dwordx2 v[8:9], v2, {sp(SRD_WS,4)}, 0 offen sc1
        s_mov_b64 exec, -1
        L_nost:
        """)
        groups = [([f"buffer_load_dwordx4 {q(128+4*t)}, v4, {sp(SRD_WS,4)}, 0 offen offset:{t*512} sc1"],
                   range(128+4*t, 132+4*t), "-1") for t in range(4)]
        groups.append(([f"buffer_load_dwordx4 v[8:11], v5, {sp(SRD_WS,4)}, 0 offen sc1",
                        f"buffer_load_dwordx4 v[12:15], v5, {sp(SRD_WS,4)}, 0 offen offset:16 sc1"], range(8, 16), "-1"))
        self.poll_sent(groups, 16)
        self.stamp(5)
        ror8 = "row_ror:8 row_mask:0xf bank_mask:0xf"
        a(f"""
        v_max3_f32 v16, v8, v10, v12
        v_max_f32 v16, v16, v14
        v_max_f32_dpp v16, v16, v16 {ror8}
        v_sub_f32 v8, v8, v16
        v_sub_f32 v10, v10, v16
        v_sub_f32 v12, v12, v16
        v_sub_f32 v14, v14, v16
        v_exp_f32 v8, v8
        v_exp_f32 v10, v10
        v_exp_f32 v12, v12
        v_exp_f32 v14, v14
        v_mul_f32 v16, v8, v9
        v_fmac_f32 v16, v10, v11
        v_fmac_f32 v16, v12, v13
        v_fmac_f32 v16, v14, v15
        v_add_f32_dpp v16, v16, v16 {ror8}
        v_rcp_f32 v16, v16
        """)
        for d in range(4): a(f"v_mul_f32 v{128+d}, v8, v{128+d}")
        for t in range(1, 4):
            for d in range(4): a(f"v_fmac_f32 v{128+d}, v{8+2*t}, v{128+4*t+d}")
        for d in range(4): a(f"v_add_f32_dpp v{128+d}, v{128+d}, v{128+d} {ror8}")
        for d in range(4): a(f"v_mul_f32 v{128+d}, v{128+d}, v16")
        a(f"""
        v_cvt_pk_bf16_f32 v8, v128, v129
        v_cvt_pk_bf16_f32 v9, v130, v131
        v_cndmask_b32 v10, 0, v8, {sp(S_M+10)}
        v_cndmask_b32 v11, 0, v9, {sp(S_M+10)}
        v_cndmask_b32 v8, v8, 0, {sp(S_M+10)}
        v_cndmask_b32 v9, v9, 0, {sp(S_M+10)}
        """)
        for cc in range(4):
            a(f"v_mfma_f32_16x16x16_bf16 {q(16+4*cc)}, v[8:9], {q(144+4*cc,2)}, 0")
        for cc in range(4):
            a(f"v_mfma_f32_16x16x16_bf16 {q(16+4*cc)}, v[10:11], {q(146+4*cc,2)}, {q(16+4*cc)}")
        a(f"s_mov_b64 exec, {sp(S_M+12)}")
        for cc in range(4):
            a(f"ds_write_b128 v6, {q(16+4*cc)} offset:{L_PART + cc*256}")
        a(f"""
        s_mov_b64 exec, -1
        s_mov_b32 s{S_T0}, 0x11111111
        s_mov_b32 s{S_T1}, 0x11111111
        s_waitcnt lgkmcnt(0)
        s_barrier
        ds_read_b128 v[8:11], v7 offset:{L_PART}
        ds_read_b128 v[12:15], v7 offset:{L_PART+PS}
        s_waitcnt lgkmcnt(0)
        """)
        self.quad_reduce(8, 12)
        a(f"""
        s_mov_b64 exec, {sp(S_T0)}
        buffer_store_dwordx4 v[8:11], v3, {sp(SRD_WS,4)}, 0 offen sc1
        s_mov_b64 exec, -1
        """)
        self.stamp(6)
        a(f"""
        s_cmp_lt_u32 s{S_IDX}, 14
        s_cbranch_scc1 L_fin
        s_cmp_lt_u32 s{S_IDX}, 21
        s_cbranch_scc1 L_F2
        s_cmp_ge_u32 s{S_IDX}, 25
        s_cbranch_scc1 L_fin
        """)
        a(f"""
        v_lshrrev_b32 v1, 2, v0
        v_and_b32 v2, 3, v0
        v_lshlrev_b32 v4, 13, v1
        v_lshl_add_u32 v4, v2, 4, v4
        s_lshl_b32 s{S_T0}, s3, 6
        v_add_u32 v4, s{S_T0}, v4
        s_mov_b32 s{S_T2}, {WS_AP}
        s_mov_b32 s{S_T3}, {WS_AP + 16*8192}
        """)
        def preR():
            a(f"""
            v_lshrrev_b32 v1, 4, v0
            v_lshlrev_b32 v5, 11, v1
            s_lshl_b32 s{S_T0}, s3, 4
            s_add_u32 s{S_T0}, s{S_T0}, {WS_X1}
            v_add_u32 v5, s{S_T0}, v5
            v_lshlrev_b32 v6, 10, v1
            s_lshl_b32 s{S_T0}, s3, 3
            v_add_u32 v6, s{S_T0}, v6
            v_mov_b32 v44, 0
            v_mov_b32 v45, 0
            v_mov_b32 v46, 0
            v_mov_b32 v47, 0
            """)
            self.srd(SRD_A, S_OUT, 4096)
        self.poll_sent([([f"buffer_load_dwordx4 v[8:11], v4, {sp(SRD_WS,4)}, s{S_T2} offen sc1"], range(8, 12), "-1"),
                        ([f"buffer_load_dwordx4 v[12:15], v4, {sp(SRD_WS,4)}, s{S_T3} offen sc1"], range(12, 16), "-1")], 16, preR)
        self.stamp(7)
        for i in range(4): a(f"v_add_f32 v{8+i}, v{8+i}, v{12+i}")
        self.scatter4(8)
        a(f"""
        v_add_f32_dpp v8, v8, v8 {ror8}
        v_add_f32_dpp v8, v8, v8 row_ror:4 row_mask:0xf bank_mask:0xf
        """)
        self.round1(8)
        a("v_mul_f32 v8, v8, v161")
        self.round1(8)
        a("v_add_f32 v8, v8, v160")
        self.round1(8)
        a(f"""
        v_mov_b32 v160, v8
        v_mov_b32_dpp v9, v8 quad_perm:[1,1,3,3] row_mask:0xf bank_mask:0xf
        v_cvt_pk_bf16_f32 v8, v8, v9
        v_mov_b32 v9, s{S_TAG}
        v_mov_b32 v11, s{S_TAG}
        v_mov_b32_dpp v10, v8 quad_perm:[2,2,2,2] row_mask:0xf bank_mask:0xf
        s_mov_b32 s{S_T0}, 0x00010001
        s_mov_b32 s{S_T1}, 0x00010001
        s_mov_b64 exec, {sp(S_T0)}
        buffer_store_dwordx4 v[8:11], v5, {sp(SRD_WS,4)}, 0 offen sc1
        s_mov_b64 exec, -1
        """)
        self.stamp(8)
        a(f"""
        s_mov_b32 s{S_T0}, {WS_DP}
        s_mov_b32 s{S_T1}, {WS_DP + 16*8192}
        s_mov_b32 s{S_T2}, {WS_DP + 32*8192}
        s_mov_b32 s{S_T3}, {WS_DP + 48*8192}
        """)
        self.poll_sent([([f"buffer_load_dwordx4 {q(32+4*t)}, v4, {sp(SRD_WS,4)}, s{S_T0+t} offen sc1"],
                         range(32+4*t, 36+4*t), "-1" if t < 3 else ("-1", "0")) for t in range(4)], 16)
        self.stamp(9)
        for i in range(4):
            a(f"v_add_f32 v{32+i}, v{32+i}, v{36+i}")
            a(f"v_add_f32 v{40+i}, v{40+i}, v{44+i}")
        for i in range(4): a(f"v_add_f32 v{8+i}, v{32+i}, v{40+i}")
        self.scatter4(8)
        a(f"""
        v_add_f32_dpp v8, v8, v8 {ror8}
        v_add_f32_dpp v8, v8, v8 row_ror:4 row_mask:0xf bank_mask:0xf
        """)
        self.round1(8)
        a("v_mul_f32 v8, v8, v162")
        self.round1(8)
        a(f"""
        v_add_f32 v8, v8, v160
        v_mov_b32_dpp v9, v8 quad_perm:[1,1,3,3] row_mask:0xf bank_mask:0xf
        v_cvt_pk_bf16_f32 v8, v8, v9
        s_mov_b32 s{S_T0}, 0x00010001
        s_mov_b32 s{S_T1}, 0x00010001
        v_mov_b32_dpp v9, v8 quad_perm:[2,2,2,2] row_mask:0xf bank_mask:0xf
        s_mov_b64 exec, {sp(S_T0)}
        buffer_store_dwordx2 v[8:9], v6, {sp(SRD_A,4)}, 0 offen
        s_cmp_lg_u32 s3, 0
        s_cbranch_scc1 L_fin
        s_mov_b64 exec, 1
        s_add_u32 s{S_T0}, s{S_EPOCH}, 1
        v_mov_b32 v1, {WS_EPOCH}
        v_mov_b32 v2, s{S_T0}
        buffer_store_dword v2, v1, {sp(SRD_WS,4)}, 0 offen sc1
        s_branch L_fin
        """)

        a.label("L_F2")
        a(f"""
        s_lshl_b32 s{S_T0}, s{S_WAVE}, 11
        s_add_u32 s{S_T0}, s{S_T0}, {WS_X1}
        v_lshlrev_b32 v7, 5, v0
        v_add_u32 v7, s{S_T0}, v7
        """)
        def preF():
            self.gemv_addrs(4, 4, 5, 6)
            a(f"""
            s_mul_i32 s{S_T0}, s{S_WAVE}, {AVS}
            v_lshlrev_b32 v144, 4, v0
            v_add_u32 v144, s{S_T0}, v144
            v_lshrrev_b32 v1, 4, v0
            v_and_b32 v2, 7, v0
            v_lshlrev_b32 v145, 6, v1
            v_lshl_add_u32 v145, v2, 1, v145
            s_lshl_b32 s{S_T0}, s{S_WAVE}, 4
            v_add_u32 v145, s{S_T0}, v145
            v_and_b32 v2, 3, v0
            v_lshlrev_b32 v3, 6, v2
            v_lshl_add_u32 v3, v1, 4, v3
            v_add_u32 v3, {L_ACT}, v3
            v_mov_b32 v150, {L_ZERO}
            v_bfe_u32 v2, v0, 2, 2
            """)
            for x in range(4):
                a(f"v_cmp_eq_u32 vcc, {x}, v2\nv_cndmask_b32 v{146+x}, v150, v3, vcc")
            a(f"""
            v_and_b32 v2, 15, v0
            v_lshlrev_b32 v150, 7, v2
            v_lshl_add_u32 v150, v1, 4, v150
            s_lshl_b32 s{S_T0}, s3, 13
            s_lshl_b32 s{S_T1}, s{S_WAVE}, 11
            s_add_u32 s{S_T0}, s{S_T0}, s{S_T1}
            s_add_u32 s{S_T0}, s{S_T0}, {WS_DP}
            v_add_u32 v150, s{S_T0}, v150
            """)
        self.poll_tagged([f"buffer_load_dwordx4 v[8:11], v7, {sp(SRD_WS,4)}, 0 offen sc1",
                          f"buffer_load_dwordx4 v[12:15], v7, {sp(SRD_WS,4)}, 0 offen offset:16 sc1"], [9, 11, 13, 15], preF)
        self.stamp(7)
        for i in range(4): self.unpack(8+2*i, 128+2*i, 129+2*i)
        self.layernorm(128, 8)
        self.modulate(128, [160, 161, 162, 163], [164, 165, 166, 167], 8, 12)
        a(f"""
        ds_write_b128 v144, v[12:15] offset:{L_AV}
        s_waitcnt lgkmcnt(0)
        s_barrier
        """)
        Dq = [128, 132, 136, 140, 16, 20, 24, 28]
        a(f"""
        ds_read_b128 v[8:11], v4 offset:{L_AV}
        ds_read_b128 v[12:15], v4 offset:{L_AV + 256}
        s_waitcnt lgkmcnt(1)
        """)
        for c in range(8): a(f"v_mfma_f32_16x16x32_bf16 {q(Dq[c])}, v[8:11], {q(32+4*c)}, 0")
        a("s_waitcnt lgkmcnt(0)")
        for c in range(8): a(f"v_mfma_f32_16x16x32_bf16 {q(Dq[c])}, v[12:15], {q(64+4*c)}, {q(Dq[c])}")
        a(f"s_mov_b64 exec, {sp(S_M+12)}")
        for c in range(8): a(f"ds_write_b128 v5, {q(Dq[c])} offset:{L_PART + c*64}")
        a(f"""
        s_mov_b64 exec, -1
        s_waitcnt lgkmcnt(0)
        s_barrier
        """)
        self.gemv_reduce(6, 8)
        self.round1(8)
        a(f"""
        v_mov_b32_dpp v9, v8 {ror8}
        v_mul_f32 v10, v8, v8
        v_mov_b32 v11, 0x3d372713                    ; 0.044715
        v_fma_f32 v10, v10, v11, 1.0
        v_mul_f32 v10, v10, v8                       ; x + 0.044715 x^3
        v_mul_f32 v10, 0xc0135761, v10               ; -2*sqrt(2/pi)*log2e
        v_exp_f32 v10, v10
        v_add_f32 v10, 1.0, v10
        v_rcp_f32 v10, v10
        v_mul_f32 v8, v8, v10                        ; gelu
        """)
        self.round1(8)
        a(f"""
        v_mul_f32 v8, v8, v9
        v_cvt_pk_bf16_f32 v8, v8, v8
        s_mov_b32 s{S_T0}, 0x00ff00ff
        s_mov_b32 s{S_T1}, 0x00ff00ff
        s_mov_b64 exec, {sp(S_T0)}
        ds_write_b16 v145, v8 offset:{L_ACT}
        s_mov_b64 exec, -1
        s_waitcnt lgkmcnt(0)
        s_barrier
        """)
        for x in range(4): a(f"ds_read_b128 {q(8+4*x)}, v{146+x}")
        for x in range(4):
            a(f"s_waitcnt lgkmcnt({3-x})")
            for hf in range(2):
                c = 4*hf + x
                a(f"v_mfma_f32_16x16x32_bf16 {q(128+4*hf)}, {q(8+4*x)}, {q(96+4*c)}, {'0' if x == 0 else q(128+4*hf)}")
        for i in range(8): a(f"v_min_u32 v{128+i}, -2, v{128+i}")
        a(f"""
        buffer_store_dwordx4 v[128:131], v150, {sp(SRD_WS,4)}, 0 offen sc1
        buffer_store_dwordx4 v[132:135], v150, {sp(SRD_WS,4)}, 0 offen offset:64 sc1
        """)
        self.stamp(8)
        a.label("L_fin")
        self.stamp(10)
        self.flush_stamps(11, 0, 0)
        a.label("L_end")
        a("s_endpgm")

    def gettag(self):
        self.a(f"""
        s_waitcnt lgkmcnt(0)
        s_add_u32 s{S_TAG}, s{S_EPOCH}, 0x9E3779B9
        """)

    def build(self):
        if self.o.stamps:
            for k in range(1, 12):
                self.a(f"s_mov_b64 {sp(S_ST+2*k)}, 0")
        self.prologue()
        self.stream()
        self.aux()
        return self.a.text()


def header():
    ref = open("adaLN_cond__sliding_block_cached__geglu_ffn__decode.s.ref").read().split("\n")
    out = []
    for l in ref:
        if l.startswith("; @launch"): break
        out.append(l)
    return "\n".join(out) + "\n"


def main():
    ap = argparse.ArgumentParser()
    ap.add_argument("out")
    ap.add_argument("--stamps", action="store_true")
    ap.add_argument("--depth", type=int, default=4)
    ap.add_argument("--tailfree", type=int, default=0)
    ap.add_argument("--kvpol", default="nt")
    ap.add_argument("--wpol", default="nt")
    o = ap.parse_args()
    body = G(o).build()
    try: hd = header()
    except Exception: hd = "; generated\n"
    open(o.out, "w").write(kernel_file([(KN, body, 168, 102, 168)], [(KN, 256, 768, LDS_BYTES)], header=hd))


if __name__ == "__main__":
    main()
```

```python
import sys, argparse
from asmlib import *

WS_EPOCH = 0x0
WS_MOD = 0x1000
WS_XT = 0xE000
WS_X1 = 0x160000
WS_QG = 0x10000
WS_OP = 0x20000
WS_ST = 0xA0000
WS_AP = 0xB0000
WS_DP = 0xF0000
WS_END = 0x170000
WS_STAMP = 0x200000
WS_SIZE = 0x400000
L_CNT = 0x0
L_ZERO = 0x40
L_QF = 0x100
L_MX = 0x500
L_LS = 0x580
L_ACT = 0x600
L_AV = 0x800
AVS = 1024 + 64
L_PART = 0x1A00
PS = 1024 + 16
L_OL = 0x4000
OLS = 2048 + 32
L_PW = 0x8400
LDS_BYTES = L_PW + 16384
L_FLAG = 0x80

LOG2E = 0x3FB8AA3B
SCALE = 0x3DB504F3
TMO = 40000

S_X, S_K, S_V, S_WQ, S_WO, S_WG, S_WU = 4, 6, 8, 10, 12, 16, 18
S_WD, S_C, S_WM, S_OUT, S_DBG, S_WS = 20, 22, 24, 26, 28, 30
S_WAVE, S_HKV, S_IDX, S_B, S_CH = 32, 33, 34, 35, 36
S_TAG, S_EPOCH, S_TMO = 37, 38, 39
SRD_WS = 40
SRD_A = 44
SRD_B = 48
S_PLO, S_PHI = 52, 53
S_T0, S_T1, S_T2, S_T3 = 54, 55, 56, 57
S_M = 58
S_HI = 72
S_LOC = 73
S_ST = 74
S_CQ, S_TGT = 98, 99
S_U = 100


def q(r, n=4): return f"v[{r}:{r+n-1}]"
def sp(r, n=2): return f"s[{r}:{r+n-1}]"


class G:
    def __init__(self, o):
        self.o = o
        self.a = Asm()
        self.nst = 0

    def stamp(self, k):
        if self.o.stamps:
            self.a(f"s_memrealtime {sp(S_ST+2*k)}")

    def flush_stamps(self, n, slot, cond_wave):
        if not self.o.stamps: return
        a = self.a
        L = a.newlabel("Lst")
        a(f"""
        s_cmp_lg_u32 s{S_WAVE}, {cond_wave}
        s_cbranch_scc1 {L}
        s_waitcnt lgkmcnt(0)
        s_mov_b64 exec, 1
        s_lshl_b32 s{S_T0}, s2, 8
        s_add_u32 s{S_T0}, s{S_T0}, {WS_STAMP + slot*128}
        v_mov_b32 v1, s{S_T0}
        """)
        for k in range(n):
            a(f"""
            v_mov_b32 v2, s{S_ST+2*k}
            v_mov_b32 v3, s{S_ST+2*k+1}
            buffer_store_dwordx2 v[2:3], v1, {sp(SRD_WS,4)}, 0 offen offset:{8*k}
            s_waitcnt vmcnt(0)
            """)
        a.label(L)

    def srd(self, dst, ptr, size):
        self.a(f"""
        s_mov_b32 s{dst}, s{ptr}
        s_mov_b32 s{dst+1}, s{ptr+1}
        s_mov_b32 s{dst+2}, {size}
        s_mov_b32 s{dst+3}, 0x20000
        """)

    def transpose(self, src, dst, nrows=8):
        a = self.a
        ne = nrows // 2
        for e in range(ne):
            self.transpose_pair(src, dst, e, ne)

    def transpose_pair(self, src, dst, e, ne):
        a = self.a
        for d in range(4):
            lo, hi = src + 8*e + d, src + 8*e + 4 + d
            a(f"v_perm_b32 v{dst + (2*d)*ne + e}, v{hi}, v{lo}, s{S_PLO}")
            a(f"v_perm_b32 v{dst + (2*d+1)*ne + e}, v{hi}, v{lo}, s{S_PHI}")

    def transpose_inplace(self, b, t0, t1):
        a = self.a
        R = lambda row, d: b + 4*row + d
        for e in range(4):
            a(f"v_perm_b32 v{t0}, v{R(2*e+1,e)}, v{R(2*e,e)}, s{S_PLO}")
            a(f"v_perm_b32 v{R(2*e+1,e)}, v{R(2*e+1,e)}, v{R(2*e,e)}, s{S_PHI}")
            a(f"v_mov_b32 v{R(2*e,e)}, v{t0}")
            for d in range(e+1, 4):
                a(f"v_perm_b32 v{t0}, v{R(2*e+1,d)}, v{R(2*e,d)}, s{S_PLO}")
                a(f"v_perm_b32 v{t1}, v{R(2*e+1,d)}, v{R(2*e,d)}, s{S_PHI}")
                a(f"v_perm_b32 v{R(2*e,d)}, v{R(2*d+1,e)}, v{R(2*d,e)}, s{S_PLO}")
                a(f"v_perm_b32 v{R(2*e+1,d)}, v{R(2*d+1,e)}, v{R(2*d,e)}, s{S_PHI}")
                a(f"v_mov_b32 v{R(2*d,e)}, v{t0}")
                a(f"v_mov_b32 v{R(2*d+1,e)}, v{t1}")

    def rows_allreduce(self, op, r, t):
        self.a(f"""
        v_mov_b32 v{t}, v{r}
        v_permlane16_swap_b32 v{r}, v{t}
        {op} v{r}, v{r}, v{t}
        v_mov_b32 v{t}, v{r}
        v_permlane32_swap_b32 v{r}, v{t}
        {op} v{r}, v{r}, v{t}
        """)

    def wave_allreduce2(self, r0, r1, t0, t1):
        a = self.a
        for m in ("quad_perm:[1,0,3,2]", "quad_perm:[2,3,0,1]", "row_half_mirror", "row_mirror"):
            a(f"v_add_f32_dpp v{r0}, v{r0}, v{r0} {m} row_mask:0xf bank_mask:0xf")
            a(f"v_add_f32_dpp v{r1}, v{r1}, v{r1} {m} row_mask:0xf bank_mask:0xf")
        for sw in ("16", "32"):
            a(f"""
            v_mov_b32 v{t0}, v{r0}
            v_mov_b32 v{t1}, v{r1}
            v_permlane{sw}_swap_b32 v{r0}, v{t0}
            v_permlane{sw}_swap_b32 v{r1}, v{t1}
            v_add_f32 v{r0}, v{r0}, v{t0}
            v_add_f32 v{r1}, v{r1}, v{t1}
            """)

    def scatter4(self, r):
        self.a(f"""
        v_permlane32_swap_b32 v{r}, v{r+2}
        v_permlane32_swap_b32 v{r+1}, v{r+3}
        v_add_f32 v{r}, v{r}, v{r+2}
        v_add_f32 v{r+1}, v{r+1}, v{r+3}
        v_permlane16_swap_b32 v{r}, v{r+1}
        v_add_f32 v{r}, v{r}, v{r+1}
        """)

    def unpack(self, pk, lo, hi):
        self.a(f"""
        v_and_b32 v{hi}, s{S_HI}, v{pk}
        v_lshlrev_b32 v{lo}, 16, v{pk}
        """) if lo == pk else self.a(f"""
        v_lshlrev_b32 v{lo}, 16, v{pk}
        v_and_b32 v{hi}, s{S_HI}, v{pk}
        """)

    def round2(self, r0, r1, t):
        self.a(f"v_cvt_pk_bf16_f32 v{t}, v{r0}, v{r1}")
        self.unpack(t, r0, r1)

    def round1(self, r):
        self.a(f"""
        v_cvt_pk_bf16_f32 v{r}, v{r}, v{r}
        v_and_b32 v{r}, s{S_HI}, v{r}
        """)

    def lds_sync(self, cnt, target, vt0, vt1):
        a = self.a
        L = a.newlabel("Lsync"); E = a.newlabel("Lsyncx")
        a(f"""
        v_mov_b32 v{vt0}, {cnt}
        v_mov_b32 v{vt1}, 1
        s_waitcnt lgkmcnt(0)
        s_mov_b64 exec, 1
        ds_add_u32 v{vt0}, v{vt1}
        s_mov_b64 exec, -1
        s_mov_b32 s{S_TMO}, {TMO*8}
        {L}:
        ds_read_b32 v{vt1}, v{vt0}
        s_sub_u32 s{S_TMO}, s{S_TMO}, 1
        s_cbranch_scc1 {E}
        s_waitcnt lgkmcnt(0)
        v_readfirstlane_b32 s{S_T0}, v{vt1}
        s_cmp_lt_u32 s{S_T0}, {target}
        s_cbranch_scc1 {L}
        {E}:
        s_waitcnt lgkmcnt(0)
        """)

    def poll_tagged(self, loads, tagregs, pre=None, sleepy=True):
        a = self.a
        L = a.newlabel("Lpt"); E = a.newlabel("Lptx"); C = a.newlabel("Lptc")
        a(f"s_mov_b32 s{S_TMO}, {TMO}")
        if pre:
            for l in loads: a(l)
            pre()
            a(f"s_branch {C}")
        a.label(L)
        if self.o.sleep and sleepy: a(f"s_sleep {self.o.sleep}")
        for l in loads: a(l)
        a.label(C)
        a(f"""
        s_sub_u32 s{S_TMO}, s{S_TMO}, 1
        s_cbranch_scc1 {E}
        s_waitcnt vmcnt(0)
        """)
        for i, r in enumerate(tagregs):
            if i == 0: a(f"v_cmp_ne_u32 vcc, s{S_TAG}, v{r}")
            else:
                a(f"v_cmp_ne_u32 {sp(S_T0)}, s{S_TAG}, v{r}")
                a(f"s_or_b64 vcc, vcc, {sp(S_T0)}")
        a(f"""
        s_cmp_lg_u64 vcc, 0
        s_cbranch_scc1 {L}
        {E}:
        s_waitcnt vmcnt(0)
        """)

    def poll_sent(self, groups, tmp, pre=None):
        a = self.a
        L = a.newlabel("Lps"); E = a.newlabel("Lpsx"); C = a.newlabel("Lpsc")
        a(f"s_mov_b32 s{S_TMO}, {TMO}")
        for i, (loads, regs, init) in enumerate(groups):
            if isinstance(init, tuple):
                a(f"s_mov_b32 s{S_M+2*i}, {init[0]}\ns_mov_b32 s{S_M+2*i+1}, {init[1]}")
            else:
                a(f"s_mov_b64 {sp(S_M+2*i)}, {init}")
        def issue():
            for i, (loads, regs, init) in enumerate(groups):
                a(f"s_mov_b64 exec, {sp(S_M+2*i)}")
                for l in loads: a(l)
            a("s_mov_b64 exec, -1")
        if pre:
            issue(); pre(); a(f"s_branch {C}")
        a.label(L)
        issue()
        a.label(C)
        a(f"""
        s_sub_u32 s{S_TMO}, s{S_TMO}, 1
        s_cbranch_scc1 {E}
        s_waitcnt vmcnt(0)
        """)
        for i, (loads, regs, init) in enumerate(groups):
            rs = list(regs)
            a(f"v_max3_u32 v{tmp}, v{rs[0]}, v{rs[1]}, v{rs[2]}")
            rs = rs[3:]
            while rs:
                if len(rs) >= 2:
                    a(f"v_max3_u32 v{tmp}, v{tmp}, v{rs[0]}, v{rs[1]}"); rs = rs[2:]
                else:
                    a(f"v_max_u32 v{tmp}, v{tmp}, v{rs[0]}"); rs = rs[1:]
            a(f"v_cmp_eq_u32 {sp(S_M+2*i)}, -1, v{tmp}")
        a(f"s_or_b64 vcc, {sp(S_M)}, {sp(S_M+2)}")
        for i in range(2, len(groups)):
            a(f"s_or_b64 vcc, vcc, {sp(S_M+2*i)}")
        a(f"""
        s_cbranch_scc1 {L}
        {E}:
        s_waitcnt vmcnt(0)
        """)

    def capture(self, fn):
        old = self.a
        self.a = Asm(); self.a.nlabel = old.nlabel
        fn()
        lines = self.a.lines; old.nlabel = self.a.nlabel
        self.a = old
        return lines

    def aff(self, vd, base, lt=(), st=(), vt=1):
        a = self.a
        a(f"s_mov_b32 s{S_U}, {base}")
        for (sr, mul) in st:
            if mul == 1: a(f"s_add_u32 s{S_U}, s{S_U}, s{sr}")
            else: a(f"s_mul_i32 s{S_U+1}, s{sr}, {mul}\ns_add_u32 s{S_U}, s{S_U}, s{S_U+1}")
        acc = f"s{S_U}"
        if not lt: a(f"v_mov_b32 v{vd}, {acc}")
        for (sh, w, mul) in lt:
            if sh == 0 and w >= 6: src = "v0"
            else:
                src = f"v{vt}"
                if sh + w >= 6: a(f"v_lshrrev_b32 v{vt}, {sh}, v0")
                elif sh == 0: a(f"v_and_b32 v{vt}, {(1<<w)-1}, v0")
                else: a(f"v_bfe_u32 v{vt}, v0, {sh}, {w}")
            if mul & (mul-1) == 0:
                a(f"v_lshl_add_u32 v{vd}, {src}, {mul.bit_length()-1}, {acc}")
            else:
                a(f"v_mul_u32_u24 v{vt}, {mul}, {src}\nv_add_u32 v{vd}, {acc}, v{vt}")
            acc = f"v{vd}"

    def flavor_masks(self, dst, lo, hi):
        self.a(f"""
        s_cmp_lg_u32 s{S_LOC}, 0
        s_cselect_b32 s{dst}, {lo}, 0
        s_cselect_b32 s{dst+1}, {hi}, 0
        s_cselect_b32 s{dst+2}, 0, {lo}
        s_cselect_b32 s{dst+3}, 0, {hi}
        """)

    def flavor_store(self, m, ins):
        self.a(f"""
        s_mov_b64 exec, {sp(m)}
        {ins}
        s_mov_b64 exec, {sp(m+2)}
        {ins} sc1
        s_mov_b64 exec, -1
        """)

    def prologue(self):
        a = self.a
        self.stamp(0)
        a(f"""
        s_cmp_ge_u32 s2, 256
        s_cbranch_scc1 L_end
        s_load_dwordx16 s[4:19], s[0:1], 0
        s_load_dwordx8 s[20:27], s[0:1], 64
        s_load_dwordx4 s[28:31], s[0:1], 96
        v_lshrrev_b32 v1, 6, v0
        v_and_b32 v0, 63, v0
        s_and_b32 s{S_HKV}, s2, 7
        v_readfirstlane_b32 s{S_WAVE}, v1
        s_lshr_b32 s{S_IDX}, s2, 3
        s_and_b32 s{S_B}, s{S_IDX}, 3
        s_lshr_b32 s{S_CH}, s{S_IDX}, 2
        s_mov_b32 s{S_PLO}, 0x05040100
        s_mov_b32 s{S_PHI}, 0x07060302
        s_mov_b32 s{S_HI}, 0xffff0000
        s_cmp_lt_u32 s{S_WAVE}, 4
        s_cbranch_scc1 L_aux
        """)

    def stream(self):
        a = self.a; o = self.o
        nt = o.kvpol
        kreg = lambda t, u: 32 + 16*t + 4*u
        vreg = lambda t, u: 96 + 16*t + 4*u
        dreg = lambda t, u: (8 + 4*u) if t == 0 else (32 + 16*(t-1) + 4*u)
        S_W = 3
        a(f"""
        s_sub_u32 s{S_W}, s{S_WAVE}, 4
        s_lshl_b32 s{S_T0}, s{S_B}, 3
        s_add_u32 s{S_T0}, s{S_T0}, s{S_HKV}
        s_lshl_b32 s{S_T0}, s{S_T0}, 22
        s_lshl_b32 s{S_T1}, s{S_CH}, 17
        s_add_u32 s{S_T0}, s{S_T0}, s{S_T1}
        s_lshl_b32 s{S_T1}, s{S_W}, 12
        s_add_u32 s{S_T0}, s{S_T0}, s{S_T1}
        s_add_u32 s{S_T0}, s{S_T0}, 3145728
        v_bfe_u32 v1, v0, 2, 2
        v_lshrrev_b32 v2, 4, v0
        v_and_b32 v3, 3, v0
        v_lshlrev_b32 v6, 8, v1
        v_lshl_add_u32 v6, v2, 6, v6
        v_lshl_add_u32 v6, v3, 4, v6
        v_add_u32 v4, s{S_T0}, v6
        v_lshlrev_b32 v7, 4, v0
        v_add_u32 v5, s{S_T0}, v7
        s_mov_b32 s{S_T1}, 32768
        s_mov_b32 s{S_T2}, 65536
        s_mov_b32 s{S_T3}, 98304
        s_sub_u32 s{S_T0}, s{S_IDX}, 6
        s_cmp_lt_u32 s{S_T0}, 8
        s_cselect_b32 s{S_T0}, 0, s{S_IDX}
        s_waitcnt lgkmcnt(0)
        """)
        self.srd(SRD_A, S_K, 0x8000000)
        self.srd(SRD_B, S_V, 0x8000000)
        so = ["0", f"s{S_T1}", f"s{S_T2}", f"s{S_T3}"]
        loads = []
        for (rf, va, srd) in ((kreg, 4, SRD_A), (vreg, 5, SRD_B)):
            for t in range(4):
                for u in range(4):
                    loads.append(f"buffer_load_dwordx4 {q(rf(t,u))}, v{va}, {sp(srd,4)}, {so[t]} offen offset:{u*1024} {nt}")
        a(f"""
        s_cmp_lt_u32 s{S_T0}, 2
        s_cbranch_scc1 L_sclr
        """)
        for l in loads[:o.depth]: a(l)
        self.srd(SRD_WS, S_WS, WS_SIZE)
        a("s_barrier\ns_branch L_sgo")
        a.label("L_sclr")
        self.srd(SRD_WS, S_WS, WS_SIZE)
        a(f"""
        v_mov_b32 v8, -1
        v_mov_b32 v9, -1
        v_mov_b32 v10, -1
        v_mov_b32 v11, -1
        s_cmp_lt_u32 s{S_IDX}, 2
        s_cbranch_scc1 L_sclrM
        s_sub_u32 s{S_T0}, s{S_IDX}, 6
        s_lshl_b32 s{S_U}, s{S_HKV}, 3
        s_add_u32 s{S_T0}, s{S_T0}, s{S_U}
        s_lshl_b32 s{S_T0}, s{S_T0}, 3
        s_add_u32 s{S_T0}, s{S_T0}, s{S_W}
        s_lshl_b32 s{S_U}, s{S_T0}, 10
        s_add_u32 s{S_U}, s{S_U}, {WS_OP}
        s_lshl_b32 s{S_U+1}, s{S_T0}, 4
        s_add_u32 s{S_U+1}, s{S_U+1}, {WS_ST}
        s_mov_b64 vcc, 1
        s_branch L_sclr2
        L_sclrM:
        s_lshl_b32 s{S_T0}, s2, 3
        s_add_u32 s{S_T0}, s{S_T0}, s{S_W}
        s_lshl_b32 s{S_U}, s{S_T0}, 11
        s_add_u32 s{S_U}, s{S_U}, {WS_AP}
        s_add_u32 s{S_U+1}, s{S_U}, 1024
        s_mov_b64 vcc, -1
        L_sclr2:
        buffer_store_dwordx4 v[8:11], v7, {sp(SRD_WS,4)}, s{S_U} offen sc1
        s_mov_b64 exec, vcc
        buffer_store_dwordx4 v[8:11], v7, {sp(SRD_WS,4)}, s{S_U+1} offen sc1
        s_mov_b64 exec, 1
        v_mov_b32 v12, {L_CNT+4}
        v_mov_b32 v13, 1
        s_barrier
        s_waitcnt vmcnt(0)
        ds_add_u32 v12, v13
        s_mov_b64 exec, -1
        """)
        for l in loads[:o.depth]: a(l)
        a.label("L_sgo")
        a(f"""
        v_cmp_eq_u32 {sp(S_M)}, 1, v3
        v_cmp_eq_u32 {sp(S_M+2)}, 2, v3
        v_cmp_eq_u32 {sp(S_M+4)}, 3, v3
        v_lshlrev_b32 v7, 5, v1                 ; h*32
        """)
        self.aff(164, 0, [(2,2,32)], [(S_W,4)], vt=2)
        self.aff(165, L_OL, [(0,6,4)], [(S_W,OLS)], vt=2)
        self.aff(166, L_OL, [(0,2,2*OLS),(2,4,16)], [(S_W,256)], vt=2)
        self.aff(167, WS_OP, [(4,2,16384),(2,2,64)], [(S_HKV,65536),(S_CH,2048),(S_W,256),(S_B,16)], vt=2)
        a(f"v_mov_b32 v163, 0")

        def c_mfma():
            a = self.a
            a(f"""
            s_waitcnt lgkmcnt(0)
            v_readfirstlane_b32 s{S_LOC}, v162
            """)
            for t in range(4):
                for u in range(4):
                    a(f"v_mfma_f32_16x16x32_bf16 {q(dreg(t,u))}, {q(kreg(t,u))}, v[0:3], 0")
            self.flavor_masks(S_M+6, "0x11111111", "0x11111111")
        qp = {1: "[1,0,3,2]", 2: "[2,3,0,1]", 3: "[3,2,1,0]"}
        def c_sel(t):
            a = self.a
            for rho in range(4):
                w = 24 + t if rho == 0 else 27 + rho
                c = [dreg(t, x ^ rho) + x for x in range(4)]
                a(f"""
                v_cndmask_b32 v{w}, v{c[0]}, v{c[1]}, {sp(S_M)}
                v_cndmask_b32 v{w}, v{w}, v{c[2]}, {sp(S_M+2)}
                v_cndmask_b32 v{w}, v{w}, v{c[3]}, {sp(S_M+4)}
                """)
            for rho in range(1, 4):
                a(f"v_add_f32_dpp v{24+t}, v{27+rho}, v{24+t} quad_perm:{qp[rho]} row_mask:0xf bank_mask:0xf")
        def c_max():
            a = self.a
            self.round2(24, 25, 28); self.round2(26, 27, 29)
            a(f"s_mov_b32 s{S_T0}, {SCALE}")
            for t in range(4): a(f"v_mul_f32 v{24+t}, s{S_T0}, v{24+t}")
            self.round2(24, 25, 28); self.round2(26, 27, 29)
            a(f"""
            v_max3_f32 v28, v24, v25, v26
            v_max_f32 v28, v28, v27
            v_max_f32_dpp v28, v28, v28 quad_perm:[1,0,3,2] row_mask:0xf bank_mask:0xf
            v_max_f32_dpp v28, v28, v28 quad_perm:[2,3,0,1] row_mask:0xf bank_mask:0xf
            """)
            self.rows_allreduce("v_max_f32", 28, 29)
            a(f"ds_write_b32 v164, v28 offset:{L_MX}")
        NQ = o.nq
        chunks = [lambda: (c_mfma(), c_sel(0)), lambda: (c_sel(1), c_sel(2)), lambda: (c_sel(3), c_max())]
        n = o.depth
        while n < 32:
            if n == NQ: self.b2()
            if n < 32 - o.tailfree: a(f"s_waitcnt vmcnt({o.depth-1})")
            a(loads[n]); n += 1
            if n > NQ and chunks: chunks.pop(0)()
        if NQ >= 32: self.b2()
        self.stamp(2)
        for c in chunks: c()
        a(f"s_waitcnt vmcnt(8)")
        self.transpose(96, 32)
        a(f"""
        s_waitcnt lgkmcnt(0)
        s_barrier
        ds_read_b128 v[8:11], v7 offset:{L_MX}
        ds_read_b128 v[12:15], v7 offset:{L_MX+16}
        """)
        self.stamp(3)
        a(f"s_waitcnt vmcnt(4)")
        self.transpose_pair(128, 64, 0, 4)
        self.transpose_pair(128, 64, 1, 4)
        a(f"""
        s_mov_b32 s{S_T0}, {LOG2E}
        s_waitcnt lgkmcnt(0)
        v_max3_f32 v8, v8, v9, v10
        v_max3_f32 v12, v11, v12, v13
        v_max3_f32 v8, v8, v14, v15
        v_max_f32 v8, v8, v12
        v_mul_f32 v8, s{S_T0}, v8
        """)
        for t in range(4): a(f"v_fma_f32 v{24+t}, v{24+t}, s{S_T0}, -v8")
        for t in range(4): a(f"v_exp_f32 v{24+t}, v{24+t}")
        for t in range(4):
            a(f"v_mov_b32_dpp v{28+t}, v{24+t} quad_perm:[1,1,3,3] row_mask:0xf bank_mask:0xf")
        for t in range(4):
            a(f"v_cvt_pk_bf16_f32 v{8+2*t}, v{24+t}, v{28+t}")
        for t in range(4):
            a(f"v_mov_b32_dpp v{9+2*t}, v{8+2*t} quad_perm:[2,2,2,2] row_mask:0xf bank_mask:0xf")
        for c in range(8):
            a(f"v_mfma_f32_16x16x32_bf16 {q(96+4*c)}, v[8:11], {q(32+4*c)}, 0")
        a(f"""
        v_add_f32 v24, v24, v25
        v_add_f32 v26, v26, v27
        v_add_f32 v24, v24, v26
        v_add_f32_dpp v24, v24, v24 quad_perm:[1,0,3,2] row_mask:0xf bank_mask:0xf
        v_add_f32_dpp v24, v24, v24 quad_perm:[2,3,0,1] row_mask:0xf bank_mask:0xf
        """)
        self.rows_allreduce("v_add_f32", 24, 25)
        a(f"ds_write_b32 v164, v24 offset:{L_LS}")
        a(f"s_waitcnt vmcnt(2)")
        self.transpose_pair(128, 64, 2, 4)
        a(f"s_waitcnt vmcnt(0)")
        self.stamp(4)
        self.transpose_pair(128, 64, 3, 4)
        for c in range(8):
            a(f"v_mfma_f32_16x16x32_bf16 {q(96+4*c)}, v[12:15], {q(64+4*c)}, {q(96+4*c)}")
        for c in range(8):
            a(f"ds_write_b32 v165, v{96+4*c} offset:{c*256}")
        a(f"""
        s_waitcnt lgkmcnt(0)
        s_barrier
        ds_read_b128 v[8:11], v166
        ds_read_b128 v[12:15], v166 offset:{OLS}
        s_waitcnt lgkmcnt(0)
        """)
        self.quad_reduce(8, 12)
        self.flavor_store(S_M+6, f"buffer_store_dwordx4 v[8:11], v167, {sp(SRD_WS,4)}, 0 offen")
        self.stamp(5)
        self.flush_stamps(6, 1, 4)
        a("s_endpgm")

    def b2(self):
        self.stamp(1)
        self.a(f"""
        s_barrier
        ds_read_b128 v[0:3], v6 offset:{L_QF}
        ds_read_b32 v162, v163 offset:{L_FLAG}
        """)

    def quad_reduce(self, r, r2):
        a = self.a
        for i in range(4): a(f"v_add_f32 v{r+i}, v{r+i}, v{r2+i}")
        for m in ("[1,0,3,2]", "[2,3,0,1]"):
            for i in range(4):
                a(f"v_add_f32_dpp v{r+i}, v{r+i}, v{r+i} quad_perm:{m} row_mask:0xf bank_mask:0xf")
        for i in range(4): a(f"v_min_u32 v{r+i}, -2, v{r+i}")

    def tile_loads(self, va, srd, offs, dst, pol):
        a = self.a
        cur = None
        for i, off in enumerate(offs):
            hi, lo = off & ~4095, off & 4095
            if hi == 0: so = "0"
            else:
                if cur != hi: a(f"s_mov_b32 s{S_T0}, {hi}"); cur = hi
                so = f"s{S_T0}"
            a(f"buffer_load_dwordx4 {q(dst+4*i)}, v{va}, {sp(srd,4)}, {so} offen offset:{lo} {pol}")

    def gemv_mfma(self, nkb, va, vd, A, B0, B1, Dq):
        a = self.a
        a(f"""
        ds_read_b128 {q(A)}, v{va}
        ds_read_b128 {q(A+4)}, v{va} offset:{64*nkb}
        s_waitcnt lgkmcnt(1)
        """)
        for c in range(8):
            a(f"v_mfma_f32_16x16x32_bf16 {q(Dq[c])}, {q(A)}, {q(B0+4*c)}, 0")
        a("s_waitcnt lgkmcnt(0)")
        for c in range(8):
            a(f"v_mfma_f32_16x16x32_bf16 {q(Dq[c])}, {q(A+4)}, {q(B1+4*c)}, {q(Dq[c])}")
        a(f"s_mov_b64 exec, {sp(S_M+12)}")
        cs = 128 if nkb == 2 else 64
        for c in range(8):
            a(f"ds_write_b128 v{vd}, {q(Dq[c])} offset:{c*cs}")
        a("s_mov_b64 exec, -1")

    def gemv_reduce(self, vr, R):
        a = self.a
        a(f"""
        ds_read_b128 {q(R)}, v{vr}
        ds_read_b128 {q(R+4)}, v{vr} offset:{PS}
        s_waitcnt lgkmcnt(0)
        v_pk_add_f32 {q(R,2)}, {q(R,2)}, {q(R+4,2)}
        v_pk_add_f32 {q(R+2,2)}, {q(R+2,2)}, {q(R+6,2)}
        """)
        self.scatter4(R)

    def pack4(self, R):
        self.a(f"""
        v_mov_b32_dpp v{R+1}, v{R} quad_perm:[1,1,3,3] row_mask:0xf bank_mask:0xf
        v_mov_b32 v{R+3}, s{S_TAG}
        v_cvt_pk_bf16_f32 v{R}, v{R}, v{R+1}
        v_mov_b32 v{R+1}, s{S_TAG}
        v_mov_b32_dpp v{R+2}, v{R} quad_perm:[2,2,2,2] row_mask:0xf bank_mask:0xf
        """)

    def round8(self, X, T):
        for i in range(4): self.a(f"v_cvt_pk_bf16_f32 v{T+i}, v{X+2*i}, v{X+2*i+1}")
        for i in range(4): self.unpack(T+i, X+2*i, X+2*i+1)

    def layernorm(self, X, T):
        a = self.a
        bc = "op_sel_hi:[1,0]"; ng = "neg_lo:[0,1] neg_hi:[0,1]"
        a(f"v_readfirstlane_b32 s{S_U}, v{X}")
        for i in range(4): a(f"v_pk_add_f32 {q(T+2*i,2)}, {q(X+2*i,2)}, {sp(S_U)} {bc} {ng}")
        a(f"""
        v_pk_add_f32 {q(T+8,2)}, {q(T,2)}, {q(T+2,2)}
        v_pk_mul_f32 {q(T+10,2)}, {q(T,2)}, {q(T,2)}
        v_pk_fma_f32 {q(T+10,2)}, {q(T+2,2)}, {q(T+2,2)}, {q(T+10,2)}
        v_pk_add_f32 {q(T,2)}, {q(T+4,2)}, {q(T+6,2)}
        v_pk_fma_f32 {q(T+10,2)}, {q(T+4,2)}, {q(T+4,2)}, {q(T+10,2)}
        v_pk_add_f32 {q(T+8,2)}, {q(T+8,2)}, {q(T,2)}
        v_pk_fma_f32 {q(T+10,2)}, {q(T+6,2)}, {q(T+6,2)}, {q(T+10,2)}
        v_add_f32 v{T+8}, v{T+8}, v{T+9}
        v_add_f32 v{T+10}, v{T+10}, v{T+11}
        v_permlane32_swap_b32 v{T+8}, v{T+10}
        v_add_f32 v{T+8}, v{T+8}, v{T+10}
        v_add_f32_dpp v{T+8}, v{T+8}, v{T+8} quad_perm:[1,0,3,2] row_mask:0xf bank_mask:0xf
        v_add_f32_dpp v{T+8}, v{T+8}, v{T+8} quad_perm:[2,3,0,1] row_mask:0xf bank_mask:0xf
        v_add_f32_dpp v{T+8}, v{T+8}, v{T+8} row_half_mirror row_mask:0xf bank_mask:0xf
        v_add_f32_dpp v{T+8}, v{T+8}, v{T+8} row_mirror row_mask:0xf bank_mask:0xf
        v_readlane_b32 s{S_T0}, v{T+8}, 0
        v_readlane_b32 s{S_T1}, v{T+8}, 16
        v_readlane_b32 s{S_T2}, v{T+8}, 32
        v_readlane_b32 s{S_T3}, v{T+8}, 48
        v_mov_b32 v{T+10}, 0x3b000000
        v_mul_f32 v{T+8}, s{S_T0}, v{T+10}
        v_mul_f32 v{T+9}, s{S_T2}, v{T+10}
        v_fmac_f32 v{T+8}, s{S_T1}, v{T+10}          ; E[d]
        v_fmac_f32 v{T+9}, s{S_T3}, v{T+10}          ; E[d^2]
        v_fma_f32 v{T+9}, -v{T+8}, v{T+8}, v{T+9}    ; var
        v_add_f32 v{T+8}, s{S_U}, v{T+8}             ; mean
        v_max_f32 v{T+9}, 0, v{T+9}
        v_cvt_pk_bf16_f32 v{T+10}, v{T+8}, v{T+9}
        v_lshlrev_b32 v{T+8}, 16, v{T+10}
        v_and_b32 v{T+10}, s{S_HI}, v{T+10}
        v_add_f32 v{T+10}, 0x3727c5ac, v{T+10}
        v_cvt_pk_bf16_f32 v{T+10}, v{T+10}, v{T+10}
        v_and_b32 v{T+10}, s{S_HI}, v{T+10}
        v_sqrt_f32 v{T+10}, v{T+10}
        """)
        for i in range(4): a(f"v_pk_add_f32 {q(X+2*i,2)}, {q(X+2*i,2)}, {q(T+8,2)} {bc} {ng}")
        a(f"""
        v_cvt_pk_bf16_f32 v{T+10}, v{T+10}, v{T+10}
        v_and_b32 v{T+10}, s{S_HI}, v{T+10}
        v_rcp_f32 v{T+10}, v{T+10}
        """)
        self.round8(X, T)
        for i in range(4): a(f"v_pk_mul_f32 {q(X+2*i,2)}, {q(X+2*i,2)}, {q(T+10,2)} {bc}")
        self.round8(X, T)

    def modulate(self, X, C1, SH, T, out):
        a = self.a
        for i in range(4): a(f"v_pk_mul_f32 {q(X+2*i,2)}, {q(X+2*i,2)}, {q(C1+2*i,2)}")
        self.round8(X, T)
        for i in range(4): a(f"v_pk_add_f32 {q(X+2*i,2)}, {q(X+2*i,2)}, {q(SH+2*i,2)}")
        for i in range(4): a(f"v_cvt_pk_bf16_f32 v{out+i}, v{X+2*i}, v{X+2*i+1}")

    def mod_poll(self, shift_col, R, C1, SH, T):
        a = self.a
        self.aff(4, WS_MOD + shift_col*4, [(0,6,16)], [(S_WAVE,12288)])
        loads = [f"buffer_load_dwordx4 {q(R+4*i)}, v4, {sp(SRD_WS,4)}, 0 offen offset:{1024*i} sc1" for i in range(4)]
        self.poll_tagged(loads, [R+1+2*i for i in range(8)])
        for i in range(4):
            self.unpack(R+2*i, SH+2*i, SH+2*i+1)
            self.unpack(R+8+2*i, C1+2*i, C1+2*i+1)
        for i in range(8): a(f"v_add_f32 v{C1+i}, 1.0, v{C1+i}")
        self.round8(C1, T)

    def gettag(self):
        self.a(f"""
        s_waitcnt lgkmcnt(0)
        s_add_u32 s{S_TAG}, s{S_EPOCH}, 0x9E3779B9
        """)

    def xt_publish(self):
        a = self.a
        L = a.newlabel("Lxt")
        a(f"""
        s_cmp_lg_u32 s{S_WAVE}, 1
        s_cbranch_scc1 {L}
        """)
        self.aff(1, WS_XT, [], [(S_HKV,256),(S_IDX,8)])
        a(f"""
        v_mov_b32 v2, s{S_LOC}
        v_mov_b32 v3, s{S_TAG}
        s_mov_b64 exec, 1
        buffer_store_dwordx2 v[2:3], v1, {sp(SRD_WS,4)}, 0 offen sc1
        s_mov_b64 exec, -1
        {L}:
        """)

    def aux(self):
        a = self.a; o = self.o
        ror8 = "row_ror:8 row_mask:0xf bank_mask:0xf"
        ror4 = "row_ror:4 row_mask:0xf bank_mask:0xf"
        WS = sp(SRD_WS, 4)
        a.label("L_aux")
        a(f"""
        v_mov_b32 v1, 0
        v_lshlrev_b32 v2, 2, v0
        v_mov_b32 v7, 0
        v_mov_b32 v150, 0
        s_cmp_lg_u32 s{S_WAVE}, 0
        s_cbranch_scc1 L_noinit
        ds_write_b32 v2, v1
        L_noinit:
        s_getreg_b32 s{S_LOC}, hwreg(HW_REG_XCC_ID, 0, 4)
        s_lshl_b32 s{S_CQ}, s{S_IDX}, 2
        s_add_u32 s{S_CQ}, s{S_CQ}, s{S_WAVE}
        s_waitcnt lgkmcnt(0)
        s_load_dword s{S_EPOCH}, {sp(S_WS)}, {WS_EPOCH}
        """)
        self.srd(SRD_WS, S_WS, WS_SIZE)
        a(f"""
        s_cmp_lt_u32 s{S_IDX}, 6
        s_cbranch_scc1 L_M
        s_cmp_lt_u32 s{S_IDX}, 14
        s_cbranch_scc1 L_Q
        s_sub_u32 s3, s{S_IDX}, 21
        s_cmp_ge_u32 s3, 8
        s_cbranch_scc1 L_plain
        """)
        self.srd(SRD_A, S_WO, 4096*1024)
        a(f"""
        s_and_b32 s{S_T1}, s3, 3
        s_lshr_b32 s{S_T2}, s3, 2
        """)
        self.aff(2, 0, [(4,1,65536),(5,1,1024),(0,4,16)], [(S_HKV,4*131072),(S_T1,131072),(S_T2,512),(S_WAVE,2048)])
        self.tile_loads(2, SRD_A, [s*256 + j*8192 for s in range(2) for j in range(8)], 32, o.wpol)
        a.label("L_plain")
        a("s_barrier")
        self.gettag()
        self.xt_publish()
        a("s_branch L_front_done")

        a.label("L_M")
        self.srd(SRD_A, S_C, 4096)
        a(f"""
        s_lshl_b32 s{S_T0}, s{S_WAVE}, 10
        v_lshlrev_b32 v1, 4, v0
        buffer_load_dwordx4 v[8:11], v1, {sp(SRD_A,4)}, s{S_T0} offen
        """)
        self.srd(SRD_B, S_WM, 512*6144)
        self.aff(2, 0, [(3,3,8*6144),(0,3,16)], [(2,128),(S_WAVE,128*6144)])
        self.tile_loads(2, SRD_B, [(s*64+j)*6144 for s in range(2) for j in range(8)], 32, o.wpol)
        a("s_barrier")
        a("s_waitcnt vmcnt(16)")
        for i in range(4): self.unpack(8+i, 16+2*i, 17+2*i)
        a(f"s_mov_b32 s{S_T0}, {LOG2E ^ 0x80000000}")
        for i in range(8): a(f"v_mul_f32 v{24+i}, s{S_T0}, v{16+i}")
        for i in range(8): a(f"v_exp_f32 v{24+i}, v{24+i}")
        for i in range(8): a(f"v_add_f32 v{24+i}, 1.0, v{24+i}")
        for i in range(8): a(f"v_rcp_f32 v{24+i}, v{24+i}")
        for i in range(8): a(f"v_mul_f32 v{16+i}, v{16+i}, v{24+i}")
        for i in range(4): a(f"v_cvt_pk_bf16_f32 v{8+i}, v{16+2*i}, v{17+2*i}")
        self.aff(2, L_AV, [(0,6,16)], [(S_WAVE,AVS)])
        a(f"ds_write_b128 v2, v[8:11]")
        self.gettag()
        self.xt_publish()
        self.aff(7, WS_MOD, [(4,2,12288),(0,4,4)], [(2,256),(S_WAVE,64)])
        a(f"""
        s_cmp_lt_u32 s{S_IDX}, 2
        s_cselect_b32 s{S_TGT}, 12, 4
        s_branch L_MQ
        """)

        a.label("L_Q")
        self.srd(SRD_A, S_X, 4096)
        a(f"""
        s_lshl_b32 s{S_T0}, s{S_WAVE}, 10
        v_lshlrev_b32 v1, 3, v0
        buffer_load_dwordx2 v[8:9], v1, {sp(SRD_A,4)}, s{S_T0} offen
        buffer_load_dwordx2 v[10:11], v1, {sp(SRD_A,4)}, s{S_T0} offen offset:512
        s_lshl_b32 s3, s{S_HKV}, 3
        s_add_u32 s3, s3, s{S_IDX}
        s_sub_u32 s3, s3, 6
        """)
        self.srd(SRD_B, S_WQ, 512*8192)
        self.aff(2, 0, [(3,3,8*8192),(0,3,16)], [(3,128),(S_WAVE,128*8192)])
        self.tile_loads(2, SRD_B, [(s*64+j)*8192 for s in range(2) for j in range(8)], 32, o.wpol)
        a("s_barrier")
        self.gettag()
        self.xt_publish()
        a("s_waitcnt vmcnt(16)")
        for i in range(4): self.unpack(8+i, 128+2*i, 129+2*i)
        self.layernorm(128, 136)
        self.aff(7, WS_QG, [(4,2,16384),(0,4,4)], [(3,256),(S_WAVE,64)])
        self.aff(5, L_AV, [(0,6,8)], [(S_WAVE,AVS)])
        a(f"s_mov_b32 s{S_TGT}, 12")
        a("s_waitcnt vmcnt(0)")
        self.transpose(32, 96)
        self.transpose(64, 32)
        self.mod_poll(0, 8, 136, 144, 24)
        self.modulate(128, 136, 144, 24, 28)
        a(f"""
        ds_write_b64 v5, v[28:29]
        ds_write_b64 v5, v[30:31] offset:512
        """)
        a.label("L_MQ")
        self.aff(4, L_AV, [(0,2,AVS),(2,1,16),(4,2,32)], [(S_WAVE,256)])
        self.aff(5, L_PART, [(3,1,PS),(0,3,16)], [(S_WAVE,2*PS)])
        self.aff(6, L_PART, [(4,2,2*PS),(0,3,128),(3,1,16)], [(S_WAVE,32)])
        a(f"""
        s_mov_b32 s{S_M+12}, 0xff0000ff
        s_mov_b32 s{S_M+13}, 0
        """)
        self.lds_sync(L_CNT, 4, 1, 2)
        self.stamp(1)
        a(f"""
        s_cmp_ge_u32 s{S_IDX}, 6
        s_cbranch_scc1 L_MQ2
        s_waitcnt vmcnt(0)
        """)
        self.transpose(32, 96)
        self.transpose(64, 32)
        a.label("L_MQ2")
        self.gemv_mfma(2, 4, 5, 8, 96, 32, [64+4*c for c in range(8)])
        self.lds_sync(L_CNT+4, f"s{S_TGT}", 1, 2)
        self.gemv_reduce(6, 8)
        self.pack4(8)
        a(f"""
        s_mov_b32 exec_lo, 0x11111111
        s_mov_b32 exec_hi, 0x11111111
        buffer_store_dwordx4 v[8:11], v7, {WS}, 0 offen sc1
        s_mov_b64 exec, -1
        """)
        self.stamp(2)

        a.label("L_front_done")
        a(f"""
        s_lshr_b32 s{S_T0}, s{S_CQ}, 5
        s_and_b32 s{S_T1}, s{S_CQ}, 1
        s_bfe_u32 s{S_T2}, s{S_CQ}, 0x40001
        """)
        self.aff(163, 0, [(2,4,8192),(0,2,16)], [(S_T0,2048),(S_T1,1024),(S_T2,64)])
        self.aff(164, WS_X1, [(4,2,2048)], [(S_HKV,8192),(S_CQ,16)])
        self.aff(165, 0, [(4,2,1024)], [(S_CQ,8)])
        a(f"""
        s_and_b32 s{S_T0}, s{S_CQ}, 7
        s_cmp_lg_u32 s{S_T0}, s{S_HKV}
        s_cbranch_scc1 L_noclr
        v_mov_b32 v8, -1
        v_mov_b32 v9, -1
        v_mov_b32 v10, -1
        v_mov_b32 v11, -1
        """)
        for t in range(4):
            a(f"s_mov_b32 s{S_T0}, {WS_DP + t*16*8192}")
            if t == 3: a("s_mov_b32 exec_hi, 0")
            a(f"buffer_store_dwordx4 v[8:11], v163, {WS}, s{S_T0} offen sc1")
        a(f"""
        s_mov_b64 exec, -1
        s_waitcnt vmcnt(0)
        L_noclr:
        s_cmp_lg_u32 s{S_WAVE}, 0
        s_cbranch_scc1 L_qdone
        """)
        self.aff(4, WS_QG, [(0,6,16)], [(S_B,16384),(S_HKV,2048)])
        self.aff(5, WS_XT, [(0,5,8)], [(S_HKV,256)])
        self.poll_tagged([f"buffer_load_dwordx4 v[8:11], v4, {WS}, 0 offen sc1",
                          f"buffer_load_dwordx4 v[12:15], v4, {WS}, 0 offen offset:1024 sc1",
                          f"buffer_load_dwordx2 v[16:17], v5, {WS}, 0 offen sc1"], [9, 11, 13, 15, 17])
        a(f"""
        v_mov_b32 v9, v10
        v_mov_b32 v13, v14
        v_lshlrev_b32 v1, 3, v0
        ds_write_b64 v1, v[8:9] offset:{L_QF}
        ds_write_b64 v1, v[12:13] offset:{L_QF+512}
        v_cmp_ne_u32 vcc, s{S_LOC}, v16
        s_cmp_eq_u64 vcc, 0
        s_cselect_b32 s{S_T0}, {1 if o.local else 0}, 0
        v_mov_b32 v2, s{S_T0}
        v_mov_b32 v1, 0
        ds_write_b32 v1, v2 offset:{L_FLAG}
        s_waitcnt lgkmcnt(0)
        L_qdone:
        """)
        self.stamp(3)
        a(f"""
        s_barrier
        v_mov_b32 v1, 0
        ds_read_b32 v2, v1 offset:{L_FLAG}
        """)
        self.srd(SRD_A, S_X, 4096)
        self.aff(3, 0, [(4,2,1024),(0,2,2)], [(S_CQ,8)])
        a(f"buffer_load_ushort v160, v3, {sp(SRD_A,4)}, 0 offen")
        self.aff(4, WS_MOD + 1024*4, [(4,2,12288),(1,1,8)], [(S_CQ,16)])
        a(f"""
        v_add_u32 v5, {1536*4}, v4
        s_waitcnt lgkmcnt(0)
        v_readfirstlane_b32 s{S_LOC}, v2
        """)
        self.poll_tagged([f"buffer_load_dwordx2 v[8:9], v4, {WS}, 0 offen sc1",
                          f"buffer_load_dwordx2 v[10:11], v5, {WS}, 0 offen sc1"], [9, 11])
        a(f"""
        v_lshlrev_b32 v160, 16, v160                ; x
        v_and_b32 v2, 1, v0
        v_cmp_eq_u32 vcc, 1, v2
        v_lshlrev_b32 v12, 16, v8
        v_and_b32 v13, s{S_HI}, v8
        v_cndmask_b32 v161, v12, v13, vcc           ; ga
        v_lshlrev_b32 v12, 16, v10
        v_and_b32 v13, s{S_HI}, v10
        v_cndmask_b32 v162, v12, v13, vcc           ; gb
        """)
        a(f"""
        s_lshr_b32 s{S_T0}, s{S_CH}, 1
        s_and_b32 s{S_T1}, s{S_CH}, 1
        """)
        self.aff(166, WS_ST, [(0,2,256)], [(S_HKV,1024),(S_T0,64),(S_B,16),(S_T1,8)])
        self.aff(167, 0, [(0,2,32)], [])
        a(f"""
        s_sub_u32 s{S_T0}, s{S_IDX}, 14
        s_cmp_lt_u32 s{S_T0}, 7
        s_cbranch_scc1 L_Fpre
        s_sub_u32 s{S_T0}, s{S_IDX}, 21
        s_cmp_lt_u32 s{S_T0}, 8
        s_cbranch_scc1 L_Wpre
        s_barrier
        s_branch L_b4
        """)
        a.label("L_Wpre")
        self.transpose(32, 96)
        self.transpose(64, 32)
        a(f"""
        s_and_b32 s{S_T1}, s3, 3
        s_lshr_b32 s{S_T2}, s3, 2
        """)
        self.aff(4, WS_OP, [(2,2,4096),(4,2,128),(0,2,16)], [(S_HKV,65536),(S_T1,16384),(S_WAVE,512)])
        self.aff(5, WS_ST, [(0,4,16)], [(S_HKV,1024),(S_T1,256)])
        self.aff(6, L_PW, [(0,6,16)], [(S_WAVE,4096)])
        self.aff(7, L_PW, [(0,6,16)], [(S_WAVE,1024)])
        self.aff(3, WS_AP, [(0,4,64),(4,2,16)], [(S_HKV,4*8192),(S_T1,8192),(S_T2,4096),(S_WAVE,1024)])
        for i in range(16): a(f"v_mov_b32 v{144+i}, 0")
        a("s_barrier\ns_branch L_b4")
        a.label("L_Fpre")
        self.mod_poll(1536, 8, 128, 136, 24)
        a(f"""
        s_mul_i32 s3, s{S_HKV}, 7
        s_add_u32 s3, s3, s{S_IDX}
        s_sub_u32 s3, s3, 14                        ; f
        s_and_b32 s{S_T2}, s{S_WAVE}, 1
        s_lshr_b32 s{S_T3}, s{S_WAVE}, 1
        s_cmp_eq_u32 s{S_T2}, 0
        s_cselect_b32 s{SRD_A}, s{S_WG}, s{S_WU}
        s_cselect_b32 s{SRD_A+1}, s{S_WG+1}, s{S_WU+1}
        s_mov_b32 s{SRD_A+2}, {512*3584}
        s_mov_b32 s{SRD_A+3}, 0x20000
        """)
        self.srd(SRD_B, S_WD, 1792*1024)
        self.aff(2, 0, [(2,4,8*3584),(0,2,16)], [(S_T3,256*3584),(3,64)])
        self.aff(3, 0, [(4,2,8192),(0,4,16)], [(3,32768),(S_WAVE,256)])
        self.aff(4, L_AV, [(0,2,AVS),(2,2,16),(4,2,64)], [(S_T3,512)])
        self.aff(5, L_PART, [(2,2,PS),(0,2,16)], [(S_T3,4*PS),(S_T2,512)])
        self.aff(6, L_PART, [(4,2,2*PS),(0,4,64)], [(S_WAVE,16)])
        self.aff(7, WS_X1, [(0,6,16)], [(S_HKV,8192),(S_WAVE,2048)])
        self.aff(144, L_AV, [(0,6,8)], [(S_WAVE,AVS)])
        self.aff(145, L_ACT, [(4,2,64),(0,3,2)], [(S_WAVE,16)])
        self.aff(151, L_ACT, [(0,2,64),(4,2,16)], [])
        a(f"""
        v_mov_b32 v150, {L_ZERO}
        v_bfe_u32 v8, v0, 2, 2
        """)
        for x in range(4):
            a(f"v_cmp_eq_u32 vcc, {x}, v8\nv_cndmask_b32 v{146+x}, v150, v151, vcc")
        self.aff(150, WS_DP, [(0,4,64),(4,2,16)], [(3,8192),(S_WAVE,2048)])
        a(f"""
        s_mov_b32 s{S_M+12}, 0x00f0000f
        s_mov_b32 s{S_M+13}, 0xf0000f00
        """)
        def floads():
            self.tile_loads(2, SRD_A, [(s*128+j)*3584 for s in range(2) for j in range(8)], 32, o.wpol)
            self.tile_loads(3, SRD_B, [j*1024 for j in range(8)], 96, o.wpol)
        if o.fearly: floads()
        a("s_barrier")
        if not o.fearly: floads()
        a.label("L_b4")
        self.flavor_masks(S_M+8, "15", "0")
        a("s_barrier")
        self.stamp(4)
        a(f"""
        s_cmp_lg_u32 s{S_WAVE}, 3
        s_cbranch_scc1 L_nost
        ds_read_b128 v[8:11], v167 offset:{L_MX}
        ds_read_b128 v[12:15], v167 offset:{L_MX+16}
        ds_read_b128 v[16:19], v167 offset:{L_LS}
        ds_read_b128 v[20:23], v167 offset:{L_LS+16}
        s_mov_b32 s{S_T0}, {LOG2E}
        s_waitcnt lgkmcnt(0)
        v_add_f32 v16, v16, v17
        v_add_f32 v18, v18, v19
        v_add_f32 v20, v20, v21
        v_add_f32 v22, v22, v23
        v_max3_f32 v8, v8, v9, v10
        v_max3_f32 v12, v11, v12, v13
        v_add_f32 v16, v16, v18
        v_add_f32 v20, v20, v22
        v_max3_f32 v8, v8, v14, v15
        v_add_f32 v9, v16, v20
        v_max_f32 v8, v8, v12
        v_min_u32 v9, -2, v9
        v_mul_f32 v8, s{S_T0}, v8
        v_min_u32 v8, -2, v8
        """)
        self.flavor_store(S_M+8, f"buffer_store_dwordx2 v[8:9], v166, {WS}, 0 offen")
        a(f"""
        L_nost:
        s_sub_u32 s{S_T0}, s{S_IDX}, 14
        s_cmp_lt_u32 s{S_T0}, 7
        s_cbranch_scc1 L_Ftr
        s_sub_u32 s{S_T0}, s{S_IDX}, 21
        s_cmp_ge_u32 s{S_T0}, 8
        s_cbranch_scc1 L_R
        """)
        groups = [([f"buffer_load_dwordx4 {q(128+8*e+4*z)}, v4, {WS}, 0 offen offset:{e*2048+z*64} sc1" for z in range(2)],
                   range(128+8*e, 136+8*e), "-1") for e in range(2)]
        groups.append(([f"buffer_load_dwordx4 v[8:11], v5, {WS}, 0 offen sc1"], range(8, 12), "-1"))
        self.poll_sent(groups, 16)
        self.stamp(5)
        bc = "op_sel_hi:[1,0]"
        a(f"""
        v_max_f32 v16, v8, v10
        v_max_f32_dpp v16, v16, v16 {ror8}
        v_max_f32_dpp v16, v16, v16 {ror4}
        v_sub_f32 v8, v8, v16
        v_sub_f32 v10, v10, v16
        v_exp_f32 v8, v8
        v_exp_f32 v10, v10
        v_mul_f32 v16, v8, v9
        v_fmac_f32 v16, v10, v11
        """)
        for i in range(4): a(f"v_pk_mul_f32 {q(128+2*i,2)}, {q(128+2*i,2)}, v[8:9] {bc}")
        a(f"v_add_f32_dpp v16, v16, v16 {ror8}")
        for i in range(4): a(f"v_pk_fma_f32 {q(128+2*i,2)}, {q(136+2*i,2)}, v[10:11], {q(128+2*i,2)} op_sel_hi:[1,0,1]")
        a(f"v_add_f32_dpp v16, v16, v16 {ror4}")
        for i in range(8): a(f"v_add_f32_dpp v{128+i}, v{128+i}, v{128+i} {ror8}")
        a(f"v_rcp_f32 v16, v16")
        for i in range(8): a(f"v_add_f32_dpp v{128+i}, v{128+i}, v{128+i} {ror4}")
        for i in range(4): a(f"v_pk_mul_f32 {q(128+2*i,2)}, {q(128+2*i,2)}, v[16:17] {bc}")
        for x in range(4):
            m = 0x000f000f << (4*x)
            a(f"s_mov_b32 exec_lo, {m}\ns_mov_b32 exec_hi, {m}")
            for i in range(4): a(f"v_cvt_pk_bf16_f32 v{144+4*x+i}, v{128+2*i}, v{129+2*i}")
        a("s_mov_b64 exec, -1")
        for x in range(4):
            for s, Bb in enumerate((96, 32)):
                for hf in range(2):
                    D = 16 + 4*(2*s+hf)
                    a(f"v_mfma_f32_16x16x32_bf16 {q(D)}, {q(144+4*x)}, {q(Bb+4*(4*hf+x))}, {'0' if x == 0 else q(D)}")
        for k in range(4): a(f"ds_write_b128 v6, {q(16+4*k)} offset:{k*1024}")
        a(f"""
        s_waitcnt lgkmcnt(0)
        s_barrier
        """)
        for k in range(4): a(f"ds_read_b128 {q(8+4*k)}, v7 offset:{k*4096}")
        a(f"""
        s_waitcnt lgkmcnt(2)
        v_pk_add_f32 v[8:9], v[8:9], v[12:13]
        v_pk_add_f32 v[10:11], v[10:11], v[14:15]
        s_waitcnt lgkmcnt(0)
        v_pk_add_f32 v[16:17], v[16:17], v[20:21]
        v_pk_add_f32 v[18:19], v[18:19], v[22:23]
        v_pk_add_f32 v[8:9], v[8:9], v[16:17]
        v_pk_add_f32 v[10:11], v[10:11], v[18:19]
        """)
        for i in range(4): a(f"v_min_u32 v{8+i}, -2, v{8+i}")
        a(f"buffer_store_dwordx4 v[8:11], v3, {WS}, 0 offen sc1")
        self.stamp(6)
        a("s_branch L_R")
        a.label("L_Ftr")
        a("s_waitcnt vmcnt(16)")
        self.transpose_inplace(32, 1, 2)
        a("s_waitcnt vmcnt(8)")
        self.transpose_inplace(64, 1, 2)
        a("s_waitcnt vmcnt(0)")
        self.transpose_inplace(96, 1, 2)
        self.stamp(6)
        a.label("L_R")
        a(f"""
        s_mov_b32 s{S_T2}, {WS_AP}
        s_mov_b32 s{S_T3}, {WS_AP + 16*8192}
        """)
        self.flavor_masks(S_M+8, "0x00010001", "0x00010001")
        self.poll_sent([([f"buffer_load_dwordx4 v[8:11], v163, {WS}, s{S_T2} offen sc1"], range(8, 12), "-1"),
                        ([f"buffer_load_dwordx4 v[12:15], v163, {WS}, s{S_T3} offen sc1"], range(12, 16), "-1")], 16)
        self.stamp(7)
        a(f"""
        v_pk_add_f32 v[8:9], v[8:9], v[12:13]
        v_pk_add_f32 v[10:11], v[10:11], v[14:15]
        """)
        self.scatter4(8)
        a(f"""
        v_add_f32_dpp v8, v8, v8 {ror8}
        v_add_f32_dpp v8, v8, v8 {ror4}
        """)
        self.round1(8)
        a("v_mul_f32 v8, v8, v161")
        self.round1(8)
        a("v_add_f32 v8, v8, v160")
        a(f"v_mov_b32 v160, v8")
        self.pack4(8)
        self.flavor_store(S_M+8, f"buffer_store_dwordx4 v[8:11], v164, {WS}, 0 offen")
        self.stamp(8)
        self.round1(160)
        a(f"""
        s_sub_u32 s{S_T0}, s{S_IDX}, 14
        s_cmp_ge_u32 s{S_T0}, 7
        s_cbranch_scc1 L_O
        """)
        self.poll_tagged([f"buffer_load_dwordx4 v[8:11], v7, {WS}, 0 offen sc1",
                          f"buffer_load_dwordx4 v[12:15], v7, {WS}, 0 offen offset:1024 sc1"], [9, 11, 13, 15], sleepy=False)
        self.stamp(9)
        for i in range(4): self.unpack(8+2*i, 152+2*i, 153+2*i)
        self.layernorm(152, 8)
        self.modulate(152, 128, 136, 8, 12)
        a(f"""
        ds_write_b64 v144, v[12:13]
        ds_write_b64 v144, v[14:15] offset:512
        s_waitcnt lgkmcnt(0)
        s_barrier
        """)
        self.gemv_mfma(4, 4, 5, 8, 32, 64, [128, 132, 136, 140, 16, 20, 24, 28])
        a(f"""
        s_waitcnt lgkmcnt(0)
        s_barrier
        """)
        self.gemv_reduce(6, 8)
        self.round1(8)
        a(f"""
        v_mov_b32 v11, 0x3d372713                    ; 0.044715
        v_mul_f32 v10, v8, v8
        v_mov_b32_dpp v9, v8 {ror8}
        v_fma_f32 v10, v10, v11, 1.0
        v_mul_f32 v10, v10, v8                       ; x + 0.044715 x^3
        v_mul_f32 v10, 0xc0135761, v10               ; -2*sqrt(2/pi)*log2e
        v_exp_f32 v10, v10
        v_add_f32 v10, 1.0, v10
        v_rcp_f32 v10, v10
        v_mul_f32 v8, v8, v10                        ; gelu
        """)
        self.round1(8)
        a(f"""
        v_mul_f32 v8, v8, v9
        v_cvt_pk_bf16_f32 v8, v8, v8
        s_mov_b32 exec_lo, 0x00ff00ff
        s_mov_b32 exec_hi, 0x00ff00ff
        ds_write_b16 v145, v8
        s_mov_b64 exec, -1
        s_waitcnt lgkmcnt(0)
        s_barrier
        """)
        for x in range(4): a(f"ds_read_b128 {q(8+4*x)}, v{146+x}")
        for x in range(4):
            a(f"s_waitcnt lgkmcnt({3-x})")
            for hf in range(2):
                c = 4*hf + x
                a(f"v_mfma_f32_16x16x32_bf16 {q(128+4*hf)}, {q(8+4*x)}, {q(96+4*c)}, {'0' if x == 0 else q(128+4*hf)}")
        for i in range(4): a(f"v_min_u32 v{128+i}, -2, v{128+i}")
        a(f"buffer_store_dwordx4 v[128:131], v150, {WS}, 0 offen sc1")
        for i in range(4): a(f"v_min_u32 v{132+i}, -2, v{132+i}")
        a(f"buffer_store_dwordx4 v[132:135], v150, {WS}, 0 offen offset:1024 sc1")
        self.stamp(10)
        a.label("L_O")
        a(f"""
        s_and_b32 s{S_T0}, s{S_CQ}, 7
        s_cmp_lg_u32 s{S_T0}, s{S_HKV}
        s_cbranch_scc1 L_fin2
        s_mov_b32 s{S_T0}, {WS_DP}
        s_mov_b32 s{S_T1}, {WS_DP + 16*8192}
        s_mov_b32 s{S_T2}, {WS_DP + 32*8192}
        s_mov_b32 s{S_T3}, {WS_DP + 48*8192}
        v_mov_b32 v44, 0
        v_mov_b32 v45, 0
        v_mov_b32 v46, 0
        v_mov_b32 v47, 0
        """)
        self.srd(SRD_A, S_OUT, 4096)
        self.poll_sent([([f"buffer_load_dwordx4 {q(32+4*t)}, v163, {WS}, s{S_T0+t} offen sc1"],
                         range(32+4*t, 36+4*t), "-1" if t < 3 else ("-1", "0")) for t in range(4)], 16)
        a(f"""
        v_pk_add_f32 v[32:33], v[32:33], v[36:37]
        v_pk_add_f32 v[34:35], v[34:35], v[38:39]
        v_pk_add_f32 v[40:41], v[40:41], v[44:45]
        v_pk_add_f32 v[42:43], v[42:43], v[46:47]
        v_pk_add_f32 v[8:9], v[32:33], v[40:41]
        v_pk_add_f32 v[10:11], v[34:35], v[42:43]
        """)
        self.scatter4(8)
        a(f"""
        v_add_f32_dpp v8, v8, v8 {ror8}
        v_add_f32_dpp v8, v8, v8 {ror4}
        """)
        self.round1(8)
        a("v_mul_f32 v8, v8, v162")
        self.round1(8)
        a(f"""
        v_add_f32 v8, v8, v160
        v_mov_b32_dpp v9, v8 quad_perm:[1,1,3,3] row_mask:0xf bank_mask:0xf
        v_cvt_pk_bf16_f32 v8, v8, v9
        v_mov_b32_dpp v9, v8 quad_perm:[2,2,2,2] row_mask:0xf bank_mask:0xf
        s_mov_b32 exec_lo, 0x00010001
        s_mov_b32 exec_hi, 0x00010001
        buffer_store_dwordx2 v[8:9], v165, {sp(SRD_A,4)}, 0 offen
        s_cmp_lg_u32 s{S_CQ}, 0
        s_cbranch_scc1 L_fin
        s_mov_b64 exec, 1
        s_add_u32 s{S_T0}, s{S_EPOCH}, 1
        v_mov_b32 v1, {WS_EPOCH}
        v_mov_b32 v2, s{S_T0}
        buffer_store_dword v2, v1, {WS}, 0 offen sc1
        """)
        a.label("L_fin")
        self.stamp(11)
        a.label("L_fin2")
        self.flush_stamps(12, 0, 0)
        a.label("L_end")
        a("s_endpgm")

    def build(self):
        if self.o.stamps:
            for k in range(1, 12):
                self.a(f"s_mov_b64 {sp(S_ST+2*k)}, 0")
        self.prologue()
        self.stream()
        self.aux()
        return self.a.text()


def header():
    ref = open("adaLN_cond__sliding_block_cached__geglu_ffn__decode.s.ref").read().split("\n")
    out = []
    for l in ref:
        if l.startswith("; @launch"): break
        out.append(l)
    return "\n".join(out) + "\n"


def main():
    ap = argparse.ArgumentParser()
    ap.add_argument("out")
    ap.add_argument("--stamps", action="store_true")
    ap.add_argument("--depth", type=int, default=4)
    ap.add_argument("--tailfree", type=int, default=0)
    ap.add_argument("--nq", type=int, default=24)
    ap.add_argument("--kvpol", default="nt")
    ap.add_argument("--wpol", default="nt")
    ap.add_argument("--sleep", type=int, default=0)
    ap.add_argument("--local", type=int, default=1)
    ap.add_argument("--fearly", type=int, default=0)
    o = ap.parse_args()
    body = G(o).build()
    try: hd = header()
    except Exception: hd = "; generated\n"
    open(o.out, "w").write(kernel_file([(KN, body, 168, 102, 168)], [(KN, 256, 768, LDS_BYTES)], header=hd))


if __name__ == "__main__":
    main()
```

```python
import sys, argparse
from asmlib import *

WS_EPOCH = 0x0
WS_XT = 0xE000
WS_OP = 0x20000
WS_ST = 0xA0000
WS_AP = 0xB0000
WS_DP = 0xF0000
WS_X1 = 0x160000
WS_HG = 0x170000
WS_MOD = 0x180000
WS_QG = 0x1C0000
WS_STAMP = 0x200000
WS_SIZE = 0x400000
L_CNT = 0x0
L_ZERO = 0x40
L_FLAG = 0x80
L_QF = 0x100
L_MX = 0x500
L_LS = 0x580
L_ACT = 0x600
L_AV = 0x800
AVS = 1024 + 64
L_PART = 0x1A00
PS = 1024 + 16
L_OL = 0x4000
OLS = 2048 + 32
L_PW = 0x8400
PWS = 16*144
LDS_BYTES = L_PW + 4*PWS

LOG2E = 0x3FB8AA3B
SCALE = 0x3DB504F3
TMO = 40000

S_X, S_K, S_V, S_WQ, S_WO, S_WG, S_WU = 4, 6, 8, 10, 12, 16, 18
S_WD, S_C, S_WM, S_OUT, S_DBG, S_WS = 20, 22, 24, 26, 28, 30
S_WAVE, S_HKV, S_IDX, S_B, S_CH = 32, 33, 34, 35, 36
S_TAG, S_EPOCH, S_TMO = 37, 38, 39
SRD_WS = 40
SRD_A = 44
SRD_B = 48
S_PLO, S_PHI = 52, 53
S_T0, S_T1, S_T2, S_T3 = 54, 55, 56, 57
S_M = 58
S_HI = 72
S_LOC = 73
S_ST = 74
S_CQ, S_TGT = 98, 99
S_U = 100
S_KH, S_J = 14, 15
S_M24 = 28
S_SEL = 29


def q(r, n=4): return f"v[{r}:{r+n-1}]"
def sp(r, n=2): return f"s[{r}:{r+n-1}]"


class G:
    def __init__(self, o):
        self.o = o
        self.a = Asm()
        self.nst = 0

    def stamp(self, k):
        if self.o.stamps or (self.o.lite and k == 0):
            self.a(f"s_memrealtime {sp(S_ST+2*k)}")

    def lite_end(self):
        if not self.o.lite: return
        self.a(f"""
        s_memrealtime {sp(S_ST+2)}
        s_mov_b64 exec, 1
        s_lshl_b32 s{S_T0}, s2, 8
        s_lshl_b32 s{S_T1}, s{S_WAVE}, 4
        s_add_u32 s{S_T0}, s{S_T0}, s{S_T1}
        s_add_u32 s{S_T0}, s{S_T0}, {WS_STAMP}
        v_mov_b32 v1, s{S_T0}
        s_waitcnt lgkmcnt(0)
        v_mov_b32 v2, s{S_ST}
        v_mov_b32 v3, s{S_ST+1}
        v_mov_b32 v4, s{S_ST+2}
        v_mov_b32 v5, s{S_ST+3}
        buffer_store_dwordx4 v[2:5], v1, {sp(SRD_WS,4)}, 0 offen
        """)

    def flush_stamps(self, n, slot, cond_wave):
        if not self.o.stamps: return
        a = self.a
        L = a.newlabel("Lst")
        a(f"""
        s_cmp_lg_u32 s{S_WAVE}, {cond_wave}
        s_cbranch_scc1 {L}
        s_waitcnt lgkmcnt(0)
        s_mov_b64 exec, 1
        s_lshl_b32 s{S_T0}, s2, 8
        s_add_u32 s{S_T0}, s{S_T0}, {WS_STAMP + slot*128}
        v_mov_b32 v1, s{S_T0}
        """)
        for k in range(n):
            a(f"""
            v_mov_b32 v2, s{S_ST+2*k}
            v_mov_b32 v3, s{S_ST+2*k+1}
            buffer_store_dwordx2 v[2:3], v1, {sp(SRD_WS,4)}, 0 offen offset:{8*k}
            s_waitcnt vmcnt(0)
            """)
        a.label(L)

    def srd(self, dst, ptr, size):
        self.a(f"""
        s_mov_b32 s{dst}, s{ptr}
        s_mov_b32 s{dst+1}, s{ptr+1}
        s_mov_b32 s{dst+2}, {size}
        s_mov_b32 s{dst+3}, 0x20000
        """)

    def transpose(self, src, dst, nrows=8):
        a = self.a
        ne = nrows // 2
        for e in range(ne):
            self.transpose_pair(src, dst, e, ne)

    def transpose_pair(self, src, dst, e, ne):
        a = self.a
        for d in range(4):
            lo, hi = src + 8*e + d, src + 8*e + 4 + d
            a(f"v_perm_b32 v{dst + (2*d)*ne + e}, v{hi}, v{lo}, s{S_PLO}")
            a(f"v_perm_b32 v{dst + (2*d+1)*ne + e}, v{hi}, v{lo}, s{S_PHI}")

    def transpose_inplace(self, b, t0, t1):
        a = self.a
        R = lambda row, d: b + 4*row + d
        for e in range(4):
            a(f"v_perm_b32 v{t0}, v{R(2*e+1,e)}, v{R(2*e,e)}, s{S_PLO}")
            a(f"v_perm_b32 v{R(2*e+1,e)}, v{R(2*e+1,e)}, v{R(2*e,e)}, s{S_PHI}")
            a(f"v_mov_b32 v{R(2*e,e)}, v{t0}")
            for d in range(e+1, 4):
                a(f"v_perm_b32 v{t0}, v{R(2*e+1,d)}, v{R(2*e,d)}, s{S_PLO}")
                a(f"v_perm_b32 v{t1}, v{R(2*e+1,d)}, v{R(2*e,d)}, s{S_PHI}")
                a(f"v_perm_b32 v{R(2*e,d)}, v{R(2*d+1,e)}, v{R(2*d,e)}, s{S_PLO}")
                a(f"v_perm_b32 v{R(2*e+1,d)}, v{R(2*d+1,e)}, v{R(2*d,e)}, s{S_PHI}")
                a(f"v_mov_b32 v{R(2*d,e)}, v{t0}")
                a(f"v_mov_b32 v{R(2*d+1,e)}, v{t1}")

    def rows_allreduce(self, op, r, t):
        self.a(f"""
        v_mov_b32 v{t}, v{r}
        v_permlane16_swap_b32 v{r}, v{t}
        {op} v{r}, v{r}, v{t}
        v_mov_b32 v{t}, v{r}
        v_permlane32_swap_b32 v{r}, v{t}
        {op} v{r}, v{r}, v{t}
        """)

    def wave_allreduce2(self, r0, r1, t0, t1):
        a = self.a
        for m in ("quad_perm:[1,0,3,2]", "quad_perm:[2,3,0,1]", "row_half_mirror", "row_mirror"):
            a(f"v_add_f32_dpp v{r0}, v{r0}, v{r0} {m} row_mask:0xf bank_mask:0xf")
            a(f"v_add_f32_dpp v{r1}, v{r1}, v{r1} {m} row_mask:0xf bank_mask:0xf")
        for sw in ("16", "32"):
            a(f"""
            v_mov_b32 v{t0}, v{r0}
            v_mov_b32 v{t1}, v{r1}
            v_permlane{sw}_swap_b32 v{r0}, v{t0}
            v_permlane{sw}_swap_b32 v{r1}, v{t1}
            v_add_f32 v{r0}, v{r0}, v{t0}
            v_add_f32 v{r1}, v{r1}, v{t1}
            """)

    def scatter4(self, r):
        self.a(f"""
        v_permlane32_swap_b32 v{r}, v{r+2}
        v_permlane32_swap_b32 v{r+1}, v{r+3}
        v_add_f32 v{r}, v{r}, v{r+2}
        v_add_f32 v{r+1}, v{r+1}, v{r+3}
        v_permlane16_swap_b32 v{r}, v{r+1}
        v_add_f32 v{r}, v{r}, v{r+1}
        """)

    def unpack(self, pk, lo, hi):
        self.a(f"""
        v_and_b32 v{hi}, s{S_HI}, v{pk}
        v_lshlrev_b32 v{lo}, 16, v{pk}
        """) if lo == pk else self.a(f"""
        v_lshlrev_b32 v{lo}, 16, v{pk}
        v_and_b32 v{hi}, s{S_HI}, v{pk}
        """)

    def round2(self, r0, r1, t):
        self.a(f"v_cvt_pk_bf16_f32 v{t}, v{r0}, v{r1}")
        self.unpack(t, r0, r1)

    def round1(self, r):
        self.a(f"""
        v_cvt_pk_bf16_f32 v{r}, v{r}, v{r}
        v_and_b32 v{r}, s{S_HI}, v{r}
        """)

    def lds_sync(self, cnt, target, vt0, vt1):
        a = self.a
        L = a.newlabel("Lsync"); E = a.newlabel("Lsyncx")
        a(f"""
        v_mov_b32 v{vt0}, {cnt}
        v_mov_b32 v{vt1}, 1
        s_waitcnt lgkmcnt(0)
        s_mov_b64 exec, 1
        ds_add_u32 v{vt0}, v{vt1}
        s_mov_b64 exec, -1
        s_mov_b32 s{S_TMO}, {TMO*8}
        {L}:
        ds_read_b32 v{vt1}, v{vt0}
        s_sub_u32 s{S_TMO}, s{S_TMO}, 1
        s_cbranch_scc1 {E}
        s_waitcnt lgkmcnt(0)
        v_readfirstlane_b32 s{S_T0}, v{vt1}
        s_cmp_lt_u32 s{S_T0}, {target}
        s_cbranch_scc1 {L}
        {E}:
        s_waitcnt lgkmcnt(0)
        """)

    def poll_tagged(self, loads, tagregs, pre=None, sleepy=True, wait0=0):
        a = self.a
        L = a.newlabel("Lpt"); E = a.newlabel("Lptx"); C = a.newlabel("Lptc")
        a(f"s_mov_b32 s{S_TMO}, {TMO}")
        if pre:
            for l in loads: a(l)
            pre()
            a(f"s_waitcnt vmcnt({wait0})\ns_branch {C}")
        a.label(L)
        if self.o.sleep and sleepy: a(f"s_sleep {self.o.sleep}")
        for l in loads: a(l)
        a(f"""
        s_sub_u32 s{S_TMO}, s{S_TMO}, 1
        s_waitcnt vmcnt(0)
        s_cbranch_scc1 {E}
        """)
        a.label(C)
        for i, r in enumerate(tagregs):
            if i == 0: a(f"v_cmp_ne_u32 vcc, s{S_TAG}, v{r}")
            else:
                a(f"v_cmp_ne_u32 {sp(S_T0)}, s{S_TAG}, v{r}")
                a(f"s_or_b64 vcc, vcc, {sp(S_T0)}")
        a(f"s_cbranch_scc1 {L}" if len(tagregs) > 1 else f"s_cbranch_vccnz {L}")
        a.label(E)

    def poll_sent(self, groups, tmp, pre=None):
        a = self.a
        L = a.newlabel("Lps"); E = a.newlabel("Lpsx"); C = a.newlabel("Lpsc")
        a(f"s_mov_b32 s{S_TMO}, {TMO}")
        for i, (loads, regs, init) in enumerate(groups):
            if isinstance(init, tuple):
                a(f"s_mov_b32 s{S_M+2*i}, {init[0]}\ns_mov_b32 s{S_M+2*i+1}, {init[1]}")
            else:
                a(f"s_mov_b64 {sp(S_M+2*i)}, {init}")
        def issue():
            for i, (loads, regs, init) in enumerate(groups):
                a(f"s_mov_b64 exec, {sp(S_M+2*i)}")
                for l in loads: a(l)
            a("s_mov_b64 exec, -1")
        if pre:
            issue(); pre(); a(f"s_branch {C}")
        a.label(L)
        issue()
        a.label(C)
        a(f"""
        s_sub_u32 s{S_TMO}, s{S_TMO}, 1
        s_cbranch_scc1 {E}
        s_waitcnt vmcnt(0)
        """)
        for i, (loads, regs, init) in enumerate(groups):
            rs = list(regs)
            a(f"v_max3_u32 v{tmp}, v{rs[0]}, v{rs[1]}, v{rs[2]}")
            rs = rs[3:]
            while rs:
                if len(rs) >= 2:
                    a(f"v_max3_u32 v{tmp}, v{tmp}, v{rs[0]}, v{rs[1]}"); rs = rs[2:]
                else:
                    a(f"v_max_u32 v{tmp}, v{tmp}, v{rs[0]}"); rs = rs[1:]
            a(f"v_cmp_eq_u32 {sp(S_M+2*i)}, -1, v{tmp}")
        a(f"s_or_b64 vcc, {sp(S_M)}, {sp(S_M+2)}")
        for i in range(2, len(groups)):
            a(f"s_or_b64 vcc, vcc, {sp(S_M+2*i)}")
        a(f"""
        s_cbranch_scc1 {L}
        {E}:
        s_waitcnt vmcnt(0)
        """)

    def capture(self, fn):
        old = self.a
        self.a = Asm(); self.a.nlabel = old.nlabel
        fn()
        lines = self.a.lines; old.nlabel = self.a.nlabel
        self.a = old
        return lines

    def aff(self, vd, base, lt=(), st=(), vt=1):
        a = self.a
        a(f"s_mov_b32 s{S_U}, {base}")
        for (sr, mul) in st:
            if mul == 1: a(f"s_add_u32 s{S_U}, s{S_U}, s{sr}")
            else: a(f"s_mul_i32 s{S_U+1}, s{sr}, {mul}\ns_add_u32 s{S_U}, s{S_U}, s{S_U+1}")
        acc = f"s{S_U}"
        if not lt: a(f"v_mov_b32 v{vd}, {acc}")
        for (sh, w, mul) in lt:
            if sh == 0 and w >= 6: src = "v0"
            else:
                src = f"v{vt}"
                if sh + w >= 6: a(f"v_lshrrev_b32 v{vt}, {sh}, v0")
                elif sh == 0: a(f"v_and_b32 v{vt}, {(1<<w)-1}, v0")
                else: a(f"v_bfe_u32 v{vt}, v0, {sh}, {w}")
            if mul & (mul-1) == 0:
                a(f"v_lshl_add_u32 v{vd}, {src}, {mul.bit_length()-1}, {acc}")
            else:
                a(f"v_mul_u32_u24 v{vt}, {mul}, {src}\nv_add_u32 v{vd}, {acc}, v{vt}")
            acc = f"v{vd}"

    def flavor_masks(self, dst, lo, hi):
        self.a(f"""
        s_cmp_lg_u32 s{S_LOC}, 0
        s_cselect_b32 s{dst}, {lo}, 0
        s_cselect_b32 s{dst+1}, {hi}, 0
        s_cselect_b32 s{dst+2}, 0, {lo}
        s_cselect_b32 s{dst+3}, 0, {hi}
        """)

    def flavor_store(self, m, ins):
        self.a(f"""
        s_mov_b64 exec, {sp(m)}
        {ins}
        s_mov_b64 exec, {sp(m+2)}
        {ins} sc1
        s_mov_b64 exec, -1
        """)

    def quad_reduce(self, r, r2):
        a = self.a
        for i in range(4): a(f"v_add_f32 v{r+i}, v{r+i}, v{r2+i}")
        for m in ("[1,0,3,2]", "[2,3,0,1]"):
            for i in range(4):
                a(f"v_add_f32_dpp v{r+i}, v{r+i}, v{r+i} quad_perm:{m} row_mask:0xf bank_mask:0xf")
        for i in range(4): a(f"v_min_u32 v{r+i}, -2, v{r+i}")

    def tile_loads(self, va, srd, offs, dst, pol):
        a = self.a
        cur = None
        for i, off in enumerate(offs):
            hi, lo = off & ~4095, off & 4095
            if hi == 0: so = "0"
            else:
                if cur != hi: a(f"s_mov_b32 s{S_T0}, {hi}"); cur = hi
                so = f"s{S_T0}"
            a(f"buffer_load_dwordx4 {q(dst+4*i)}, v{va}, {sp(srd,4)}, {so} offen offset:{lo} {pol}")

    def gemv_reduce(self, vr, R):
        a = self.a
        a(f"""
        ds_read_b128 {q(R)}, v{vr}
        ds_read_b128 {q(R+4)}, v{vr} offset:{PS}
        s_waitcnt lgkmcnt(0)
        v_pk_add_f32 {q(R,2)}, {q(R,2)}, {q(R+4,2)}
        v_pk_add_f32 {q(R+2,2)}, {q(R+2,2)}, {q(R+6,2)}
        """)
        self.scatter4(R)

    def pack4(self, R):
        self.a(f"""
        v_mov_b32_dpp v{R+1}, v{R} quad_perm:[1,1,3,3] row_mask:0xf bank_mask:0xf
        v_mov_b32 v{R+3}, s{S_TAG}
        v_cvt_pk_bf16_f32 v{R}, v{R}, v{R+1}
        v_mov_b32 v{R+1}, s{S_TAG}
        v_mov_b32_dpp v{R+2}, v{R} quad_perm:[2,2,2,2] row_mask:0xf bank_mask:0xf
        """)

    def round8(self, X, T):
        for i in range(4): self.a(f"v_cvt_pk_bf16_f32 v{T+i}, v{X+2*i}, v{X+2*i+1}")
        for i in range(4): self.unpack(T+i, X+2*i, X+2*i+1)

    def layernorm(self, X, T):
        a = self.a
        bc = "op_sel_hi:[1,0]"; ng = "neg_lo:[0,1] neg_hi:[0,1]"
        a(f"v_readfirstlane_b32 s{S_U}, v{X}")
        for i in range(4): a(f"v_pk_add_f32 {q(T+2*i,2)}, {q(X+2*i,2)}, {sp(S_U)} {bc} {ng}")
        a(f"""
        v_pk_add_f32 {q(T+8,2)}, {q(T,2)}, {q(T+2,2)}
        v_pk_mul_f32 {q(T+10,2)}, {q(T,2)}, {q(T,2)}
        v_pk_fma_f32 {q(T+10,2)}, {q(T+2,2)}, {q(T+2,2)}, {q(T+10,2)}
        v_pk_add_f32 {q(T,2)}, {q(T+4,2)}, {q(T+6,2)}
        v_pk_fma_f32 {q(T+10,2)}, {q(T+4,2)}, {q(T+4,2)}, {q(T+10,2)}
        v_pk_add_f32 {q(T+8,2)}, {q(T+8,2)}, {q(T,2)}
        v_pk_fma_f32 {q(T+10,2)}, {q(T+6,2)}, {q(T+6,2)}, {q(T+10,2)}
        v_add_f32 v{T+8}, v{T+8}, v{T+9}
        v_add_f32 v{T+10}, v{T+10}, v{T+11}
        v_permlane32_swap_b32 v{T+8}, v{T+10}
        v_add_f32 v{T+8}, v{T+8}, v{T+10}
        v_add_f32_dpp v{T+8}, v{T+8}, v{T+8} quad_perm:[1,0,3,2] row_mask:0xf bank_mask:0xf
        v_add_f32_dpp v{T+8}, v{T+8}, v{T+8} quad_perm:[2,3,0,1] row_mask:0xf bank_mask:0xf
        v_add_f32_dpp v{T+8}, v{T+8}, v{T+8} row_half_mirror row_mask:0xf bank_mask:0xf
        v_add_f32_dpp v{T+8}, v{T+8}, v{T+8} row_mirror row_mask:0xf bank_mask:0xf
        v_readlane_b32 s{S_T0}, v{T+8}, 0
        v_readlane_b32 s{S_T1}, v{T+8}, 16
        v_readlane_b32 s{S_T2}, v{T+8}, 32
        v_readlane_b32 s{S_T3}, v{T+8}, 48
        v_mov_b32 v{T+10}, 0x3b000000
        v_mul_f32 v{T+8}, s{S_T0}, v{T+10}
        v_mul_f32 v{T+9}, s{S_T2}, v{T+10}
        v_fmac_f32 v{T+8}, s{S_T1}, v{T+10}          ; E[d]
        v_fmac_f32 v{T+9}, s{S_T3}, v{T+10}          ; E[d^2]
        v_fma_f32 v{T+9}, -v{T+8}, v{T+8}, v{T+9}    ; var
        v_add_f32 v{T+8}, s{S_U}, v{T+8}             ; mean
        v_max_f32 v{T+9}, 0, v{T+9}
        v_cvt_pk_bf16_f32 v{T+10}, v{T+8}, v{T+9}
        v_lshlrev_b32 v{T+8}, 16, v{T+10}
        v_and_b32 v{T+10}, s{S_HI}, v{T+10}
        v_add_f32 v{T+10}, 0x3727c5ac, v{T+10}
        v_cvt_pk_bf16_f32 v{T+10}, v{T+10}, v{T+10}
        v_and_b32 v{T+10}, s{S_HI}, v{T+10}
        v_sqrt_f32 v{T+10}, v{T+10}
        """)
        for i in range(4): a(f"v_pk_add_f32 {q(X+2*i,2)}, {q(X+2*i,2)}, {q(T+8,2)} {bc} {ng}")
        a(f"""
        v_cvt_pk_bf16_f32 v{T+10}, v{T+10}, v{T+10}
        v_and_b32 v{T+10}, s{S_HI}, v{T+10}
        v_rcp_f32 v{T+10}, v{T+10}
        """)
        self.round8(X, T)
        for i in range(4): a(f"v_pk_mul_f32 {q(X+2*i,2)}, {q(X+2*i,2)}, {q(T+10,2)} {bc}")
        self.round8(X, T)

    def gettag(self):
        self.a(f"""
        s_waitcnt lgkmcnt(0)
        s_lshl_b32 s{S_TAG}, s{S_EPOCH}, 1
        s_add_u32 s{S_TAG}, s{S_TAG}, 0x9E3779B8
        """)

    def xt_publish(self):
        a = self.a
        L = a.newlabel("Lxt")
        a(f"""
        s_cmp_lg_u32 s{S_WAVE}, 1
        s_cbranch_scc1 {L}
        """)
        self.aff(1, WS_XT, [], [(S_HKV,256),(S_IDX,8)])
        a(f"""
        v_mov_b32 v2, s{S_LOC}
        v_mov_b32 v3, s{S_TAG}
        s_mov_b64 exec, 1
        buffer_store_dwordx2 v[2:3], v1, {sp(SRD_WS,4)}, 0 offen {self.o.xtpol}
        s_mov_b64 exec, -1
        {L}:
        """)

    def gemv_mfma(self, nkb, va, vd, A, Bs, Dq):
        a = self.a
        for i in range(len(Bs)): a(f"ds_read_b128 {q(A+4*i)}, v{va} offset:{64*nkb*i}")
        for i, B in enumerate(Bs):
            a(f"s_waitcnt lgkmcnt({len(Bs)-1-i})")
            for c in range(8):
                a(f"v_mfma_f32_16x16x32_bf16 {q(Dq[c])}, {q(A+4*i)}, {q(B+4*c)}, {'0' if i == 0 else q(Dq[c])}")
        a(f"s_mov_b64 exec, {sp(S_M+12)}")
        cs = 128 if nkb == 2 else 64
        for c in range(8):
            a(f"ds_write_b128 v{vd}, {q(Dq[c])} offset:{c*cs}")
        a("s_mov_b64 exec, -1")

    def roundn(self, X, T, n):
        for i in range(n//2): self.a(f"v_cvt_pk_bf16_f32 v{T+i}, v{X+2*i}, v{X+2*i+1}")
        for i in range(n//2): self.unpack(T+i, X+2*i, X+2*i+1)

    def modulate(self, X, C1, SH, T, out, n=8):
        a = self.a
        for i in range(n//2): a(f"v_pk_mul_f32 {q(X+2*i,2)}, {q(X+2*i,2)}, {q(C1+2*i,2)}")
        self.roundn(X, T, n)
        for i in range(n//2): a(f"v_pk_add_f32 {q(X+2*i,2)}, {q(X+2*i,2)}, {q(SH+2*i,2)}")
        for i in range(n//2): a(f"v_cvt_pk_bf16_f32 v{out+i}, v{X+2*i}, v{X+2*i+1}")

    def unp24(self, R, D):
        self.a(f"""
        v_perm_b32 v{D+3}, v{R+1}, v{R}, s{S_SEL}
        v_and_b32 v{D}, s{S_M24}, v{R}
        v_and_b32 v{D+1}, s{S_M24}, v{R+1}
        v_lshl_or_b32 v{D+3}, v{R+2}, 24, v{D+3}
        v_and_b32 v{D+2}, s{S_M24}, v{R+2}
        """)

    def sum24(self, R0, R1, D):
        self.unp24(R0, D); self.unp24(R1, R1)
        self.a(f"""
        v_pk_add_f32 {q(D,2)}, {q(D,2)}, {q(R1,2)}
        v_pk_add_f32 {q(D+2,2)}, {q(D+2,2)}, {q(R1+2,2)}
        """)

    def poll_pipe(self, sets, done, gap, sl=0, rec=None, or1=None):
        a = self.a
        D = len(sets); nl = len(sets[0][0])
        L = a.newlabel("Lpp"); E = a.newlabel("Lppx")
        DL = [a.newlabel("Lppd") for _ in sets]
        a(f"s_mov_b32 s{S_TMO}, {TMO}")
        for k, (loads, tags) in enumerate(sets):
            for l in loads: a(l)
            if k < D-1 and gap: a(f"s_sleep {gap}")
        a.label(L)
        for k, (loads, tags) in enumerate(sets):
            a(f"s_waitcnt vmcnt({(D-1)*nl})")
            t = self.PT
            if len(tags) <= 5:
                a(f"v_xor_b32 v{t}, s{S_TAG}, v{tags[0]}")
                for r in tags[1:]:
                    a(f"v_xor_b32 v{t+1}, s{S_TAG}, v{r}\nv_or_b32 v{t}, v{t}, v{t+1}")
            else:
                assert len(tags) % 2 == 1
                for i in range(1, len(tags), 2):
                    a(f"v_max3_u32 v{t}, v{tags[0] if i == 1 else t}, v{tags[i]}, v{tags[i+1]}")
                    a(f"v_min3_u32 v{t+1}, v{tags[0] if i == 1 else t+1}, v{tags[i]}, v{tags[i+1]}")
                a(f"v_xor_b32 v{t}, s{S_TAG}, v{t}\nv_xor_b32 v{t+1}, s{S_TAG}, v{t+1}\nv_or_b32 v{t}, v{t}, v{t+1}")
            a(f"v_cmp_lt_u32 vcc, {1 if or1 else 0}, v{t}")
            a(f"s_cbranch_vccz {DL[k]}")
            if 0: a(f"s_cbranch_scc0 {DL[k]}" if len(tags) > 1 else f"s_cbranch_vccz {DL[k]}")
            if sl: a(f"s_sleep {sl}")
            for l in loads: a(l)
        a(f"""
        s_sub_u32 s{S_TMO}, s{S_TMO}, 1
        s_cbranch_scc0 {L}
        s_waitcnt vmcnt(0)
        """)
        for k in range(D):
            a.label(DL[k])
            done(k)
            if k < D-1: a(f"s_branch {E}")
        a.label(E)
        if rec is not None and self.o.stamps and self.o.rec:
            a(f"""
            s_waitcnt lgkmcnt(0)
            s_sub_u32 s{S_T0}, {TMO}, s{S_TMO}
            s_mul_i32 s{S_T0}, s{S_T0}, 100
            s_add_u32 s{S_ST+2*rec}, s{S_ST}, s{S_T0}
            s_addc_u32 s{S_ST+2*rec+1}, s{S_ST+1}, 0
            """)

    def lds_wait(self, off, target, vz, vt, sleep=1):
        a = self.a
        L = a.newlabel("Lw"); E = a.newlabel("Lwx")
        a(f"""
        s_mov_b32 s{S_TMO}, {TMO*8}
        {L}:
        ds_read_b32 v{vt}, v{vz} offset:{off}
        s_sub_u32 s{S_TMO}, s{S_TMO}, 1
        s_cbranch_scc1 {E}
        """)
        if sleep: a(f"s_sleep {sleep}")
        a(f"""
        s_waitcnt lgkmcnt(0)
        v_readfirstlane_b32 s{S_T0}, v{vt}
        s_cmp_lt_u32 s{S_T0}, {target}
        s_cbranch_scc1 {L}
        {E}:
        s_waitcnt lgkmcnt(0)
        """)

    def prologue(self):
        a = self.a
        self.stamp(0)
        a(f"""
        s_cmp_ge_u32 s2, 256
        s_cbranch_scc1 L_end
        s_load_dwordx16 s[4:19], s[0:1], 0
        s_load_dwordx8 s[20:27], s[0:1], 64
        s_load_dwordx2 s[30:31], s[0:1], 104
        v_lshrrev_b32 v1, 6, v0
        v_and_b32 v0, 63, v0
        s_and_b32 s{S_HKV}, s2, 7
        v_readfirstlane_b32 s{S_WAVE}, v1
        s_lshr_b32 s{S_IDX}, s2, 3
        s_and_b32 s{S_B}, s{S_IDX}, 3
        s_lshr_b32 s{S_CH}, s{S_IDX}, 2
        s_mov_b32 s{S_PLO}, 0x05040100
        s_mov_b32 s{S_PHI}, 0x07060302
        s_mov_b32 s{S_HI}, 0xffff0000
        s_cmp_lt_u32 s{S_WAVE}, 4
        s_cbranch_scc1 L_aux
        """)

    def stream(self):
        a = self.a; o = self.o
        nt = o.kvpol
        kreg = lambda t, u: 32 + 16*t + 4*u
        vreg = lambda t, u: 96 + 16*t + 4*u
        dreg = lambda t, u: (8 + 4*u) if t == 0 else (32 + 16*(t-1) + 4*u)
        S_W = 3
        S_N = S_TGT
        a(f"""
        s_sub_u32 s{S_W}, s{S_WAVE}, 4
        s_lshl_b32 s{S_T0}, s{S_B}, 3
        s_add_u32 s{S_T0}, s{S_T0}, s{S_HKV}
        s_lshl_b32 s{S_T0}, s{S_T0}, 22
        s_lshl_b32 s{S_T1}, s{S_CH}, 17
        s_add_u32 s{S_T0}, s{S_T0}, s{S_T1}
        s_lshl_b32 s{S_T1}, s{S_W}, 12
        s_add_u32 s{S_T0}, s{S_T0}, s{S_T1}
        s_add_u32 s{S_T0}, s{S_T0}, 3145728
        v_bfe_u32 v1, v0, 2, 2
        v_lshrrev_b32 v2, 4, v0
        v_and_b32 v3, 3, v0
        v_lshlrev_b32 v6, 8, v1
        v_lshl_add_u32 v6, v2, 6, v6
        v_lshl_add_u32 v6, v3, 4, v6
        v_add_u32 v4, s{S_T0}, v6
        v_lshlrev_b32 v7, 4, v0
        v_add_u32 v5, s{S_T0}, v7
        s_mov_b32 s{S_T1}, 32768
        s_mov_b32 s{S_T2}, 65536
        s_mov_b32 s{S_T3}, 98304
        v_mov_b32 v163, 0
        v_mov_b32 v161, 1
        s_cmp_lt_u32 s{S_IDX}, {NEARLY}
        s_waitcnt lgkmcnt(0)
        """)
        self.srd(SRD_A, S_K, 0x8000000)
        self.srd(SRD_B, S_V, 0x8000000)
        so = ["0", f"s{S_T1}", f"s{S_T2}", f"s{S_T3}"]
        loads = []
        for (rf, va, srd) in ((kreg, 4, SRD_A), (vreg, 5, SRD_B)):
            for t in range(4):
                for u in range(4):
                    loads.append(f"buffer_load_dwordx4 {q(rf(t,u))}, v{va}, {sp(srd,4)}, {so[t]} offen offset:{u*1024} {nt}")
        a(f"s_cbranch_scc1 L_searly")
        for l in loads[:o.depth]: a(l)
        self.srd(SRD_WS, S_WS, WS_SIZE)
        a("s_barrier\ns_branch L_sgo")
        a.label("L_searly")
        self.srd(SRD_WS, S_WS, WS_SIZE)
        a(f"""
        s_cmp_lt_u32 s{S_IDX}, {40 if o.abl & 1 else 4}
        s_cbranch_scc1 L_snoclr
        s_cmp_ge_u32 s{S_IDX}, 22
        s_cbranch_scc1 L_snoclr
        v_mov_b32 v8, -1
        v_mov_b32 v9, -1
        v_mov_b32 v10, -1
        v_mov_b32 v11, -1
        s_cmp_ge_u32 s{S_IDX}, 20
        s_cbranch_scc1 L_sclrM
        s_lshl_b32 s{S_T0}, s{S_HKV}, 4
        s_add_u32 s{S_T0}, s{S_T0}, s{S_IDX}
        s_sub_u32 s{S_T0}, s{S_T0}, 4
        s_lshl_b32 s{S_T0}, s{S_T0}, 3
        s_add_u32 s{S_T0}, s{S_T0}, s{S_W}
        s_lshl_b32 s{S_U}, s{S_T0}, 9
        s_add_u32 s{S_U}, s{S_U}, {WS_OP}
        v_add_u32 v12, s{S_U}, v7
        s_lshr_b32 s{S_T0}, s{S_T0}, 1
        s_lshl_b32 s{S_T0}, s{S_T0}, 4
        s_add_u32 s{S_T0}, s{S_T0}, {WS_ST}
        v_writelane_b32 v12, s{S_T0}, 32
        s_mov_b32 exec_hi, 1
        s_branch L_sclr2
        L_sclrM:
        s_and_b32 s{S_T0}, s{S_IDX}, 1
        s_lshl_b32 s{S_T0}, s{S_T0}, 3
        s_add_u32 s{S_T0}, s{S_T0}, s{S_W}
        s_lshl_b32 s{S_U}, s{S_T0}, 14
        s_lshl_b32 s{S_T0}, s{S_HKV}, 10
        s_add_u32 s{S_U}, s{S_U}, s{S_T0}
        s_add_u32 s{S_U}, s{S_U}, {WS_AP}
        v_add_u32 v12, s{S_U}, v7
        s_mov_b32 s{S_U}, 8192
        buffer_store_dwordx4 v[8:11], v12, {sp(SRD_WS,4)}, s{S_U} offen sc1
        L_sclr2:
        buffer_store_dwordx4 v[8:11], v12, {sp(SRD_WS,4)}, 0 offen sc1
        s_mov_b64 exec, -1
        L_snoclr:
        s_barrier
        """)
        for l in loads[:o.depth]: a(l)
        a.label("L_sgo")
        a(f"""
        v_cmp_eq_u32 {sp(S_M)}, 1, v3
        v_cmp_eq_u32 {sp(S_M+2)}, 2, v3
        v_cmp_eq_u32 {sp(S_M+4)}, 3, v3
        v_lshlrev_b32 v7, 5, v1                 ; h*32
        s_lshr_b32 s{S_T0}, s{S_CH}, 1
        s_and_b32 s{S_N}, s{S_CH}, 1
        """)
        self.aff(160, WS_ST, [(2,2,256)], [(S_HKV,1024),(S_T0,64),(S_B,16),(S_N,8)], vt=2)
        self.aff(164, 0, [(2,2,32)], [(S_W,4)], vt=2)
        self.aff(165, L_OL, [(0,6,4)], [(S_W,OLS)], vt=2)
        self.aff(166, L_OL, [(0,2,2*OLS),(2,4,16)], [(S_W,256)], vt=2)
        self.aff(167, WS_OP, [(4,2,16384),(2,2,64)], [(S_HKV,65536),(S_CH,2048),(S_W,256),(S_B,16)], vt=2)
        def cnt_add(off):
            a(f"""
            s_mov_b64 exec, 1
            ds_add_u32 v163, v161 offset:{off}
            s_mov_b64 exec, -1
            """)
        a(f"s_waitcnt vmcnt({o.depth})")
        cnt_add(L_CNT+4)

        def step(n, wait=True):
            if wait and n < 32 - o.tailfree: a(f"s_waitcnt vmcnt({o.depth-1})")
            a(loads[n])
            if n == o.trigw: cnt_add(L_CNT+12)
            if n == o.trigf: cnt_add(L_CNT+16)
            if n == o.trigq: cnt_add(L_CNT+20)
            if n == o.trigh: cnt_add(L_CNT+28)
            if n in (4, 8, 12, 16, 24, 28): self.stamp({4:6,8:7,12:8,16:9,24:10,28:11}[n])
        N0 = 16 + o.depth - 1
        chk = [n for n in range(max(N0, o.nq), 31) if (n - N0) % o.chkstep == 0]
        rd = f"ds_read_b32 v162, v163 offset:{L_CNT+8}"
        for n in range(o.depth, 32):
            if n == o.pause:
                a(f"""
                s_cmp_lt_u32 s{S_IDX}, 28
                s_cbranch_scc1 L_nopause
                """)
                self.lds_wait(L_CNT+o.pauseoff, o.pausecnt, 163, 162, sleep=2)
                a.label("L_nopause")
            step(n)
            if n in chk:
                a(f"""
                s_waitcnt lgkmcnt(0)
                v_readfirstlane_b32 s{S_T0}, v162
                s_cmp_ge_u32 s{S_T0}, 4
                s_cbranch_scc1 L_qk{n}
                """)
            if n + 1 in chk: a(rd)
        self.stamp(2)
        a(f"s_mov_b32 s{S_N}, 32")
        self.lds_wait(L_CNT+8, 4, 163, 162, sleep=0)
        a.label("L_QK")
        self.stamp(1)
        a(f"""
        ds_read_b128 v[0:3], v6 offset:{L_QF}
        ds_read_b32 v162, v163 offset:{L_FLAG}
        s_waitcnt lgkmcnt(0)
        v_readfirstlane_b32 s{S_LOC}, v162
        """)
        for t in range(4):
            for u in range(4):
                a(f"v_mfma_f32_16x16x32_bf16 {q(dreg(t,u))}, {q(kreg(t,u))}, v[0:3], 0")
        self.flavor_masks(S_M+6, "0x11111111", "0x11111111")
        qp = {1: "[1,0,3,2]", 2: "[2,3,0,1]", 3: "[3,2,1,0]"}
        for t in range(4):
            for rho in range(4):
                w = 24 + t if rho == 0 else 27 + rho
                c = [dreg(t, x ^ rho) + x for x in range(4)]
                a(f"""
                v_cndmask_b32 v{w}, v{c[0]}, v{c[1]}, {sp(S_M)}
                v_cndmask_b32 v{w}, v{w}, v{c[2]}, {sp(S_M+2)}
                v_cndmask_b32 v{w}, v{w}, v{c[3]}, {sp(S_M+4)}
                """)
            for rho in range(1, 4):
                a(f"v_add_f32_dpp v{24+t}, v{27+rho}, v{24+t} quad_perm:{qp[rho]} row_mask:0xf bank_mask:0xf")
        self.round2(24, 25, 28); self.round2(26, 27, 29)
        a(f"s_mov_b32 s{S_T0}, {SCALE}")
        for t in range(4): a(f"v_mul_f32 v{24+t}, s{S_T0}, v{24+t}")
        self.round2(24, 25, 28); self.round2(26, 27, 29)
        a(f"""
        v_max3_f32 v28, v24, v25, v26
        v_max_f32 v28, v28, v27
        v_max_f32_dpp v28, v28, v28 quad_perm:[1,0,3,2] row_mask:0xf bank_mask:0xf
        v_max_f32_dpp v28, v28, v28 quad_perm:[2,3,0,1] row_mask:0xf bank_mask:0xf
        """)
        self.rows_allreduce("v_max_f32", 28, 29)
        a(f"""
        v_min_u32 v28, -2, v28
        ds_write_b32 v164, v28 offset:{L_MX}
        """)
        ex = o.qkextra
        rets = sorted({min(n + 1 + ex, 32) for n in chk} | {32}, reverse=True)
        for r in rets[:-1]:
            a(f"s_cmp_eq_u32 s{S_N}, {r}\ns_cbranch_scc1 L_B{r}")
        for n in range(rets[-1], 32):
            if n in rets: a.label(f"L_B{n}")
            step(n)
        if chk: self.stamp(2)
        a.label("L_B32")
        a(f"s_waitcnt vmcnt(8)")
        self.transpose(96, 32)
        L = a.newlabel("Lb3"); E = a.newlabel("Lb3x")
        a(f"""
        s_mov_b32 s{S_TMO}, {TMO*8}
        {L}:
        ds_read_b128 v[8:11], v7 offset:{L_MX}
        ds_read_b128 v[12:15], v7 offset:{L_MX+16}
        s_sub_u32 s{S_TMO}, s{S_TMO}, 1
        s_cbranch_scc1 {E}
        s_waitcnt lgkmcnt(0)
        v_max3_u32 v16, v8, v9, v10
        v_max3_u32 v17, v11, v12, v13
        v_max3_u32 v16, v16, v14, v15
        v_max_u32 v16, v16, v17
        v_cmp_eq_u32 vcc, -1, v16
        s_cbranch_vccnz {L}
        {E}:
        """)
        self.stamp(3)
        a(f"""
        s_mov_b32 s{S_T0}, {LOG2E}
        s_waitcnt lgkmcnt(0)
        v_max3_f32 v8, v8, v9, v10
        v_max3_f32 v12, v11, v12, v13
        v_max3_f32 v8, v8, v14, v15
        v_max_f32 v8, v8, v12
        v_mul_f32 v162, s{S_T0}, v8
        """)
        for t in range(4): a(f"v_fma_f32 v{24+t}, v{24+t}, s{S_T0}, -v162")
        for t in range(4): a(f"v_exp_f32 v{24+t}, v{24+t}")
        for t in range(4):
            a(f"v_mov_b32_dpp v{28+t}, v{24+t} quad_perm:[1,1,3,3] row_mask:0xf bank_mask:0xf")
        for t in range(4):
            a(f"v_cvt_pk_bf16_f32 v{8+2*t}, v{24+t}, v{28+t}")
        for t in range(4):
            a(f"v_mov_b32_dpp v{9+2*t}, v{8+2*t} quad_perm:[2,2,2,2] row_mask:0xf bank_mask:0xf")
        for c in range(8):
            a(f"v_mfma_f32_16x16x32_bf16 {q(96+4*c)}, v[8:11], {q(32+4*c)}, 0")
        a(f"""
        v_add_f32 v24, v24, v25
        v_add_f32 v26, v26, v27
        v_add_f32 v24, v24, v26
        v_add_f32_dpp v24, v24, v24 quad_perm:[1,0,3,2] row_mask:0xf bank_mask:0xf
        v_add_f32_dpp v24, v24, v24 quad_perm:[2,3,0,1] row_mask:0xf bank_mask:0xf
        """)
        self.rows_allreduce("v_add_f32", 24, 25)
        a(f"""
        v_min_u32 v24, -2, v24
        v_min_u32 v162, -2, v162
        s_waitcnt vmcnt(4)
        """)
        self.transpose_pair(128, 64, 0, 4)
        self.transpose_pair(128, 64, 1, 4)
        a(f"s_waitcnt vmcnt(2)")
        self.transpose_pair(128, 64, 2, 4)
        a(f"s_waitcnt vmcnt(0)")
        self.stamp(4)
        self.transpose_pair(128, 64, 3, 4)
        for c in range(8):
            a(f"v_mfma_f32_16x16x32_bf16 {q(96+4*c)}, v[12:15], {q(64+4*c)}, {q(96+4*c)}")
        if o.trigw == 32: cnt_add(L_CNT+12)
        if o.trigf == 32: cnt_add(L_CNT+16)
        for c in range(8):
            a(f"ds_write_b32 v165, v{96+4*c} offset:{c*256}")
        a(f"ds_write_b32 v164, v24 offset:{L_LS}")
        L = a.newlabel("Lb4"); E = a.newlabel("Lb4x")
        a(f"""
        s_mov_b32 s{S_TMO}, {TMO*8}
        {L}:
        ds_read_b128 v[16:19], v7 offset:{L_LS}
        ds_read_b128 v[20:23], v7 offset:{L_LS+16}
        ds_read_b128 v[8:11], v166
        ds_read_b128 v[12:15], v166 offset:{OLS}
        s_sub_u32 s{S_TMO}, s{S_TMO}, 1
        s_cbranch_scc1 {E}
        s_waitcnt lgkmcnt(2)
        v_max3_u32 v24, v16, v17, v18
        v_max3_u32 v25, v19, v20, v21
        v_max3_u32 v24, v24, v22, v23
        v_max_u32 v24, v24, v25
        v_cmp_eq_u32 vcc, -1, v24
        s_waitcnt lgkmcnt(0)
        s_cbranch_vccnz {L}
        {E}:
        s_waitcnt lgkmcnt(0)
        """)
        self.quad_reduce(8, 12)
        self.flavor_store(S_M+6, f"buffer_store_dwordx4 v[8:11], v167, {sp(SRD_WS,4)}, 0 offen")
        self.stamp(5)
        if o.trigw == 33: cnt_add(L_CNT+12)
        if o.trigf == 33: cnt_add(L_CNT+16)
        a(f"""
        s_cmp_lg_u32 s{S_W}, 7
        s_cbranch_scc1 L_send
        v_pk_add_f32 v[16:17], v[16:17], v[18:19]
        v_pk_add_f32 v[20:21], v[20:21], v[22:23]
        s_and_b32 s{S_M+6}, s{S_M+6}, 0xffff
        v_pk_add_f32 v[16:17], v[16:17], v[20:21]
        s_mov_b32 s{S_M+7}, 0
        s_and_b32 s{S_M+8}, s{S_M+8}, 0xffff
        v_add_f32 v163, v16, v17
        s_mov_b32 s{S_M+9}, 0
        v_min_u32 v163, -2, v163
        """)
        self.flavor_store(S_M+6, f"buffer_store_dwordx2 v[162:163], v160, {sp(SRD_WS,4)}, 0 offen")
        a.label("L_send")
        self.flush_stamps(12, 1, o.swave)
        self.lite_end()
        a("s_endpgm")
        for n in chk:
            a.label(f"L_qk{n}")
            m = n + 1
            while m < min(n + 1 + ex, 32):
                step(m, wait=False); m += 1
            a(f"s_mov_b32 s{S_N}, {m}\ns_branch L_QK")

    def aux(self):
        a = self.a; o = self.o
        ror8 = "row_ror:8 row_mask:0xf bank_mask:0xf"
        ror4 = "row_ror:4 row_mask:0xf bank_mask:0xf"
        WS = sp(SRD_WS, 4)
        VZ = 167
        self.PT = 24
        a.label("L_aux")
        if o.prio: a(f"s_setprio {o.prio}")
        a(f"""
        v_mov_b32 v{VZ}, 0
        v_mov_b32 v166, 0
        s_mov_b32 s{S_CQ}, 0
        v_lshlrev_b32 v2, 2, v0
        v_mov_b32 v1, -1
        s_cmp_gt_u32 s{S_WAVE}, 1
        s_cbranch_scc1 L_noinit
        s_cmp_eq_u32 s{S_WAVE}, 1
        s_cbranch_scc1 L_init1
        ds_write_b32 v2, v{VZ}
        s_branch L_noinit
        L_init1:
        ds_write_b32 v2, v1 offset:{L_MX}
        L_noinit:
        s_getreg_b32 s{S_LOC}, hwreg(HW_REG_XCC_ID, 0, 4)
        s_waitcnt lgkmcnt(0)
        s_load_dword s{S_EPOCH}, {sp(S_WS)}, {WS_EPOCH}
        s_and_b32 s{S_KH}, s{S_IDX}, 1
        s_sub_u32 s{S_J}, s{S_IDX}, 4
        s_cmp_lt_u32 s{S_J}, 16
        s_cbranch_scc1 L_Q
        s_cmp_lt_u32 s{S_IDX}, {NEARLY}
        s_cbranch_scc1 L_M
        """)
        self.srd(SRD_A, S_X, 4096)
        self.aff(1, 0, [(0,6,4)], [(S_B,1024),(S_WAVE,256)])
        a(f"""
        v_xor_b32 v2, 256, v1
        v_xor_b32 v3, 512, v1
        v_xor_b32 v4, 768, v1
        """)
        for i in range(4): a(f"buffer_load_dword v{8+i}, v{1+i}, {sp(SRD_A,4)}, 0 offen {o.cpol}")
        self.srd(SRD_WS, S_WS, WS_SIZE)
        a("s_barrier")
        self.aff(164, WS_MOD, [(0,6,16)], [(S_B,24576),(S_WAVE,1024)])
        self.aff(163, WS_XT, [(0,5,8)], [(S_HKV,256)])
        self.aff(7, WS_HG, [(0,6,8)], [(S_HKV,8192),(S_B,2048),(S_WAVE,512)])
        a("s_waitcnt vmcnt(0)")
        for i in range(4): self.unpack(8+i, 128+2*i, 129+2*i)
        self.layernorm(128, 136)
        self.gettag()
        self.xt_publish()
        a(f"""
        s_mov_b32 s{S_T1}, 4096
        s_mov_b32 s{S_T2}, 98304
        s_mov_b32 s{S_T3}, {98304+4096}
        """)
        if o.dlyh: a(f"s_sleep {o.dlyh}")
        sets = []
        for k in range(o.pdm):
            R = 32 + 20*k
            ld = [f"buffer_load_dwordx4 {q(R+4*i)}, v164, {WS}, {so_} offen {o.ppol}"
                  for i, so_ in enumerate(("0", f"s{S_T2}", f"s{S_T1}", f"s{S_T3}"))]
            ld.append(f"buffer_load_dwordx2 {q(R+16,2)}, v163, {WS}, 0 offen {o.ppol}")
            sets.append((ld, [R+1+2*i for i in range(8)] + [R+1 if o.abl & 16 else R+17]))
        def mdone(k):
            R = 32 + 20*k
            for i in range(2):
                a(f"v_add_f32 v{136+i}, v{R+8+2*i}, v{R+12+2*i}")
                a(f"v_add_f32 v{138+i}, v{R+2*i}, v{R+4+2*i}")
            a(f"v_cmp_ne_u32 vcc, s{S_LOC}, v{R+16}" if not o.abl & 16 else "s_mov_b64 vcc, 0")
        self.poll_pipe(sets, mdone, o.gapm, o.slm, rec=9)
        self.stamp(1)
        self.roundn(136, 24, 4)
        a(f"""
        s_cmp_eq_u64 vcc, 0
        s_cselect_b32 s{S_LOC}, {1 if o.local else 0}, 0
        v_add_f32 v136, 1.0, v136
        v_add_f32 v137, 1.0, v137
        s_add_u32 s{S_T1}, s{S_TAG}, s{S_LOC}
        """)
        self.roundn(136, 24, 2)
        self.flavor_masks(S_M+8, "0x55555555", "0x55555555")
        self.modulate(128, 136, 138, 24, 16, n=2)
        a(f"""
        v_mov_b32 v17, s{S_T1}
        v_mov_b32 v19, s{S_T1}
        v_mov_b32_dpp v18, v16 quad_perm:[1,1,3,3] row_mask:0xf bank_mask:0xf
        s_branch L_pub
        """)

        a.label("L_M")
        self.srd(SRD_B, S_WM, 512*6144)
        a(f"""
        s_sub_u32 s{S_T0}, s{S_IDX}, 16
        s_cmp_lt_u32 s{S_IDX}, 4
        s_cselect_b32 s{S_T0}, s{S_IDX}, s{S_T0}
        s_lshr_b32 s{S_T0}, s{S_T0}, 1
        s_lshl_b32 s3, s{S_T0}, 3
        s_add_u32 s3, s3, s{S_HKV}
        """)
        self.srd(SRD_A, S_C, 4096)
        self.aff(1, 0, [(0,6,8)], [(S_WAVE,1024),(S_KH,512)])
        a(f"buffer_load_dwordx2 v[8:9], v1, {sp(SRD_A,4)}, 0 offen {o.cpol}")
        self.aff(2, 0, [(3,3,8*6144),(0,3,16)], [(3,128),(S_WAVE,64*6144),(S_KH,256*6144)])
        if not o.abl & 4: self.tile_loads(2, SRD_B, [j*6144 for j in range(8)], 32, o.wpol)
        self.srd(SRD_WS, S_WS, WS_SIZE)
        a("s_barrier")
        self.aff(5, L_AV, [(0,6,8)], [(S_WAVE,AVS)])
        self.aff(7, WS_MOD, [(4,2,24576),(0,4,8)], [(3,512),(S_WAVE,128),(S_KH,98304)])
        self.mq_addr()
        a("s_waitcnt vmcnt(8)")
        for i in range(2): self.unpack(8+i, 16+2*i, 17+2*i)
        a(f"s_mov_b32 s{S_T0}, {LOG2E ^ 0x80000000}")
        for i in range(4): a(f"v_mul_f32 v{24+i}, s{S_T0}, v{16+i}")
        for i in range(4): a(f"v_exp_f32 v{24+i}, v{24+i}")
        for i in range(4): a(f"v_add_f32 v{24+i}, 1.0, v{24+i}")
        for i in range(4): a(f"v_rcp_f32 v{24+i}, v{24+i}")
        for i in range(4): a(f"v_mul_f32 v{16+i}, v{16+i}, v{24+i}")
        for i in range(2): a(f"v_cvt_pk_bf16_f32 v{28+i}, v{16+2*i}, v{17+2*i}")
        a(f"ds_write_b64 v5, v[28:29]")
        self.lds_arrive(L_CNT)
        for e in range(4):
            a(f"s_waitcnt vmcnt({6-2*e})")
            self.transpose_pair(32, 96, e, 4)
        self.gettag()
        self.xt_publish()
        a(f"s_mov_b32 s{S_LOC}, 0\ns_branch L_MQ")

        a.label("L_Q")
        self.srd(SRD_B, S_WQ, 512*8192)
        a(f"""
        s_lshl_b32 s3, s{S_HKV}, 3
        s_lshr_b32 s{S_T0}, s{S_J}, 1
        s_add_u32 s3, s3, s{S_T0}
        """)
        self.aff(2, 0, [(3,3,8*8192),(0,3,16)], [(3,128),(S_WAVE,64*8192),(S_KH,256*8192)])
        if not o.abl & 8: self.tile_loads(2, SRD_B, [j*8192 for j in range(8)], 32, o.wpol)
        self.srd(SRD_WS, S_WS, WS_SIZE)
        a("s_barrier")
        a(f"""
        s_lshl_b32 s{S_CQ}, s{S_J}, 2
        s_add_u32 s{S_CQ}, s{S_CQ}, s{S_WAVE}        ; r
        s_lshr_b32 s{S_T0}, s{S_CQ}, 4
        s_and_b32 s{S_T1}, s{S_HKV}, 1
        s_and_b32 s{S_T2}, s{S_CQ}, 15
        """)
        self.aff(166, WS_DP, [(2,4,8192),(0,2,16)], [(S_T0,2048),(S_T1,1024),(S_T2,64)])
        a(f"""
        s_lshr_b32 s{S_T0}, s{S_HKV}, 1
        s_cmp_lg_u32 s{S_T0}, {'99' if o.abl & 2 else 's%d' % S_WAVE}
        s_cbranch_scc1 L_noclr
        v_mov_b32 v12, -1
        v_mov_b32 v13, -1
        v_mov_b32 v14, -1
        v_mov_b32 v15, -1
        """)
        for t in range(4):
            a(f"s_mov_b32 s{S_T0}, {t*16*8192}")
            if t == 3: a("s_mov_b32 exec_hi, 0")
            a(f"buffer_store_dwordx4 v[12:15], v166, {WS}, s{S_T0} offen sc1")
        a(f"""
        s_mov_b64 exec, -1
        L_noclr:
        """)
        self.aff(7, WS_QG, [(4,2,65536),(0,4,8)], [(3,512),(S_WAVE,128),(S_KH,32768)])
        self.aff(5, L_AV, [(0,6,8)], [(S_WAVE,AVS)])
        self.aff(164, WS_HG, [(0,6,16)], [(S_HKV,8192),(S_WAVE,2048),(S_KH,1024)])
        self.mq_addr()
        self.gettag()
        self.xt_publish()
        a("s_waitcnt vmcnt(0)")
        self.transpose(32, 96)
        sets = [([f"buffer_load_dwordx4 {q(32+4*k)}, v164, {WS}, 0 offen {o.ppol}"], [33+4*k, 35+4*k]) for k in range(o.pdh)]
        def hdone(k):
            a(f"v_mov_b32 v{33+4*k}, v{34+4*k}\nds_write_b64 v5, {q(32+4*k,2)}")
        if o.trigh: self.lds_wait(L_CNT+28, 1, VZ, 1, sleep=4)
        self.poll_pipe(sets, hdone, o.gaph, 0, rec=9, or1=True)
        self.lds_arrive(L_CNT)
        a(f"""
        v_and_b32 v24, 1, v24
        v_readfirstlane_b32 s{S_LOC}, v24
        """)
        a.label("L_MQ")
        self.lds_wait(L_CNT, 4, VZ, 1, sleep=0)
        self.stamp(1)
        self.gemv_mfma(2, 4, 165, 8, [96], [128+4*c for c in range(8)])
        self.lds_arrive(L_CNT+4)
        self.flavor_masks(S_M+8, "0x55555555", "0x55555555")
        a(f"""
        s_add_u32 s{S_T1}, s{S_TAG}, s{S_LOC}
        v_mov_b32 v17, s{S_T1}
        v_mov_b32 v19, s{S_T1}
        """)
        self.lds_wait(L_CNT+4, 12, VZ, 1, sleep=0)
        self.gemv_reduce(6, 8)
        a(f"""
        v_mov_b32 v16, v8
        v_mov_b32_dpp v18, v8 quad_perm:[1,1,3,3] row_mask:0xf bank_mask:0xf
        """)
        a.label("L_pub")
        self.flavor_store(S_M+8, f"buffer_store_dwordx4 v[16:19], v7, {WS}, 0 offen")
        self.stamp(2)
        self.lds_arrive(L_CNT+24)

        self.aff(4, WS_QG, [(0,6,16)], [(S_B,65536),(S_HKV,4096),(S_WAVE,1024)])
        self.aff(6, L_QF, [(0,6,4)], [(S_WAVE,256)])
        a(f"s_mov_b32 s{S_T2}, 32768")
        sets = []
        for k in range(o.pdq):
            R = 128 + 8*k
            sets.append(([f"buffer_load_dwordx4 {q(R)}, v4, {WS}, 0 offen {o.ppol}",
                          f"buffer_load_dwordx4 {q(R+4)}, v4, {WS}, s{S_T2} offen {o.ppol}"], [R+1, R+3, R+5, R+7]))
        def qdone(k):
            R = 128 + 8*k
            a(f"v_add_f32 v12, v{R}, v{R+4}\nv_add_f32 v13, v{R+2}, v{R+6}")
        if o.trigq: self.lds_wait(L_CNT+20, o.trigqn, VZ, 1, sleep=4)
        self.poll_pipe(sets, qdone, o.gapq, o.slq, rec=10, or1=True)
        a(f"""
        v_and_b32 v24, 1, v24
        v_cvt_pk_bf16_f32 v12, v12, v13
        ds_write_b32 v{VZ}, v24 offset:{L_FLAG}
        ds_write_b32 v6, v12
        v_readfirstlane_b32 s{S_LOC}, v24
        """)
        self.lds_arrive(L_CNT+8)
        self.stamp(3)
        a(f"""
        s_cmp_lt_u32 s{S_J}, 16
        s_cbranch_scc1 L_Rpre
        s_sub_u32 s3, s{S_IDX}, 20
        s_cmp_ge_u32 s3, 7
        s_waitcnt vmcnt(0)
        s_cbranch_scc1 L_fin2
        """)
        a(f"""
        s_mul_i32 s{S_T0}, s{S_HKV}, 7
        s_add_u32 s3, s3, s{S_T0}                   ; f
        s_and_b32 s{S_T2}, s{S_WAVE}, 1
        s_lshr_b32 s{S_T3}, s{S_WAVE}, 1
        s_cmp_eq_u32 s{S_T2}, 0
        s_cselect_b32 s{SRD_A}, s{S_WG}, s{S_WU}
        s_cselect_b32 s{SRD_A+1}, s{S_WG+1}, s{S_WU+1}
        s_mov_b32 s{SRD_A+2}, {512*3584}
        s_mov_b32 s{SRD_A+3}, 0x20000
        """)
        self.srd(SRD_B, S_WD, 1792*1024)
        self.aff(2, 0, [(2,4,8*3584),(0,2,16)], [(S_T3,256*3584),(3,64)])
        self.aff(3, 0, [(4,2,8192),(0,4,16)], [(3,32768),(S_WAVE,256)])
        self.aff(4, L_AV, [(0,2,AVS),(2,2,16),(4,2,64)], [(S_T3,512)])
        self.aff(5, L_PART, [(2,2,PS),(0,2,16)], [(S_T3,4*PS),(S_T2,512)])
        self.aff(6, L_PART, [(4,2,2*PS),(0,4,64)], [(S_WAVE,16)])
        self.aff(7, WS_X1, [(0,6,16)], [(S_HKV,8192),(S_WAVE,2048)])
        self.aff(144, L_AV, [(0,6,8)], [(S_WAVE,AVS)])
        self.aff(145, L_ACT, [(4,2,64),(0,3,2)], [(S_WAVE,16)])
        self.aff(151, L_ACT, [(0,2,64),(4,2,16)], [])
        a(f"""
        v_mov_b32 v150, {L_ZERO}
        v_bfe_u32 v8, v0, 2, 2
        """)
        for x in range(4):
            a(f"v_cmp_eq_u32 vcc, {x}, v8\nv_cndmask_b32 v{146+x}, v150, v151, vcc")
        self.aff(150, WS_DP, [(0,4,64),(4,2,16)], [(3,8192),(S_WAVE,2048)])
        self.aff(151, WS_MOD + 1536*8, [(0,6,32)], [(S_WAVE,24576)])
        a(f"""
        v_add_u32 v152, 4096, v151
        s_mov_b32 s{S_M+12}, 0x00f0000f
        s_mov_b32 s{S_M+13}, 0xf0000f00
        s_mov_b32 s{S_T2}, 98304
        """)
        self.lds_wait(L_CNT+16, 8, VZ, 1, sleep=2)
        self.stamp(4)
        loads = []
        for s_, va in enumerate((151, 152)):
            for p, so_ in enumerate(("0", f"s{S_T2}")):
                for z in range(4):
                    loads.append(f"buffer_load_dwordx4 {q(64+32*s_+16*p+4*z)}, v{va}, {WS}, {so_} offen offset:{(z>>1)*2048+(z&1)*16} sc1")
        self.poll_tagged(loads, [65+2*i for i in range(32)],
                         pre=lambda: self.tile_loads(2, SRD_A, [j*3584 for j in range(8)], 32, o.fpol), wait0=8)
        for i in range(8):
            a(f"v_add_f32 v{136+i}, v{64+2*i}, v{80+2*i}")
            a(f"v_add_f32 v{128+i}, v{96+2*i}, v{112+2*i}")
        self.tile_loads(2, SRD_A, [(128+j)*3584 for j in range(8)], 64, o.fpol)
        self.tile_loads(3, SRD_B, [j*1024 for j in range(8)], 96, o.wpol)
        self.roundn(128, 24, 8); self.roundn(136, 24, 8)
        for i in range(8): a(f"v_add_f32 v{128+i}, 1.0, v{128+i}")
        self.roundn(128, 24, 8)
        a("s_waitcnt vmcnt(16)")
        self.transpose_inplace(32, 1, 2)
        a("s_waitcnt vmcnt(8)")
        self.transpose_inplace(64, 1, 2)
        a("s_waitcnt vmcnt(0)")
        self.stamp(5)
        self.transpose_inplace(96, 1, 2)
        self.stamp(6)
        self.poll_tagged([f"buffer_load_dwordx4 v[8:11], v7, {WS}, 0 offen sc1",
                          f"buffer_load_dwordx4 v[12:15], v7, {WS}, 0 offen offset:1024 sc1"], [9, 11, 13, 15], sleepy=False)
        self.stamp(9)
        for i in range(4): self.unpack(8+2*i, 152+2*i, 153+2*i)
        self.layernorm(152, 8)
        self.modulate(152, 128, 136, 8, 12)
        a(f"""
        ds_write_b64 v144, v[12:13]
        ds_write_b64 v144, v[14:15] offset:512
        s_waitcnt lgkmcnt(0)
        s_barrier
        """)
        self.gemv_mfma(4, 4, 5, 8, [32, 64], [128, 132, 136, 140, 16, 20, 24, 28])
        a(f"""
        s_waitcnt lgkmcnt(0)
        s_barrier
        """)
        self.gemv_reduce(6, 8)
        self.round1(8)
        a(f"""
        v_mov_b32 v11, 0x3d372713                    ; 0.044715
        v_mul_f32 v10, v8, v8
        v_mov_b32_dpp v9, v8 {ror8}
        v_fma_f32 v10, v10, v11, 1.0
        v_mul_f32 v10, v10, v8                       ; x + 0.044715 x^3
        v_mul_f32 v10, 0xc0135761, v10               ; -2*sqrt(2/pi)*log2e
        v_exp_f32 v10, v10
        v_add_f32 v10, 1.0, v10
        v_rcp_f32 v10, v10
        v_mul_f32 v8, v8, v10                        ; gelu
        """)
        self.round1(8)
        a(f"""
        v_mul_f32 v8, v8, v9
        v_cvt_pk_bf16_f32 v8, v8, v8
        s_mov_b32 exec_lo, 0x00ff00ff
        s_mov_b32 exec_hi, 0x00ff00ff
        ds_write_b16 v145, v8
        s_mov_b64 exec, -1
        s_waitcnt lgkmcnt(0)
        s_barrier
        """)
        for x in range(4): a(f"ds_read_b128 {q(8+4*x)}, v{146+x}")
        for x in range(4):
            a(f"s_waitcnt lgkmcnt({3-x})")
            for hf in range(2):
                c = 4*hf + x
                a(f"v_mfma_f32_16x16x32_bf16 {q(128+4*hf)}, {q(8+4*x)}, {q(96+4*c)}, {'0' if x == 0 else q(128+4*hf)}")
        for i in range(4): a(f"v_min_u32 v{128+i}, -2, v{128+i}")
        a(f"buffer_store_dwordx4 v[128:131], v150, {WS}, 0 offen sc1")
        for i in range(4): a(f"v_min_u32 v{132+i}, -2, v{132+i}")
        a(f"buffer_store_dwordx4 v[132:135], v150, {WS}, 0 offen offset:1024 sc1")
        self.stamp(10)
        a("s_branch L_fin2")

        a.label("L_Rpre")
        self.srd(SRD_B, S_X, 4096)
        self.srd(SRD_A, S_WO, 4096*1024)
        a(f"""
        s_and_b32 s{S_T1}, s{S_J}, 3
        s_lshr_b32 s{S_T2}, s{S_J}, 2
        s_lshr_b32 s{S_T3}, s{S_HKV}, 2
        """)
        self.aff(20, WS_MOD + 1024*8, [(0,1,512)], [(S_T2,1024),(S_T3,98304)])
        self.aff(2, 0, [(4,1,65536),(5,1,1024),(0,4,16)], [(S_HKV,4*131072),(S_T1,131072),(S_T2,256),(S_WAVE,2048)])
        self.aff(4, WS_OP, [(2,2,4096),(4,2,128),(0,2,16)], [(S_HKV,65536),(S_T1,16384),(S_WAVE,512)])
        self.aff(5, WS_ST, [(0,4,16)], [(S_HKV,1024),(S_T1,256)])
        self.aff(6, L_PW, [(0,4,144),(4,2,16)], [(S_WAVE,PWS)])
        self.aff(7, L_PW, [(3,3,144),(0,3,16)], [(S_WAVE,8*144)])
        self.aff(3, WS_AP, [(0,6,16)], [(S_HKV,4*8192),(S_T1,8192),(S_T2,2048),(S_WAVE,1024)])
        self.aff(21, 0, [(4,2,1024),(0,3,2)], [(S_CQ,16)])
        self.aff(22, WS_MOD + 1024*8, [(4,2,24576),(3,1,98304),(0,3,8)], [(S_CQ,64)])
        a(f"s_and_b32 s{S_T3}, s{S_HKV}, 1")
        self.aff(163, WS_AP, [(3,3,8192),(0,3,16)], [(S_CQ,128)])
        self.aff(164, WS_X1, [(4,2,2048),(2,1,16)], [(S_HKV,8192),(S_CQ,32)])
        self.aff(165, 0, [(4,2,1024)], [(S_CQ,16),(S_T3,8)])
        self.flavor_masks(S_M+8, "0x00110011", "0x00110011")
        a(f"s_mov_b32 s{S_T2}, {1536*8}")
        self.lds_wait(L_CNT+12, 8, VZ, 1, sleep=2)
        self.stamp(4)
        self.tile_loads(2, SRD_A, [j*8192 for j in range(8)], 32, o.wpol)
        a(f"buffer_load_ushort v160, v21, {sp(SRD_B,4)}, 0 offen")
        def wtr():
            for e in range(4):
                a(f"s_waitcnt vmcnt({4+6-2*e})")
                self.transpose_pair(32, 96, e, 4)
            for i in range(16): a(f"v_mov_b32 v{144+i}, 0")
        self.poll_tagged([f"buffer_load_dwordx2 v[8:9], v22, {WS}, 0 offen sc1",
                          f"buffer_load_dwordx2 v[10:11], v22, {WS}, s{S_T2} offen sc1",
                          f"buffer_load_dwordx2 v[12:13], v20, {WS}, 0 offen sc1"], [9, 11, 13], pre=wtr)
        a(f"""
        v_lshlrev_b32 v160, 16, v160                ; x
        v_add_f32_dpp v161, v8, v8 {ror8}
        v_add_f32_dpp v162, v10, v10 {ror8}
        """)
        self.round2(161, 162, 2)
        if not o.rec: self.stamp(9)
        groups = [([f"buffer_load_dwordx4 {q(128+8*e+4*z)}, v4, {WS}, 0 offen offset:{e*2048+z*64} sc1" for z in range(2)],
                   range(128+8*e, 136+8*e), "-1") for e in range(2)]
        groups.append(([f"buffer_load_dwordx4 v[8:11], v5, {WS}, 0 offen sc1"], range(8, 12), "-1"))
        self.poll_sent(groups, 16)
        self.stamp(5)
        bc = "op_sel_hi:[1,0]"
        a(f"""
        v_max_f32 v16, v8, v10
        v_max_f32_dpp v16, v16, v16 {ror8}
        v_max_f32_dpp v16, v16, v16 {ror4}
        v_sub_f32 v8, v8, v16
        v_sub_f32 v10, v10, v16
        v_exp_f32 v8, v8
        v_exp_f32 v10, v10
        v_mul_f32 v16, v8, v9
        v_fmac_f32 v16, v10, v11
        """)
        for i in range(4): a(f"v_pk_mul_f32 {q(128+2*i,2)}, {q(128+2*i,2)}, v[8:9] {bc}")
        a(f"v_add_f32_dpp v16, v16, v16 {ror8}")
        for i in range(4): a(f"v_pk_fma_f32 {q(128+2*i,2)}, {q(136+2*i,2)}, v[10:11], {q(128+2*i,2)} op_sel_hi:[1,0,1]")
        a(f"v_add_f32_dpp v16, v16, v16 {ror4}")
        for i in range(8): a(f"v_add_f32_dpp v{128+i}, v{128+i}, v{128+i} {ror8}")
        a(f"v_rcp_f32 v16, v16")
        for i in range(8): a(f"v_add_f32_dpp v{128+i}, v{128+i}, v{128+i} {ror4}")
        for i in range(4): a(f"v_pk_mul_f32 {q(128+2*i,2)}, {q(128+2*i,2)}, v[16:17] {bc}")
        for x in range(4):
            m = 0x000f000f << (4*x)
            a(f"s_mov_b32 exec_lo, {m}\ns_mov_b32 exec_hi, {m}")
            for i in range(4): a(f"v_cvt_pk_bf16_f32 v{144+4*x+i}, v{128+2*i}, v{129+2*i}")
        a("s_mov_b64 exec, -1")
        for x in range(4):
            for hf in range(2):
                D = 16 + 4*hf
                a(f"v_mfma_f32_16x16x32_bf16 {q(D)}, {q(144+4*x)}, {q(96+4*(4*hf+x))}, {'0' if x == 0 else q(D)}")
        for hf in range(2): a(f"ds_write_b128 v6, {q(16+4*hf)} offset:{hf*64}")
        a(f"""
        s_mov_b32 s{S_T1}, {8*8192}
        s_mov_b32 s{S_T2}, {16*8192}
        s_mov_b32 s{S_T3}, {24*8192}
        s_cmp_ge_u32 s{S_WAVE}, 2
        s_waitcnt lgkmcnt(0)
        s_barrier
        s_cbranch_scc1 L_R
        """)
        for k in range(4): a(f"ds_read_b128 {q(8+4*k)}, v7 offset:{k*PWS}")
        a(f"""
        s_waitcnt lgkmcnt(2)
        v_pk_add_f32 v[8:9], v[8:9], v[12:13]
        v_pk_add_f32 v[10:11], v[10:11], v[14:15]
        s_waitcnt lgkmcnt(0)
        v_pk_add_f32 v[16:17], v[16:17], v[20:21]
        v_pk_add_f32 v[18:19], v[18:19], v[22:23]
        v_pk_add_f32 v[8:9], v[8:9], v[16:17]
        v_pk_add_f32 v[10:11], v[10:11], v[18:19]
        """)
        for i in range(4): a(f"v_min_u32 v{8+i}, -2, v{8+i}")
        a(f"buffer_store_dwordx4 v[8:11], v3, {WS}, 0 offen sc1")
        self.stamp(6)
        a.label("L_R")
        so = ["0", f"s{S_T1}", f"s{S_T2}", f"s{S_T3}"]
        self.poll_sent([([f"buffer_load_dwordx4 {q(32+4*t)}, v163, {WS}, {so[t]} offen sc1"], range(32+4*t, 36+4*t), "-1")
                        for t in range(4)], 16)
        self.stamp(7)
        self.sum4q(32, 8)
        self.scatter4(8)
        a(f"v_add_f32_dpp v8, v8, v8 {ror8}")
        self.round1(8)
        a("v_mul_f32 v8, v8, v161")
        self.round1(8)
        a("v_add_f32 v8, v8, v160")
        a(f"v_mov_b32 v160, v8")
        self.pack4(8)
        self.flavor_store(S_M+8, f"buffer_store_dwordx4 v[8:11], v164, {WS}, 0 offen")
        self.stamp(8)
        a(f"""
        s_lshr_b32 s{S_T0}, s{S_HKV}, 1
        s_cmp_lg_u32 s{S_T0}, s{S_WAVE}
        s_cbranch_scc1 L_fin2
        s_mov_b32 s{S_T1}, {16*8192}
        s_mov_b32 s{S_T2}, {32*8192}
        s_mov_b32 s{S_T3}, {48*8192}
        v_mov_b32 v44, 0
        v_mov_b32 v45, 0
        v_mov_b32 v46, 0
        v_mov_b32 v47, 0
        s_and_b32 s{S_U}, s{S_HKV}, 1
        s_lshl_b32 s{S_U}, s{S_U}, 2
        s_lshl_b32 s{S_U}, 0x00010001, s{S_U}
        """)
        self.round1(160)
        self.srd(SRD_A, S_OUT, 4096)
        self.poll_sent([([f"buffer_load_dwordx4 {q(32+4*t)}, v166, {WS}, {so[t]} offen sc1"],
                         range(32+4*t, 36+4*t), "-1" if t < 3 else ("-1", "0")) for t in range(4)], 16)
        self.sum4q(32, 8)
        self.scatter4(8)
        a(f"""
        v_add_f32_dpp v8, v8, v8 {ror8}
        v_add_f32_dpp v8, v8, v8 {ror4}
        """)
        self.round1(8)
        a("v_mul_f32 v8, v8, v162")
        self.round1(8)
        a(f"""
        v_add_f32 v8, v8, v160
        v_mov_b32_dpp v9, v8 quad_perm:[1,1,3,3] row_mask:0xf bank_mask:0xf
        v_cvt_pk_bf16_f32 v8, v8, v9
        v_mov_b32_dpp v9, v8 quad_perm:[2,2,2,2] row_mask:0xf bank_mask:0xf
        s_mov_b32 exec_lo, s{S_U}
        s_mov_b32 exec_hi, s{S_U}
        buffer_store_dwordx2 v[8:9], v165, {sp(SRD_A,4)}, 0 offen
        s_cmp_lg_u32 s2, 32
        s_cbranch_scc1 L_fin
        s_mov_b64 exec, 1
        s_add_u32 s{S_T0}, s{S_EPOCH}, 1
        v_mov_b32 v1, {WS_EPOCH}
        v_mov_b32 v2, s{S_T0}
        buffer_store_dword v2, v1, {WS}, 0 offen sc1
        """)
        a.label("L_fin")
        self.stamp(11)
        a.label("L_fin2")
        self.flush_stamps(12, 0, 0)
        self.lite_end()
        a.label("L_end")
        a("s_endpgm")

    def sum4q(self, R, D):
        self.a(f"""
        v_pk_add_f32 {q(R,2)}, {q(R,2)}, {q(R+4,2)}
        v_pk_add_f32 {q(R+2,2)}, {q(R+2,2)}, {q(R+6,2)}
        v_pk_add_f32 {q(R+8,2)}, {q(R+8,2)}, {q(R+12,2)}
        v_pk_add_f32 {q(R+10,2)}, {q(R+10,2)}, {q(R+14,2)}
        v_pk_add_f32 {q(D,2)}, {q(R,2)}, {q(R+8,2)}
        v_pk_add_f32 {q(D+2,2)}, {q(R+2,2)}, {q(R+10,2)}
        """)

    def mq_addr(self):
        self.aff(4, L_AV, [(0,2,AVS),(2,1,16),(4,2,32)], [(S_WAVE,128)])
        self.aff(165, L_PART, [(3,1,PS),(0,3,16)], [(S_WAVE,2*PS)])
        self.aff(6, L_PART, [(4,2,2*PS),(0,3,128),(3,1,16)], [(S_WAVE,32)])
        self.a(f"""
        s_mov_b32 s{S_M+12}, 0xff0000ff
        s_mov_b32 s{S_M+13}, 0
        """)

    def lds_arrive(self, off, wait=False):
        self.a(f"""
        v_mov_b32 v1, 1
        s_mov_b64 exec, 1
        ds_add_u32 v167, v1 offset:{off}
        s_mov_b64 exec, -1
        """)

    def build(self):
        if self.o.stamps:
            for k in range(1, 12):
                self.a(f"s_mov_b64 {sp(S_ST+2*k)}, 0")
        self.prologue()
        self.stream()
        self.aux()
        return self.a.text()


NEARLY = 28

def header():
    ref = open("adaLN_cond__sliding_block_cached__geglu_ffn__decode.s.ref").read().split("\n")
    out = []
    for l in ref:
        if l.startswith("; @launch"): break
        out.append(l)
    return "\n".join(out) + "\n"


def main():
    ap = argparse.ArgumentParser()
    ap.add_argument("out")
    ap.add_argument("--stamps", action="store_true")
    ap.add_argument("--lite", action="store_true")
    ap.add_argument("--depth", type=int, default=4)
    ap.add_argument("--tailfree", type=int, default=0)
    ap.add_argument("--nq", type=int, default=0)
    ap.add_argument("--chkstep", type=int, default=1)
    ap.add_argument("--qkextra", type=int, default=1)
    ap.add_argument("--trigw", type=int, default=31)
    ap.add_argument("--trigf", type=int, default=33)
    ap.add_argument("--pdm", type=int, default=1)
    ap.add_argument("--pdq", type=int, default=2)
    ap.add_argument("--gapm", type=int, default=14)
    ap.add_argument("--gapq", type=int, default=14)
    ap.add_argument("--slm", type=int, default=0)
    ap.add_argument("--slq", type=int, default=0)
    ap.add_argument("--trigq", type=int, default=12)
    ap.add_argument("--trigqn", type=int, default=1)
    ap.add_argument("--rec", type=int, default=0)
    ap.add_argument("--ppol", default="sc1")
    ap.add_argument("--pause", type=int, default=8)
    ap.add_argument("--pauseoff", type=int, default=24)
    ap.add_argument("--pausecnt", type=int, default=4)
    ap.add_argument("--pdh", type=int, default=3)
    ap.add_argument("--gaph", type=int, default=12)
    ap.add_argument("--dlyh", type=int, default=0)
    ap.add_argument("--trigh", type=int, default=0)
    ap.add_argument("--abl", type=int, default=0)
    ap.add_argument("--swave", type=int, default=4)
    ap.add_argument("--cpol", default="")
    ap.add_argument("--xtpol", default="sc1")
    ap.add_argument("--prio", type=int, default=0)
    ap.add_argument("--kvpol", default="nt")
    ap.add_argument("--wpol", default="nt")
    ap.add_argument("--fpol", default="nt")
    ap.add_argument("--sleep", type=int, default=0)
    ap.add_argument("--local", type=int, default=1)
    o = ap.parse_args()
    body = G(o).build()
    try: hd = header()
    except Exception: hd = "; generated\n"
    open(o.out, "w").write(kernel_file([(KN, body, 168, 102, 168)], [(KN, 256, 768, LDS_BYTES)], header=hd))


if __name__ == "__main__":
    main()
```

```python
import sys, argparse
from asmlib import *

WS_EPOCH = 0x0
WS_XT = 0xE000
WS_OP = 0x20000
WS_ST = 0xA0000
WS_AP = 0xB0000
WS_DP = 0xF0000
WS_X1 = 0x160000
WS_HG = 0x170000
WS_MOD = 0x180000
WS_QG = 0x1C0000
WS_STAMP = 0x200000
WS_SC = 0x300000
WS_SIZE = 0x400000
L_CNT = 0x0
L_ZERO = 0x40
L_FLAG = 0x80
L_QF = 0x100
L_MX = 0x500
L_LS = 0x580
L_ACT = 0x600
L_AV = 0x800
AVS = 1024 + 64
L_PART = 0x1A00
PS = 1024 + 16
L_OL = 0x4000
OLS = 2048 + 32
L_PW = 0x8400
PWS = 16*144
LDS_BYTES = L_PW + 4*PWS

LOG2E = 0x3FB8AA3B
SCALE = 0x3DB504F3
TMO = 40000

S_X, S_K, S_V, S_WQ, S_WO, S_WG, S_WU = 4, 6, 8, 10, 12, 16, 18
S_WD, S_C, S_WM, S_OUT, S_DBG, S_WS = 20, 22, 24, 26, 28, 30
S_WAVE, S_HKV, S_IDX, S_B, S_CH = 32, 33, 34, 35, 36
S_TAG, S_EPOCH, S_TMO = 37, 38, 39
SRD_WS = 40
SRD_A = 44
SRD_B = 48
S_PLO, S_PHI = 52, 53
S_T0, S_T1, S_T2, S_T3 = 54, 55, 56, 57
S_M = 58
S_HI = 72
S_LOC = 73
S_ST = 74
S_CQ, S_TGT = 98, 99
S_U = 100
S_KH, S_J = 14, 15
S_M24 = 28
S_SEL = 29


def q(r, n=4): return f"v[{r}:{r+n-1}]"
def sp(r, n=2): return f"s[{r}:{r+n-1}]"


class G:
    def __init__(self, o):
        self.o = o
        self.a = Asm()
        self.nst = 0

    def stamp(self, k):
        if self.o.stamps or (self.o.lite and k == 0):
            self.a(f"s_memrealtime {sp(S_ST+2*k)}")

    def lite_end(self):
        if not self.o.lite: return
        self.a(f"""
        s_memrealtime {sp(S_ST+2)}
        s_mov_b64 exec, 1
        s_lshl_b32 s{S_T0}, s2, 8
        s_lshl_b32 s{S_T1}, s{S_WAVE}, 4
        s_add_u32 s{S_T0}, s{S_T0}, s{S_T1}
        s_add_u32 s{S_T0}, s{S_T0}, {WS_STAMP}
        v_mov_b32 v1, s{S_T0}
        s_waitcnt lgkmcnt(0)
        v_mov_b32 v2, s{S_ST}
        v_mov_b32 v3, s{S_ST+1}
        v_mov_b32 v4, s{S_ST+2}
        v_mov_b32 v5, s{S_ST+3}
        buffer_store_dwordx4 v[2:5], v1, {sp(SRD_WS,4)}, 0 offen
        """)

    def flush_stamps(self, n, slot, cond_wave):
        if not self.o.stamps: return
        a = self.a
        a(f"""
        s_waitcnt lgkmcnt(0)
        s_mov_b64 exec, -1
        s_lshl_b32 s{S_T0}, s2, 11
        s_lshl_b32 s{S_T1}, s{S_WAVE}, 7
        s_add_u32 s{S_T0}, s{S_T0}, s{S_T1}
        s_add_u32 s{S_T0}, s{S_T0}, {WS_STAMP}
        v_mbcnt_lo_u32_b32 v1, -1, 0
        v_lshlrev_b32 v1, 2, v1
        v_add_u32 v1, s{S_T0}, v1
        v_mov_b32 v2, 0
        """)
        for k in range(2*n): a(f"v_writelane_b32 v2, s{S_ST+k}, {k}")
        a(f"""
        s_mov_b32 exec_hi, 0
        buffer_store_dword v2, v1, {sp(SRD_WS,4)}, 0 offen
        """)

    def srd(self, dst, ptr, size):
        self.a(f"""
        s_mov_b32 s{dst}, s{ptr}
        s_mov_b32 s{dst+1}, s{ptr+1}
        s_mov_b32 s{dst+2}, {size}
        s_mov_b32 s{dst+3}, 0x20000
        """)

    def transpose(self, src, dst, nrows=8):
        a = self.a
        ne = nrows // 2
        for e in range(ne):
            self.transpose_pair(src, dst, e, ne)

    def transpose_pair(self, src, dst, e, ne):
        a = self.a
        for d in range(4):
            lo, hi = src + 8*e + d, src + 8*e + 4 + d
            a(f"v_perm_b32 v{dst + (2*d)*ne + e}, v{hi}, v{lo}, s{S_PLO}")
            a(f"v_perm_b32 v{dst + (2*d+1)*ne + e}, v{hi}, v{lo}, s{S_PHI}")

    def transpose_inplace(self, b, t0, t1):
        a = self.a
        R = lambda row, d: b + 4*row + d
        for e in range(4):
            a(f"v_perm_b32 v{t0}, v{R(2*e+1,e)}, v{R(2*e,e)}, s{S_PLO}")
            a(f"v_perm_b32 v{R(2*e+1,e)}, v{R(2*e+1,e)}, v{R(2*e,e)}, s{S_PHI}")
            a(f"v_mov_b32 v{R(2*e,e)}, v{t0}")
            for d in range(e+1, 4):
                a(f"v_perm_b32 v{t0}, v{R(2*e+1,d)}, v{R(2*e,d)}, s{S_PLO}")
                a(f"v_perm_b32 v{t1}, v{R(2*e+1,d)}, v{R(2*e,d)}, s{S_PHI}")
                a(f"v_perm_b32 v{R(2*e,d)}, v{R(2*d+1,e)}, v{R(2*d,e)}, s{S_PLO}")
                a(f"v_perm_b32 v{R(2*e+1,d)}, v{R(2*d+1,e)}, v{R(2*d,e)}, s{S_PHI}")
                a(f"v_mov_b32 v{R(2*d,e)}, v{t0}")
                a(f"v_mov_b32 v{R(2*d+1,e)}, v{t1}")

    def rows_allreduce(self, op, r, t):
        self.a(f"""
        v_mov_b32 v{t}, v{r}
        v_permlane16_swap_b32 v{r}, v{t}
        {op} v{r}, v{r}, v{t}
        v_mov_b32 v{t}, v{r}
        v_permlane32_swap_b32 v{r}, v{t}
        {op} v{r}, v{r}, v{t}
        """)

    def wave_allreduce2(self, r0, r1, t0, t1):
        a = self.a
        for m in ("quad_perm:[1,0,3,2]", "quad_perm:[2,3,0,1]", "row_half_mirror", "row_mirror"):
            a(f"v_add_f32_dpp v{r0}, v{r0}, v{r0} {m} row_mask:0xf bank_mask:0xf")
            a(f"v_add_f32_dpp v{r1}, v{r1}, v{r1} {m} row_mask:0xf bank_mask:0xf")
        for sw in ("16", "32"):
            a(f"""
            v_mov_b32 v{t0}, v{r0}
            v_mov_b32 v{t1}, v{r1}
            v_permlane{sw}_swap_b32 v{r0}, v{t0}
            v_permlane{sw}_swap_b32 v{r1}, v{t1}
            v_add_f32 v{r0}, v{r0}, v{t0}
            v_add_f32 v{r1}, v{r1}, v{t1}
            """)

    def scatter4(self, r):
        self.a(f"""
        v_permlane32_swap_b32 v{r}, v{r+2}
        v_permlane32_swap_b32 v{r+1}, v{r+3}
        v_add_f32 v{r}, v{r}, v{r+2}
        v_add_f32 v{r+1}, v{r+1}, v{r+3}
        v_permlane16_swap_b32 v{r}, v{r+1}
        v_add_f32 v{r}, v{r}, v{r+1}
        """)

    def unpack(self, pk, lo, hi):
        self.a(f"""
        v_and_b32 v{hi}, s{S_HI}, v{pk}
        v_lshlrev_b32 v{lo}, 16, v{pk}
        """) if lo == pk else self.a(f"""
        v_lshlrev_b32 v{lo}, 16, v{pk}
        v_and_b32 v{hi}, s{S_HI}, v{pk}
        """)

    def round2(self, r0, r1, t):
        self.a(f"v_cvt_pk_bf16_f32 v{t}, v{r0}, v{r1}")
        self.unpack(t, r0, r1)

    def round1(self, r):
        self.a(f"""
        v_cvt_pk_bf16_f32 v{r}, v{r}, v{r}
        v_and_b32 v{r}, s{S_HI}, v{r}
        """)

    def lds_sync(self, cnt, target, vt0, vt1):
        a = self.a
        L = a.newlabel("Lsync"); E = a.newlabel("Lsyncx")
        a(f"""
        v_mov_b32 v{vt0}, {cnt}
        v_mov_b32 v{vt1}, 1
        s_waitcnt lgkmcnt(0)
        s_mov_b64 exec, 1
        ds_add_u32 v{vt0}, v{vt1}
        s_mov_b64 exec, -1
        s_mov_b32 s{S_TMO}, {TMO*8}
        {L}:
        ds_read_b32 v{vt1}, v{vt0}
        s_sub_u32 s{S_TMO}, s{S_TMO}, 1
        s_cbranch_scc1 {E}
        s_waitcnt lgkmcnt(0)
        v_readfirstlane_b32 s{S_T0}, v{vt1}
        s_cmp_lt_u32 s{S_T0}, {target}
        s_cbranch_scc1 {L}
        {E}:
        s_waitcnt lgkmcnt(0)
        """)

    def poll_tagged(self, loads, tagregs, pre=None, sleepy=True, wait0=0):
        a = self.a
        L = a.newlabel("Lpt"); E = a.newlabel("Lptx"); C = a.newlabel("Lptc")
        a(f"s_mov_b32 s{S_TMO}, {TMO}")
        if pre:
            for l in loads: a(l)
            pre()
            a(f"s_waitcnt vmcnt({wait0})\ns_branch {C}")
        a.label(L)
        if self.o.sleep and sleepy: a(f"s_sleep {self.o.sleep}")
        for l in loads: a(l)
        a(f"""
        s_sub_u32 s{S_TMO}, s{S_TMO}, 1
        s_waitcnt vmcnt(0)
        s_cbranch_scc1 {E}
        """)
        a.label(C)
        for i, r in enumerate(tagregs):
            if i == 0: a(f"v_cmp_ne_u32 vcc, s{S_TAG}, v{r}")
            else:
                a(f"v_cmp_ne_u32 {sp(S_T0)}, s{S_TAG}, v{r}")
                a(f"s_or_b64 vcc, vcc, {sp(S_T0)}")
        a(f"s_cbranch_scc1 {L}" if len(tagregs) > 1 else f"s_cbranch_vccnz {L}")
        a.label(E)

    def poll_sent(self, groups, tmp, pre=None):
        a = self.a
        L = a.newlabel("Lps"); E = a.newlabel("Lpsx"); C = a.newlabel("Lpsc")
        a(f"s_mov_b32 s{S_TMO}, {TMO}")
        for i, (loads, regs, init) in enumerate(groups):
            if isinstance(init, tuple):
                a(f"s_mov_b32 s{S_M+2*i}, {init[0]}\ns_mov_b32 s{S_M+2*i+1}, {init[1]}")
            else:
                a(f"s_mov_b64 {sp(S_M+2*i)}, {init}")
        def issue():
            for i, (loads, regs, init) in enumerate(groups):
                a(f"s_mov_b64 exec, {sp(S_M+2*i)}")
                for l in loads: a(l)
            a("s_mov_b64 exec, -1")
        if pre:
            issue(); pre(); a(f"s_branch {C}")
        a.label(L)
        issue()
        a.label(C)
        a(f"""
        s_sub_u32 s{S_TMO}, s{S_TMO}, 1
        s_cbranch_scc1 {E}
        s_waitcnt vmcnt(0)
        """)
        for i, (loads, regs, init) in enumerate(groups):
            rs = list(regs)
            a(f"v_max3_u32 v{tmp}, v{rs[0]}, v{rs[1]}, v{rs[2]}")
            rs = rs[3:]
            while rs:
                if len(rs) >= 2:
                    a(f"v_max3_u32 v{tmp}, v{tmp}, v{rs[0]}, v{rs[1]}"); rs = rs[2:]
                else:
                    a(f"v_max_u32 v{tmp}, v{tmp}, v{rs[0]}"); rs = rs[1:]
            a(f"v_cmp_eq_u32 {sp(S_M+2*i)}, -1, v{tmp}")
        a(f"s_or_b64 vcc, {sp(S_M)}, {sp(S_M+2)}")
        for i in range(2, len(groups)):
            a(f"s_or_b64 vcc, vcc, {sp(S_M+2*i)}")
        a(f"""
        s_cbranch_scc1 {L}
        {E}:
        s_waitcnt vmcnt(0)
        """)

    def capture(self, fn):
        old = self.a
        self.a = Asm(); self.a.nlabel = old.nlabel
        fn()
        lines = self.a.lines; old.nlabel = self.a.nlabel
        self.a = old
        return lines

    def aff(self, vd, base, lt=(), st=(), vt=1):
        a = self.a
        a(f"s_mov_b32 s{S_U}, {base}")
        for (sr, mul) in st:
            if mul == 1: a(f"s_add_u32 s{S_U}, s{S_U}, s{sr}")
            else: a(f"s_mul_i32 s{S_U+1}, s{sr}, {mul}\ns_add_u32 s{S_U}, s{S_U}, s{S_U+1}")
        acc = f"s{S_U}"
        if not lt: a(f"v_mov_b32 v{vd}, {acc}")
        for (sh, w, mul) in lt:
            if sh == 0 and w >= 6: src = "v0"
            else:
                src = f"v{vt}"
                if sh + w >= 6: a(f"v_lshrrev_b32 v{vt}, {sh}, v0")
                elif sh == 0: a(f"v_and_b32 v{vt}, {(1<<w)-1}, v0")
                else: a(f"v_bfe_u32 v{vt}, v0, {sh}, {w}")
            if mul & (mul-1) == 0:
                a(f"v_lshl_add_u32 v{vd}, {src}, {mul.bit_length()-1}, {acc}")
            else:
                a(f"v_mul_u32_u24 v{vt}, {mul}, {src}\nv_add_u32 v{vd}, {acc}, v{vt}")
            acc = f"v{vd}"

    def flavor_masks(self, dst, lo, hi):
        self.a(f"""
        s_cmp_lg_u32 s{S_LOC}, 0
        s_cselect_b32 s{dst}, {lo}, 0
        s_cselect_b32 s{dst+1}, {hi}, 0
        s_cselect_b32 s{dst+2}, 0, {lo}
        s_cselect_b32 s{dst+3}, 0, {hi}
        """)

    def flavor_store(self, m, ins):
        self.a(f"""
        s_mov_b64 exec, {sp(m)}
        {ins}
        s_mov_b64 exec, {sp(m+2)}
        {ins} sc1
        s_mov_b64 exec, -1
        """)

    def quad_reduce(self, r, r2):
        a = self.a
        for i in range(4): a(f"v_add_f32 v{r+i}, v{r+i}, v{r2+i}")
        for m in ("[1,0,3,2]", "[2,3,0,1]"):
            for i in range(4):
                a(f"v_add_f32_dpp v{r+i}, v{r+i}, v{r+i} quad_perm:{m} row_mask:0xf bank_mask:0xf")
        for i in range(4): a(f"v_min_u32 v{r+i}, -2, v{r+i}")

    def tile_loads(self, va, srd, offs, dst, pol):
        a = self.a
        cur = None
        for i, off in enumerate(offs):
            hi, lo = off & ~4095, off & 4095
            if hi == 0: so = "0"
            else:
                if cur != hi: a(f"s_mov_b32 s{S_T0}, {hi}"); cur = hi
                so = f"s{S_T0}"
            a(f"buffer_load_dwordx4 {q(dst+4*i)}, v{va}, {sp(srd,4)}, {so} offen offset:{lo} {pol}")

    def gemv_reduce(self, vr, R):
        a = self.a
        a(f"""
        ds_read_b128 {q(R)}, v{vr}
        ds_read_b128 {q(R+4)}, v{vr} offset:{PS}
        s_waitcnt lgkmcnt(0)
        v_pk_add_f32 {q(R,2)}, {q(R,2)}, {q(R+4,2)}
        v_pk_add_f32 {q(R+2,2)}, {q(R+2,2)}, {q(R+6,2)}
        """)
        self.scatter4(R)

    def pack4(self, R):
        self.a(f"""
        v_mov_b32_dpp v{R+1}, v{R} quad_perm:[1,1,3,3] row_mask:0xf bank_mask:0xf
        v_mov_b32 v{R+3}, s{S_TAG}
        v_cvt_pk_bf16_f32 v{R}, v{R}, v{R+1}
        v_mov_b32 v{R+1}, s{S_TAG}
        v_mov_b32_dpp v{R+2}, v{R} quad_perm:[2,2,2,2] row_mask:0xf bank_mask:0xf
        """)

    def round8(self, X, T):
        for i in range(4): self.a(f"v_cvt_pk_bf16_f32 v{T+i}, v{X+2*i}, v{X+2*i+1}")
        for i in range(4): self.unpack(T+i, X+2*i, X+2*i+1)

    def layernorm(self, X, T):
        a = self.a
        bc = "op_sel_hi:[1,0]"; ng = "neg_lo:[0,1] neg_hi:[0,1]"
        a(f"v_readfirstlane_b32 s{S_U}, v{X}")
        for i in range(4): a(f"v_pk_add_f32 {q(T+2*i,2)}, {q(X+2*i,2)}, {sp(S_U)} {bc} {ng}")
        a(f"""
        v_pk_add_f32 {q(T+8,2)}, {q(T,2)}, {q(T+2,2)}
        v_pk_mul_f32 {q(T+10,2)}, {q(T,2)}, {q(T,2)}
        v_pk_fma_f32 {q(T+10,2)}, {q(T+2,2)}, {q(T+2,2)}, {q(T+10,2)}
        v_pk_add_f32 {q(T,2)}, {q(T+4,2)}, {q(T+6,2)}
        v_pk_fma_f32 {q(T+10,2)}, {q(T+4,2)}, {q(T+4,2)}, {q(T+10,2)}
        v_pk_add_f32 {q(T+8,2)}, {q(T+8,2)}, {q(T,2)}
        v_pk_fma_f32 {q(T+10,2)}, {q(T+6,2)}, {q(T+6,2)}, {q(T+10,2)}
        v_add_f32 v{T+8}, v{T+8}, v{T+9}
        v_add_f32 v{T+10}, v{T+10}, v{T+11}
        v_permlane32_swap_b32 v{T+8}, v{T+10}
        v_add_f32 v{T+8}, v{T+8}, v{T+10}
        v_add_f32_dpp v{T+8}, v{T+8}, v{T+8} quad_perm:[1,0,3,2] row_mask:0xf bank_mask:0xf
        v_add_f32_dpp v{T+8}, v{T+8}, v{T+8} quad_perm:[2,3,0,1] row_mask:0xf bank_mask:0xf
        v_add_f32_dpp v{T+8}, v{T+8}, v{T+8} row_half_mirror row_mask:0xf bank_mask:0xf
        v_add_f32_dpp v{T+8}, v{T+8}, v{T+8} row_mirror row_mask:0xf bank_mask:0xf
        v_readlane_b32 s{S_T0}, v{T+8}, 0
        v_readlane_b32 s{S_T1}, v{T+8}, 16
        v_readlane_b32 s{S_T2}, v{T+8}, 32
        v_readlane_b32 s{S_T3}, v{T+8}, 48
        v_mov_b32 v{T+10}, 0x3b000000
        v_mul_f32 v{T+8}, s{S_T0}, v{T+10}
        v_mul_f32 v{T+9}, s{S_T2}, v{T+10}
        v_fmac_f32 v{T+8}, s{S_T1}, v{T+10}          ; E[d]
        v_fmac_f32 v{T+9}, s{S_T3}, v{T+10}          ; E[d^2]
        v_fma_f32 v{T+9}, -v{T+8}, v{T+8}, v{T+9}    ; var
        v_add_f32 v{T+8}, s{S_U}, v{T+8}             ; mean
        v_max_f32 v{T+9}, 0, v{T+9}
        v_cvt_pk_bf16_f32 v{T+10}, v{T+8}, v{T+9}
        v_lshlrev_b32 v{T+8}, 16, v{T+10}
        v_and_b32 v{T+10}, s{S_HI}, v{T+10}
        v_add_f32 v{T+10}, 0x3727c5ac, v{T+10}
        v_cvt_pk_bf16_f32 v{T+10}, v{T+10}, v{T+10}
        v_and_b32 v{T+10}, s{S_HI}, v{T+10}
        v_sqrt_f32 v{T+10}, v{T+10}
        """)
        for i in range(4): a(f"v_pk_add_f32 {q(X+2*i,2)}, {q(X+2*i,2)}, {q(T+8,2)} {bc} {ng}")
        a(f"""
        v_cvt_pk_bf16_f32 v{T+10}, v{T+10}, v{T+10}
        v_and_b32 v{T+10}, s{S_HI}, v{T+10}
        v_rcp_f32 v{T+10}, v{T+10}
        """)
        self.round8(X, T)
        for i in range(4): a(f"v_pk_mul_f32 {q(X+2*i,2)}, {q(X+2*i,2)}, {q(T+10,2)} {bc}")
        self.round8(X, T)

    def gettag(self):
        self.a(f"""
        s_waitcnt lgkmcnt(0)
        s_lshl_b32 s{S_TAG}, s{S_EPOCH}, 1
        s_add_u32 s{S_TAG}, s{S_TAG}, 0x9E3779B8
        """)

    def predirty(self):
        self.a(f"""
        s_mov_b32 exec_lo, 0x00010001
        s_mov_b32 exec_hi, 0x00010001
        buffer_load_dword v16, v7, {sp(SRD_WS,4)}, 0 offen {self.o.prepol}
        s_mov_b64 exec, -1
        """)

    def xt_publish(self, pre=False, allw=False):
        a = self.a
        if pre and self.o.predirty: self.predirty()
        L = a.newlabel("Lxt")
        if not allw: a(f"""
        s_cmp_lg_u32 s{S_WAVE}, 1
        s_cbranch_scc1 {L}
        """)
        self.aff(1, WS_XT, [], [(S_HKV,256),(S_IDX,8)])
        a(f"""
        v_mov_b32 v2, s{S_LOC}
        v_mov_b32 v3, s{S_TAG}
        s_mov_b64 exec, 1
        buffer_store_dwordx2 v[2:3], v1, {sp(SRD_WS,4)}, 0 offen {self.o.xtpol}
        s_mov_b64 exec, -1
        {L}:
        """)

    def gemv_mfma(self, nkb, va, vd, A, Bs, Dq):
        a = self.a
        for i in range(len(Bs)): a(f"ds_read_b128 {q(A+4*i)}, v{va} offset:{64*nkb*i}")
        for i, B in enumerate(Bs):
            a(f"s_waitcnt lgkmcnt({len(Bs)-1-i})")
            for c in range(8):
                a(f"v_mfma_f32_16x16x32_bf16 {q(Dq[c])}, {q(A+4*i)}, {q(B+4*c)}, {'0' if i == 0 else q(Dq[c])}")
        a(f"s_mov_b64 exec, {sp(S_M+12)}")
        cs = 128 if nkb == 2 else 64
        for c in range(8):
            a(f"ds_write_b128 v{vd}, {q(Dq[c])} offset:{c*cs}")
        a("s_mov_b64 exec, -1")

    def roundn(self, X, T, n):
        for i in range(n//2): self.a(f"v_cvt_pk_bf16_f32 v{T+i}, v{X+2*i}, v{X+2*i+1}")
        for i in range(n//2): self.unpack(T+i, X+2*i, X+2*i+1)

    def modulate(self, X, C1, SH, T, out, n=8):
        a = self.a
        for i in range(n//2): a(f"v_pk_mul_f32 {q(X+2*i,2)}, {q(X+2*i,2)}, {q(C1+2*i,2)}")
        self.roundn(X, T, n)
        for i in range(n//2): a(f"v_pk_add_f32 {q(X+2*i,2)}, {q(X+2*i,2)}, {q(SH+2*i,2)}")
        for i in range(n//2): a(f"v_cvt_pk_bf16_f32 v{out+i}, v{X+2*i}, v{X+2*i+1}")

    def unp24(self, R, D):
        self.a(f"""
        v_perm_b32 v{D+3}, v{R+1}, v{R}, s{S_SEL}
        v_and_b32 v{D}, s{S_M24}, v{R}
        v_and_b32 v{D+1}, s{S_M24}, v{R+1}
        v_lshl_or_b32 v{D+3}, v{R+2}, 24, v{D+3}
        v_and_b32 v{D+2}, s{S_M24}, v{R+2}
        """)

    def sum24(self, R0, R1, D):
        self.unp24(R0, D); self.unp24(R1, R1)
        self.a(f"""
        v_pk_add_f32 {q(D,2)}, {q(D,2)}, {q(R1,2)}
        v_pk_add_f32 {q(D+2,2)}, {q(D+2,2)}, {q(R1+2,2)}
        """)

    def poll_pipe(self, sets, done, gap, sl=0, rec=None, or1=None):
        a = self.a
        D = len(sets); nl = len(sets[0][0])
        L = a.newlabel("Lpp"); E = a.newlabel("Lppx")
        DL = [a.newlabel("Lppd") for _ in sets]
        a(f"s_mov_b32 s{S_TMO}, {TMO}")
        for k, (loads, tags) in enumerate(sets):
            for l in loads: a(l)
            if k < D-1 and gap: a(f"s_sleep {gap}")
        a.label(L)
        for k, (loads, tags) in enumerate(sets):
            a(f"s_waitcnt vmcnt({(D-1)*nl})")
            t = self.PT
            if len(tags) <= 5:
                a(f"v_xor_b32 v{t}, s{S_TAG}, v{tags[0]}")
                for r in tags[1:]:
                    a(f"v_xor_b32 v{t+1}, s{S_TAG}, v{r}\nv_or_b32 v{t}, v{t}, v{t+1}")
            else:
                if len(tags) % 2 == 0: tags = list(tags) + [tags[-1]]
                for i in range(1, len(tags), 2):
                    a(f"v_max3_u32 v{t}, v{tags[0] if i == 1 else t}, v{tags[i]}, v{tags[i+1]}")
                    a(f"v_min3_u32 v{t+1}, v{tags[0] if i == 1 else t+1}, v{tags[i]}, v{tags[i+1]}")
                a(f"v_xor_b32 v{t}, s{S_TAG}, v{t}\nv_xor_b32 v{t+1}, s{S_TAG}, v{t+1}\nv_or_b32 v{t}, v{t}, v{t+1}")
            a(f"v_cmp_lt_u32 vcc, {1 if or1 else 0}, v{t}")
            a(f"s_cbranch_vccz {DL[k]}")
            if 0: a(f"s_cbranch_scc0 {DL[k]}" if len(tags) > 1 else f"s_cbranch_vccz {DL[k]}")
            if sl: a(f"s_sleep {sl}")
            for l in loads: a(l)
        a(f"""
        s_sub_u32 s{S_TMO}, s{S_TMO}, 1
        s_cbranch_scc0 {L}
        s_waitcnt vmcnt(0)
        """)
        for k in range(D):
            a.label(DL[k])
            done(k)
            if k < D-1: a(f"s_branch {E}")
        a.label(E)
        if rec is not None and self.o.stamps and self.o.rec:
            a(f"""
            s_waitcnt lgkmcnt(0)
            s_sub_u32 s{S_T0}, {TMO}, s{S_TMO}
            s_mul_i32 s{S_T0}, s{S_T0}, 100
            s_add_u32 s{S_ST+2*rec}, s{S_ST}, s{S_T0}
            s_addc_u32 s{S_ST+2*rec+1}, s{S_ST+1}, 0
            """)

    def lds_wait(self, off, target, vz, vt, sleep=1):
        a = self.a
        L = a.newlabel("Lw"); E = a.newlabel("Lwx")
        a(f"""
        s_mov_b32 s{S_TMO}, {TMO*8}
        {L}:
        ds_read_b32 v{vt}, v{vz} offset:{off}
        s_sub_u32 s{S_TMO}, s{S_TMO}, 1
        s_cbranch_scc1 {E}
        """)
        if sleep: a(f"s_sleep {sleep}")
        a(f"""
        s_waitcnt lgkmcnt(0)
        v_readfirstlane_b32 s{S_T0}, v{vt}
        s_cmp_lt_u32 s{S_T0}, {target}
        s_cbranch_scc1 {L}
        {E}:
        s_waitcnt lgkmcnt(0)
        """)

    def prologue(self):
        a = self.a
        self.stamp(0)
        a(f"""
        s_cmp_ge_u32 s2, 256
        s_cbranch_scc1 L_end
        {'' if self.o.kalean else 's_load_dwordx16 s[4:19], s[0:1], 0'}
        {'' if self.o.kalean else 's_load_dwordx8 s[20:27], s[0:1], 64'}
        {'' if self.o.kalean else 's_load_dwordx2 s[30:31], s[0:1], 104'}
        v_lshrrev_b32 v1, 6, v0
        v_and_b32 v0, 63, v0
        s_and_b32 s{S_HKV}, s2, 7
        v_readfirstlane_b32 s{S_WAVE}, v1
        s_lshr_b32 s{S_IDX}, s2, 3
        s_and_b32 s{S_B}, s{S_IDX}, 3
        s_lshr_b32 s{S_CH}, s{S_IDX}, 2
        s_mov_b32 s{S_PLO}, 0x05040100
        s_mov_b32 s{S_PHI}, 0x07060302
        s_mov_b32 s{S_HI}, 0xffff0000
        s_cmp_lt_u32 s{S_WAVE}, 4
        s_cbranch_scc1 L_aux
        """)

    def stream(self):
        a = self.a; o = self.o
        nt = o.kvpol
        kreg = lambda t, u: 32 + 16*t + 4*u
        vreg = lambda t, u: 96 + 16*t + 4*u
        dreg = lambda t, u: (8 + 4*u) if t == 0 else (32 + 16*(t-1) + 4*u)
        S_W = 3
        S_N = S_TGT
        if o.kalean: a("s_load_dwordx8 s[4:11], s[0:1], 0")
        a(f"""
        s_sub_u32 s{S_W}, s{S_WAVE}, 4
        s_lshl_b32 s{S_T0}, s{S_B}, 3
        s_add_u32 s{S_T0}, s{S_T0}, s{S_HKV}
        s_lshl_b32 s{S_T0}, s{S_T0}, 22
        s_lshl_b32 s{S_T1}, s{S_CH}, {15 if o.spread else 17}
        s_add_u32 s{S_T0}, s{S_T0}, s{S_T1}
        s_lshl_b32 s{S_T1}, s{S_W}, 12
        s_add_u32 s{S_T0}, s{S_T0}, s{S_T1}
        s_add_u32 s{S_T0}, s{S_T0}, 3145728
        v_bfe_u32 v1, v0, 2, 2
        v_lshrrev_b32 v2, 4, v0
        v_and_b32 v3, 3, v0
        v_lshlrev_b32 v6, 8, v1
        v_lshl_add_u32 v6, v2, 6, v6
        v_lshl_add_u32 v6, v3, 4, v6
        v_add_u32 v4, s{S_T0}, v6
        v_lshlrev_b32 v7, 4, v0
        v_add_u32 v5, s{S_T0}, v7
        s_lshr_b32 s{S_CQ}, s{S_CH}, 1
        s_lshr_b32 s{S_T1}, s{S_W}, {1 if o.spread == 2 else 0 if o.spread == 3 else 3}
        s_and_b32 s{S_T1}, s{S_T1}, 3
        s_xor_b32 s{S_CQ}, s{S_CQ}, s{S_T1}
        s_lshl_b32 s{S_CQ}, s{S_CQ}, 18
        {'' if o.spread else 's_mov_b32 s%d, 0' % S_CQ}
        s_xor_b32 s{S_T1}, s{S_CQ}, {1<<18 if o.spread else 32768}
        s_xor_b32 s{S_T2}, s{S_CQ}, {2<<18 if o.spread else 65536}
        s_xor_b32 s{S_T3}, s{S_CQ}, {3<<18 if o.spread else 98304}
        v_mov_b32 v163, 0
        v_mov_b32 v161, 1
        s_cmp_lt_u32 s{S_IDX}, {NEARLY}
        s_waitcnt lgkmcnt(0)
        """)
        if o.kadbg: self.stamp(6); a(f"s_getpc_b64 {sp(S_ST+20)}\ns_mov_b64 {sp(S_ST+22)}, s[0:1]")
        self.srd(SRD_A, S_K, 0x8000000)
        self.srd(SRD_B, S_V, 0x8000000)
        so = [f"s{S_CQ}", f"s{S_T1}", f"s{S_T2}", f"s{S_T3}"]
        loads = []
        for (rf, va, srd) in ((kreg, 4, SRD_A), (vreg, 5, SRD_B)):
            for t in range(4):
                for u in range(4):
                    loads.append(f"buffer_load_dwordx4 {q(rf(t,u))}, v{va}, {sp(srd,4)}, {so[t]} offen offset:{u*1024} {nt}")
        if not o.kalean: self.srd(SRD_WS, S_WS, WS_SIZE)
        a(f"s_cbranch_scc0 L_sH")
        if o.fdepth:
            a(f"""
            s_sub_u32 s{S_T0}, s{S_IDX}, 20
            s_cmp_lt_u32 s{S_T0}, 7
            s_cbranch_scc0 L_sN
            """)
            self.stream_body(False, loads, kreg, dreg, "f", o.fdepth, o.fsw)
            a.label("L_sN")
        if o.ldepth:
            a(f"""
            s_sub_u32 s{S_T0}, s{S_IDX}, 4
            s_cmp_lt_u32 s{S_T0}, 16
            s_cselect_b32 s{S_T0}, s{S_T0}, s{S_HKV}
            s_cselect_b32 s{S_N}, 1, 0
            s_lshr_b32 s{S_T0}, s{S_T0}, s{S_N}
            s_cmp_eq_u32 s{S_T0}, 3
            s_cbranch_scc0 L_sN2
            """)
            self.stream_body(False, loads, kreg, dreg, "l", o.ldepth, o.lsw)
            a.label("L_sN2")
        self.stream_body(False, loads, kreg, dreg, "", o.depth2, o.sw2)
        a.label("L_sH")
        self.stream_body(True, loads, kreg, dreg)

    def stream_body(self, h, loads, kreg, dreg, X="", depth=0, sw=0):
        a = self.a; o = self.o
        S_W = 3
        S_N = S_TGT
        X = "h" if h else X
        depth = o.hdepth if h else depth or o.depth
        dn = lambda n: depth if (h or n >= sw) else o.depth
        first = o.pause if h else dn(0)
        if not h:
            a("s_barrier")
            for l in loads[:first]: a(l)
            if o.kalean:
                a(f"s_waitcnt vmcnt({first-1})\ns_load_dwordx2 s[30:31], s[0:1], 104\ns_waitcnt lgkmcnt(0)")
                self.srd(SRD_WS, S_WS, WS_SIZE)
        else:
            nf = 0 if o.clrfirst else 4
            for l in loads[:nf]: a(l)
            if o.kalean:
                a(f"s_load_dwordx2 s[30:31], s[0:1], 104\ns_waitcnt lgkmcnt(0)")
                self.srd(SRD_WS, S_WS, WS_SIZE)
            a(f"""
            s_barrier
            v_mov_b32 v8, -1
            v_mov_b32 v9, -1
            v_mov_b32 v10, -1
            v_mov_b32 v11, -1
            s_lshl_b32 s{S_T0}, s{S_HKV}, 2
            s_add_u32 s{S_T0}, s{S_T0}, s{S_B}
            s_lshl_b32 s{S_N}, s{S_T0}, 3
            s_add_u32 s{S_N}, s{S_N}, s{S_W}
            """)
            if not o.clrfirst:
                for l in loads[4:first]: a(l)
            self.aff(12, WS_OP, [(0,6,16)], [(S_N,2048)], vt=2)
            self.aff(13, WS_AP, [(0,6,16)], [(S_N,1024)], vt=2)
            self.aff(14, WS_DP, [(0,6,16)], [(S_N,1792)], vt=2)
            self.aff(15, WS_ST, [(0,6,16)], [(S_T0,256)], vt=2)
            W = sp(SRD_WS,4)
            if not o.abl & 1: a(f"""
            buffer_store_dwordx4 v[8:11], v12, {W}, 0 offen sc1
            buffer_store_dwordx4 v[8:11], v12, {W}, 0 offen offset:1024 sc1
            buffer_store_dwordx4 v[8:11], v13, {W}, 0 offen sc1
            buffer_store_dwordx4 v[8:11], v14, {W}, 0 offen sc1
            s_mov_b32 exec_hi, 0xffff
            buffer_store_dwordx4 v[8:11], v14, {W}, 0 offen offset:1024 sc1
            s_cmp_eq_u32 s{S_W}, 0
            s_cselect_b32 exec_lo, 0xffff, 0
            s_mov_b32 exec_hi, 0
            buffer_store_dwordx4 v[8:11], v15, {W}, 0 offen sc1
            s_mov_b64 exec, -1
            """)
            if o.clrfirst:
                for l in loads[:first]: a(l)
        a(f"""
        v_cmp_eq_u32 {sp(S_M)}, 1, v3
        v_cmp_eq_u32 {sp(S_M+2)}, 2, v3
        v_cmp_eq_u32 {sp(S_M+4)}, 3, v3
        v_lshlrev_b32 v7, 5, v1                 ; h*32
        s_lshr_b32 s{S_T0}, s{S_CH}, 1
        s_and_b32 s{S_N}, s{S_CH}, 1
        """)
        self.aff(160, WS_ST, [(2,2,256)], [(S_HKV,1024),(S_T0,64),(S_B,16),(S_N,8)], vt=2)
        self.aff(164, 0, [(2,2,32)], [(S_W,4)], vt=2)
        self.aff(165, L_OL, [(0,6,4)], [(S_W,OLS)], vt=2)
        self.aff(166, L_OL, [(0,2,2*OLS),(2,4,16)], [(S_W,256)], vt=2)
        self.aff(167, WS_OP, [(4,2,16384),(2,2,64)], [(S_HKV,65536),(S_CH,2048),(S_W,256),(S_B,16)], vt=2)
        def cnt_add(off):
            a(f"""
            s_mov_b64 exec, 1
            ds_add_u32 v163, v161 offset:{off}
            s_mov_b64 exec, -1
            """)
        if h:
            a(f"s_waitcnt vmcnt({first if o.clrfirst else 0})")
            cnt_add(L_CNT+4)
            self.lds_wait(L_CNT+o.pauseoff, o.pausecnt, 163, 162, sleep=2)
            if o.trigq < first: cnt_add(L_CNT+20)

        def step(n, wait=True):
            if wait and n < 32 - o.tailfree and n >= dn(n): a(f"s_waitcnt vmcnt({dn(n)-1})")
            a(loads[n])
            if n == o.trigw: cnt_add(L_CNT+12)
            if n == o.trigf: cnt_add(L_CNT+16)
            if n == o.trigq: cnt_add(L_CNT+20)
            if n == o.trigs: cnt_add(L_CNT+28)
            if n == o.trigp: cnt_add(L_CNT+32)
            if n in ((8, 12, 16) if o.kadbg else (4, 8, 12, 16, 24, 28)): self.stamp({4:6,8:7,12:8,16:9,24:10,28:11}[n])
        N0 = min(n for n in range(16, 32) if n - dn(n) >= 15)
        chk = [n for n in range(max(N0, o.nq), 31) if (n - N0) % o.chkstep == 0]
        rd = f"ds_read_b32 v162, v163 offset:{L_CNT+8}"
        for n in range(first, 32):
            step(n)
            if n in chk:
                a(f"""
                s_waitcnt lgkmcnt(0)
                v_readfirstlane_b32 s{S_T0}, v162
                s_cmp_ge_u32 s{S_T0}, 4
                s_cbranch_scc1 L{X}_qk{n}
                """)
            if n + 1 in chk: a(rd)
        self.stamp(2)
        a(f"s_mov_b32 s{S_N}, 32")
        self.lds_wait(L_CNT+8, 4, 163, 162, sleep=0)
        a.label(f"L{X}_QK")
        self.stamp(1)
        a(f"""
        ds_read_b128 v[0:3], v6 offset:{L_QF}
        ds_read_b32 v162, v163 offset:{L_FLAG}
        s_waitcnt lgkmcnt(0)
        v_readfirstlane_b32 s{S_LOC}, v162
        """)
        for t in range(4):
            for u in range(4):
                a(f"v_mfma_f32_16x16x32_bf16 {q(dreg(t,u))}, {q(kreg(t,u))}, v[0:3], 0")
        self.flavor_masks(S_M+6, "0x11111111", "0x11111111")
        qp = {1: "[1,0,3,2]", 2: "[2,3,0,1]", 3: "[3,2,1,0]"}
        for t in range(4):
            for rho in range(4):
                w = 24 + t if rho == 0 else 27 + rho
                c = [dreg(t, x ^ rho) + x for x in range(4)]
                a(f"""
                v_cndmask_b32 v{w}, v{c[0]}, v{c[1]}, {sp(S_M)}
                v_cndmask_b32 v{w}, v{w}, v{c[2]}, {sp(S_M+2)}
                v_cndmask_b32 v{w}, v{w}, v{c[3]}, {sp(S_M+4)}
                """)
            for rho in range(1, 4):
                a(f"v_add_f32_dpp v{24+t}, v{27+rho}, v{24+t} quad_perm:{qp[rho]} row_mask:0xf bank_mask:0xf")
        self.round2(24, 25, 28); self.round2(26, 27, 29)
        a(f"s_mov_b32 s{S_T0}, {SCALE}")
        for t in range(4): a(f"v_mul_f32 v{24+t}, s{S_T0}, v{24+t}")
        self.round2(24, 25, 28); self.round2(26, 27, 29)
        a(f"""
        v_max3_f32 v28, v24, v25, v26
        v_max_f32 v28, v28, v27
        v_max_f32_dpp v28, v28, v28 quad_perm:[1,0,3,2] row_mask:0xf bank_mask:0xf
        v_max_f32_dpp v28, v28, v28 quad_perm:[2,3,0,1] row_mask:0xf bank_mask:0xf
        """)
        self.rows_allreduce("v_max_f32", 28, 29)
        a(f"""
        v_min_u32 v28, -2, v28
        ds_write_b32 v164, v28 offset:{L_MX}
        """)
        ex = o.qkextra
        rets = sorted({min(n + 1 + ex, 32) for n in chk} | {32}, reverse=True)
        for r in rets[:-1]:
            a(f"s_cmp_eq_u32 s{S_N}, {r}\ns_cbranch_scc1 L{X}_B{r}")
        for n in range(rets[-1], 32):
            if n in rets: a.label(f"L{X}_B{n}")
            step(n)
        if chk: self.stamp(2)
        a.label(f"L{X}_B32")
        a(f"s_waitcnt vmcnt(8)")
        self.transpose(96, 32)
        L = a.newlabel("Lb3"); E = a.newlabel("Lb3x")
        a(f"""
        s_mov_b32 s{S_TMO}, {TMO*8}
        {L}:
        ds_read_b128 v[8:11], v7 offset:{L_MX}
        ds_read_b128 v[12:15], v7 offset:{L_MX+16}
        s_sub_u32 s{S_TMO}, s{S_TMO}, 1
        s_cbranch_scc1 {E}
        s_waitcnt lgkmcnt(0)
        v_max3_u32 v16, v8, v9, v10
        v_max3_u32 v17, v11, v12, v13
        v_max3_u32 v16, v16, v14, v15
        v_max_u32 v16, v16, v17
        v_cmp_eq_u32 vcc, -1, v16
        s_cbranch_vccnz {L}
        {E}:
        """)
        self.stamp(3)
        a(f"""
        s_mov_b32 s{S_T0}, {LOG2E}
        s_waitcnt lgkmcnt(0)
        v_max3_f32 v8, v8, v9, v10
        v_max3_f32 v12, v11, v12, v13
        v_max3_f32 v8, v8, v14, v15
        v_max_f32 v8, v8, v12
        v_mul_f32 v162, s{S_T0}, v8
        """)
        for t in range(4): a(f"v_fma_f32 v{24+t}, v{24+t}, s{S_T0}, -v162")
        for t in range(4): a(f"v_exp_f32 v{24+t}, v{24+t}")
        for t in range(4):
            a(f"v_mov_b32_dpp v{28+t}, v{24+t} quad_perm:[1,1,3,3] row_mask:0xf bank_mask:0xf")
        for t in range(4):
            a(f"v_cvt_pk_bf16_f32 v{8+2*t}, v{24+t}, v{28+t}")
        for t in range(4):
            a(f"v_mov_b32_dpp v{9+2*t}, v{8+2*t} quad_perm:[2,2,2,2] row_mask:0xf bank_mask:0xf")
        for c in range(8):
            a(f"v_mfma_f32_16x16x32_bf16 {q(96+4*c)}, v[8:11], {q(32+4*c)}, 0")
        a(f"""
        v_add_f32 v24, v24, v25
        v_add_f32 v26, v26, v27
        v_add_f32 v24, v24, v26
        v_add_f32_dpp v24, v24, v24 quad_perm:[1,0,3,2] row_mask:0xf bank_mask:0xf
        v_add_f32_dpp v24, v24, v24 quad_perm:[2,3,0,1] row_mask:0xf bank_mask:0xf
        """)
        self.rows_allreduce("v_add_f32", 24, 25)
        a(f"""
        v_min_u32 v24, -2, v24
        v_min_u32 v162, -2, v162
        s_waitcnt vmcnt(4)
        """)
        self.transpose_pair(128, 64, 0, 4)
        self.transpose_pair(128, 64, 1, 4)
        a(f"s_waitcnt vmcnt(2)")
        self.transpose_pair(128, 64, 2, 4)
        a(f"s_waitcnt vmcnt(0)")
        self.stamp(4)
        self.transpose_pair(128, 64, 3, 4)
        for c in range(8):
            a(f"v_mfma_f32_16x16x32_bf16 {q(96+4*c)}, v[12:15], {q(64+4*c)}, {q(96+4*c)}")
        if o.trigw == 32: cnt_add(L_CNT+12)
        if o.trigp == 32: cnt_add(L_CNT+32)
        if o.trigf == 32: cnt_add(L_CNT+16)
        for c in range(8):
            a(f"ds_write_b32 v165, v{96+4*c} offset:{c*256}")
        a(f"ds_write_b32 v164, v24 offset:{L_LS}")
        L = a.newlabel("Lb4"); E = a.newlabel("Lb4x")
        a(f"""
        s_mov_b32 s{S_TMO}, {TMO*8}
        {L}:
        ds_read_b128 v[16:19], v7 offset:{L_LS}
        ds_read_b128 v[20:23], v7 offset:{L_LS+16}
        ds_read_b128 v[8:11], v166
        ds_read_b128 v[12:15], v166 offset:{OLS}
        s_sub_u32 s{S_TMO}, s{S_TMO}, 1
        s_cbranch_scc1 {E}
        s_waitcnt lgkmcnt(2)
        v_max3_u32 v24, v16, v17, v18
        v_max3_u32 v25, v19, v20, v21
        v_max3_u32 v24, v24, v22, v23
        v_max_u32 v24, v24, v25
        v_cmp_eq_u32 vcc, -1, v24
        s_waitcnt lgkmcnt(0)
        s_cbranch_vccnz {L}
        {E}:
        s_waitcnt lgkmcnt(0)
        """)
        self.quad_reduce(8, 12)
        self.flavor_store(S_M+6, f"buffer_store_dwordx4 v[8:11], v167, {sp(SRD_WS,4)}, 0 offen")
        self.stamp(5)
        if o.trigw == 33: cnt_add(L_CNT+12)
        if o.trigp == 33: cnt_add(L_CNT+32)
        if o.trigf == 33: cnt_add(L_CNT+16)
        a(f"""
        s_cmp_lg_u32 s{S_W}, 7
        s_cbranch_scc1 L{X}_send
        v_pk_add_f32 v[16:17], v[16:17], v[18:19]
        v_pk_add_f32 v[20:21], v[20:21], v[22:23]
        s_and_b32 s{S_M+6}, s{S_M+6}, 0xffff
        v_pk_add_f32 v[16:17], v[16:17], v[20:21]
        s_mov_b32 s{S_M+7}, 0
        s_and_b32 s{S_M+8}, s{S_M+8}, 0xffff
        v_add_f32 v163, v16, v17
        s_mov_b32 s{S_M+9}, 0
        v_min_u32 v163, -2, v163
        """)
        self.flavor_store(S_M+6, f"buffer_store_dwordx2 v[162:163], v160, {sp(SRD_WS,4)}, 0 offen")
        a.label(f"L{X}_send")
        self.flush_stamps(12, 1, o.swave)
        self.lite_end()
        a("s_endpgm")
        for n in chk:
            a.label(f"L{X}_qk{n}")
            m = n + 1
            while m < min(n + 1 + ex, 32):
                step(m, wait=False); m += 1
            a(f"s_mov_b32 s{S_N}, {m}\ns_branch L{X}_QK")

    def aux(self):
        a = self.a; o = self.o
        ror8 = "row_ror:8 row_mask:0xf bank_mask:0xf"
        ror4 = "row_ror:4 row_mask:0xf bank_mask:0xf"
        WS = sp(SRD_WS, 4)
        VZ = 167
        self.PT = 24
        a.label("L_aux")
        if o.prio: a(f"s_setprio {o.prio}")
        if o.kalean: a("""
        s_load_dwordx16 s[4:19], s[0:1], 0
        s_load_dwordx8 s[20:27], s[0:1], 64
        s_load_dwordx2 s[30:31], s[0:1], 104
        """)
        a(f"""
        v_mov_b32 v{VZ}, 0
        v_mov_b32 v166, 0
        s_mov_b32 s{S_CQ}, 0
        v_lshlrev_b32 v2, 2, v0
        v_mov_b32 v1, -1
        s_cmp_gt_u32 s{S_WAVE}, 1
        s_cbranch_scc1 L_noinit
        s_cmp_eq_u32 s{S_WAVE}, 1
        s_cbranch_scc1 L_init1
        ds_write_b32 v2, v{VZ}
        s_branch L_noinit
        L_init1:
        ds_write_b32 v2, v1 offset:{L_MX}
        L_noinit:
        s_getreg_b32 s{S_LOC}, hwreg(HW_REG_XCC_ID, 0, 4)
        s_waitcnt lgkmcnt(0)
        s_load_dword s{S_EPOCH}, {sp(S_WS)}, {WS_EPOCH}
        s_and_b32 s{S_KH}, s{S_IDX}, 1
        s_sub_u32 s{S_J}, s{S_IDX}, 4
        s_cmp_lt_u32 s{S_J}, 16
        s_cbranch_scc1 L_Q
        s_cmp_lt_u32 s{S_IDX}, {NEARLY}
        s_cbranch_scc1 L_M
        """)
        self.srd(SRD_A, S_X, 4096)
        self.aff(1, 0, [(0,6,4)], [(S_B,1024),(S_WAVE,256)])
        a(f"""
        v_xor_b32 v2, 256, v1
        v_xor_b32 v3, 512, v1
        v_xor_b32 v4, 768, v1
        """)
        for i in range(4): a(f"buffer_load_dword v{8+i}, v{1+i}, {sp(SRD_A,4)}, 0 offen {o.cpol}")
        self.srd(SRD_WS, S_WS, WS_SIZE)
        a("s_barrier")
        self.aff(164, WS_MOD, [(0,6,16)], [(S_B,24576),(S_WAVE,1024)])
        self.aff(163, WS_XT, [(0,5,8)], [(S_HKV,256)])
        self.aff(7, WS_HG, [(0,6,8)], [(S_HKV,8192),(S_B,2048),(S_WAVE,512)])
        self.gettag()
        self.xt_publish(True)
        a("s_waitcnt vmcnt(0)")
        for i in range(4): self.unpack(8+i, 128+2*i, 129+2*i)
        self.layernorm(128, 136)
        a(f"""
        s_mov_b32 s{S_T1}, 4096
        s_mov_b32 s{S_T2}, 98304
        s_mov_b32 s{S_T3}, {98304+4096}
        """)
        if o.dlyh: a(f"s_sleep {o.dlyh}")
        self.lds_wait(L_CNT+4, 8, VZ, 1, sleep=2)
        sets = []
        for k in range(o.pdm):
            R = 32 + 20*k
            ld = [f"buffer_load_dwordx4 {q(R+4*i)}, v164, {WS}, {so_} offen {o.ppol}"
                  for i, so_ in enumerate(("0", f"s{S_T2}", f"s{S_T1}", f"s{S_T3}"))]
            ld.append(f"buffer_load_dwordx2 {q(R+16,2)}, v163, {WS}, 0 offen {o.ppol}")
            sets.append((ld, [R+1+2*i for i in range(8)]))
        def mdone(k):
            R = 32 + 20*k
            for i in range(2):
                a(f"v_add_f32 v{136+i}, v{R+8+2*i}, v{R+12+2*i}")
                a(f"v_add_f32 v{138+i}, v{R+2*i}, v{R+4+2*i}")
            a(f"""
            v_cmp_ne_u32 vcc, s{S_LOC}, v{R+16}
            v_cmp_ne_u32 {sp(S_T2)}, s{S_TAG}, v{R+17}
            """)
        self.poll_pipe(sets, mdone, o.gapm, o.slm, rec=9)
        self.stamp(1)
        self.roundn(136, 24, 4)
        a(f"""
        s_or_b64 vcc, vcc, {sp(S_T2)}
        s_cselect_b32 s{S_LOC}, 0, {1 if o.local else 0}
        v_add_f32 v136, 1.0, v136
        v_add_f32 v137, 1.0, v137
        s_add_u32 s{S_T1}, s{S_TAG}, s{S_LOC}
        """)
        self.roundn(136, 24, 2)
        self.flavor_masks(S_M+8, "0x55555555", "0x55555555")
        self.modulate(128, 136, 138, 24, 16, n=2)
        a(f"""
        v_mov_b32 v17, s{S_T1}
        v_mov_b32 v19, s{S_T1}
        v_mov_b32_dpp v18, v16 quad_perm:[1,1,3,3] row_mask:0xf bank_mask:0xf
        s_branch L_pub
        """)

        a.label("L_M")
        self.srd(SRD_B, S_WM, 512*6144)
        a(f"""
        s_sub_u32 s{S_T0}, s{S_IDX}, 16
        s_cmp_lt_u32 s{S_IDX}, 4
        s_cselect_b32 s{S_T0}, s{S_IDX}, s{S_T0}
        s_lshr_b32 s{S_T0}, s{S_T0}, 1
        s_lshl_b32 s3, s{S_T0}, 3
        s_add_u32 s3, s3, s{S_HKV}
        """)
        if o.mearly: a(f"""
        s_lshl_b32 s3, s{S_T0}, 2
        s_add_u32 s3, s3, s{S_HKV}
        s_cmp_ge_u32 s{S_HKV}, 4
        s_cselect_b32 s{S_T0}, 20, 0
        s_add_u32 s3, s3, s{S_T0}
        """)
        self.srd(SRD_A, S_C, 4096)
        self.aff(1, 0, [(0,6,8)], [(S_WAVE,1024),(S_KH,512)])
        a(f"buffer_load_dwordx2 v[8:9], v1, {sp(SRD_A,4)}, 0 offen {o.cpol}")
        self.aff(2, 0, [(3,3,8*6144),(0,3,16)], [(3,128),(S_WAVE,64*6144),(S_KH,256*6144)])
        if not o.abl & 4: self.tile_loads(2, SRD_B, [j*6144 for j in range(8)], 32, o.wpol)
        self.srd(SRD_WS, S_WS, WS_SIZE)
        a("s_barrier")
        self.aff(5, L_AV, [(0,6,8)], [(S_WAVE,AVS)])
        self.aff(7, WS_MOD, [(4,2,24576),(0,4,8)], [(3,512),(S_WAVE,128),(S_KH,98304)])
        self.mq_addr()
        self.gettag()
        self.xt_publish(allw=True)
        a("s_waitcnt vmcnt(9)")
        for i in range(2): self.unpack(8+i, 16+2*i, 17+2*i)
        a(f"s_mov_b32 s{S_T0}, {LOG2E ^ 0x80000000}")
        for i in range(4): a(f"v_mul_f32 v{24+i}, s{S_T0}, v{16+i}")
        for i in range(4): a(f"v_exp_f32 v{24+i}, v{24+i}")
        for i in range(4): a(f"v_add_f32 v{24+i}, 1.0, v{24+i}")
        for i in range(4): a(f"v_rcp_f32 v{24+i}, v{24+i}")
        for i in range(4): a(f"v_mul_f32 v{16+i}, v{16+i}, v{24+i}")
        for i in range(2): a(f"v_cvt_pk_bf16_f32 v{28+i}, v{16+2*i}, v{17+2*i}")
        a(f"ds_write_b64 v5, v[28:29]")
        self.lds_arrive(L_CNT)
        for e in range(4):
            a(f"s_waitcnt vmcnt({7-2*e})")
            self.transpose_pair(32, 96, e, 4)
        a(f"s_mov_b32 s{S_LOC}, 0\ns_branch L_MQ")

        a.label("L_Q")
        self.srd(SRD_B, S_WQ, 512*8192)
        a(f"""
        s_lshl_b32 s3, s{S_HKV}, 3
        s_lshr_b32 s{S_T0}, s{S_J}, 1
        s_add_u32 s3, s3, s{S_T0}
        """)
        self.aff(2, 0, [(3,3,8*8192),(0,3,16)], [(3,128),(S_WAVE,64*8192),(S_KH,256*8192)])
        if not o.abl & 8: self.tile_loads(2, SRD_B, [j*8192 for j in range(8)], 32, o.wpol)
        self.srd(SRD_WS, S_WS, WS_SIZE)
        a("s_barrier")
        a(f"""
        s_lshl_b32 s{S_CQ}, s{S_J}, 2
        s_add_u32 s{S_CQ}, s{S_CQ}, s{S_WAVE}        ; r
        s_lshr_b32 s{S_T0}, s{S_CQ}, 4
        s_and_b32 s{S_T1}, s{S_HKV}, 1
        s_and_b32 s{S_T2}, s{S_CQ}, 15
        """)
        self.aff(166, WS_DP, [(2,4,8192),(0,2,16)], [(S_T0,2048),(S_T1,1024),(S_T2,64)])
        self.aff(7, WS_QG, [(4,2,65536),(0,4,8)], [(3,512),(S_WAVE,128),(S_KH,32768)])
        self.aff(5, L_AV, [(0,6,8)], [(S_WAVE,AVS)])
        self.aff(164, WS_HG, [(0,6,16)], [(S_HKV,8192),(S_WAVE,2048),(S_KH,1024)])
        self.mq_addr()
        self.gettag()
        self.xt_publish(o.predirty == 1)
        a("s_waitcnt vmcnt(0)")
        self.transpose(32, 96)
        if o.predirty == 2: self.predirty()
        sets = [([f"buffer_load_dwordx4 {q(32+4*k)}, v164, {WS}, 0 offen {o.ppol}"], [33+4*k, 35+4*k]) for k in range(o.pdh)]
        def hdone(k):
            a(f"v_mov_b32 v{33+4*k}, v{34+4*k}\nds_write_b64 v5, {q(32+4*k,2)}")
        self.poll_pipe(sets, hdone, o.gaph, 0, rec=9, or1=True)
        self.lds_arrive(L_CNT)
        a(f"""
        v_and_b32 v24, 1, v24
        v_readfirstlane_b32 s{S_LOC}, v24
        """)
        a.label("L_MQ")
        self.lds_wait(L_CNT, 4, VZ, 1, sleep=0)
        self.stamp(1)
        self.gemv_mfma(2, 4, 165, 8, [96], [128+4*c for c in range(8)])
        self.lds_arrive(L_CNT+4)
        self.flavor_masks(S_M+8, "0x55555555", "0x55555555")
        a(f"""
        s_add_u32 s{S_T1}, s{S_TAG}, s{S_LOC}
        v_mov_b32 v17, s{S_T1}
        v_mov_b32 v19, s{S_T1}
        """)
        self.lds_wait(L_CNT+4, 4, VZ, 1, sleep=0)
        self.gemv_reduce(6, 8)
        a(f"""
        v_mov_b32 v16, v8
        v_mov_b32_dpp v18, v8 quad_perm:[1,1,3,3] row_mask:0xf bank_mask:0xf
        """)
        a.label("L_pub")
        self.flavor_store(S_M+8, f"buffer_store_dwordx4 v[16:19], v7, {WS}, 0 offen")
        self.stamp(2)
        self.lds_arrive(L_CNT+24)

        self.aff(4, WS_QG, [(0,6,16)], [(S_B,65536),(S_HKV,4096),(S_WAVE,1024)])
        self.aff(6, L_QF, [(0,6,4)], [(S_WAVE,256)])
        a(f"s_mov_b32 s{S_T2}, 32768")
        sets = []
        for k in range(o.pdq):
            R = 128 + 8*k
            sets.append(([f"buffer_load_dwordx4 {q(R)}, v4, {WS}, 0 offen {o.ppol}",
                          f"buffer_load_dwordx4 {q(R+4)}, v4, {WS}, s{S_T2} offen {o.ppol}"], [R+1, R+3, R+5, R+7]))
        def qdone(k):
            R = 128 + 8*k
            a(f"v_add_f32 v12, v{R}, v{R+4}\nv_add_f32 v13, v{R+2}, v{R+6}")
        if o.trigq: self.lds_wait(L_CNT+20, o.trigqn, VZ, 1, sleep=4)
        self.poll_pipe(sets, qdone, o.gapq, o.slq, rec=10, or1=True)
        a(f"""
        v_and_b32 v24, 1, v24
        v_cvt_pk_bf16_f32 v12, v12, v13
        ds_write_b32 v{VZ}, v24 offset:{L_FLAG}
        ds_write_b32 v6, v12
        v_readfirstlane_b32 s{S_LOC}, v24
        """)
        self.lds_arrive(L_CNT+8)
        self.stamp(3)
        a(f"""
        s_cmp_lt_u32 s{S_J}, 16
        s_cbranch_scc1 L_Rpre
        s_cmp_lt_u32 s{S_IDX}, 4
        s_cbranch_scc1 L_S
        L_P:
        s_sub_u32 s{S_T2}, s{S_IDX}, 16
        s_cmp_lt_u32 s{S_IDX}, 4
        s_cselect_b32 s{S_T2}, s{S_IDX}, s{S_T2}     ; helper 0..15
        s_cmp_lt_u32 s{S_T2}, 8
        s_cselect_b32 s{SRD_A}, s{S_WG}, s{S_WU}
        s_cselect_b32 s{SRD_A+1}, s{S_WG+1}, s{S_WU+1}
        s_mov_b32 s{SRD_A+2}, {512*3584}
        s_mov_b32 s{SRD_A+3}, 0x20000
        s_and_b32 s{S_T2}, s{S_T2}, 7
        s_mul_i32 s{S_T3}, s{S_HKV}, 7
        s_lshr_b32 s{S_T3}, s{S_T3}, 1
        """)
        if o.trigp:
            self.aff(2, 0, [(2,4,3584),(0,2,128)], [(S_T2,64*3584),(S_WAVE,16*3584),(S_T3,128)])
            self.lds_wait(L_CNT+32, 8, VZ, 1, sleep=2)
            a(f"buffer_load_dword v3, v2, {sp(SRD_A,4)}, 0 offen {o.ppf}")
            if o.phalf: a(f"buffer_load_dword v4, v2, {sp(SRD_A,4)}, 0 offen offset:64 {o.ppf}")
        a(f"""
        s_sub_u32 s3, s{S_IDX}, 20
        s_cmp_ge_u32 s3, 7
        s_waitcnt vmcnt(0)
        s_cbranch_scc1 L_fin2
        """)
        a(f"""
        s_mul_i32 s{S_T0}, s{S_HKV}, 7
        s_add_u32 s3, s3, s{S_T0}                   ; f
        s_and_b32 s{S_T2}, s{S_WAVE}, 1
        s_lshr_b32 s{S_T3}, s{S_WAVE}, 1
        s_cmp_eq_u32 s{S_T2}, 0
        s_cselect_b32 s{SRD_A}, s{S_WG}, s{S_WU}
        s_cselect_b32 s{SRD_A+1}, s{S_WG+1}, s{S_WU+1}
        s_mov_b32 s{SRD_A+2}, {512*3584}
        s_mov_b32 s{SRD_A+3}, 0x20000
        """)
        self.srd(SRD_B, S_WD, 1792*1024)
        self.aff(2, 0, [(2,4,8*3584),(0,2,16)], [(S_T3,256*3584),(3,64)])
        self.aff(3, 0, [(4,2,8192),(0,4,16)], [(3,32768),(S_WAVE,256)])
        self.aff(4, L_AV, [(0,2,AVS),(2,2,16),(4,2,64)], [(S_T3,512)])
        self.aff(5, L_PART, [(2,2,PS),(0,2,16)], [(S_T3,4*PS),(S_T2,512)])
        self.aff(6, L_PART, [(4,2,2*PS),(0,4,64)], [(S_WAVE,16)])
        self.aff(7, WS_X1, [(0,6,16)], [(S_HKV,8192),(S_WAVE,2048)])
        self.aff(144, L_AV, [(0,6,8)], [(S_WAVE,AVS)])
        self.aff(145, L_ACT, [(4,2,64),(0,3,2)], [(S_WAVE,16)])
        self.aff(151, L_ACT, [(0,2,64),(4,2,16)], [])
        a(f"""
        v_mov_b32 v150, {L_ZERO}
        v_bfe_u32 v8, v0, 2, 2
        """)
        for x in range(4):
            a(f"v_cmp_eq_u32 vcc, {x}, v8\nv_cndmask_b32 v{146+x}, v150, v151, vcc")
        self.aff(150, WS_DP, [(0,4,64),(4,2,16)], [(3,8192),(S_WAVE,2048)])
        self.aff(151, WS_SC, [(0,6,32)], [(S_HKV,16384),(S_WAVE,4096)])
        a(f"""
        s_mov_b32 s{S_M+12}, 0x00f0000f
        s_mov_b32 s{S_M+13}, 0xf0000f00
        """)
        if o.wdearly:
            self.lds_wait(L_CNT+12, 8, VZ, 1, sleep=2)
            self.tile_loads(3, SRD_B, [j*1024 for j in range(8)], 96, o.wpol)
        self.lds_wait(L_CNT+16, 8, VZ, 1, sleep=2)
        self.stamp(4)
        if not o.wdearly: self.tile_loads(3, SRD_B, [j*1024 for j in range(8)], 96, o.wpol)
        self.tile_loads(2, SRD_A, [j*3584 for j in range(8)], 32, o.fpol)
        self.tile_loads(2, SRD_A, [(128+j)*3584 for j in range(8)], 64, o.fpol)
        def ftr():
            a("s_waitcnt vmcnt(20)")
            self.transpose_inplace(96, 1, 2)
            a("s_waitcnt vmcnt(12)")
            self.transpose_inplace(32, 1, 2)
            a("s_waitcnt vmcnt(4)")
            self.stamp(5)
            self.transpose_inplace(64, 1, 2)
        self.poll_tagged([f"buffer_load_dwordx4 {q(8+4*z)}, v151, {WS}, 0 offen offset:{(z>>1)*2048+(z&1)*16} sc1" for z in range(4)],
                         [9+2*i for i in range(8)], pre=ftr)
        for z in range(4):
            self.unpack(8+4*z, 136+2*z, 137+2*z)
            self.unpack(10+4*z, 128+2*z, 129+2*z)
        self.stamp(6)
        self.poll_tagged([f"buffer_load_dwordx4 v[8:11], v7, {WS}, 0 offen sc1",
                          f"buffer_load_dwordx4 v[12:15], v7, {WS}, 0 offen offset:1024 sc1"], [9, 11, 13, 15], sleepy=False)
        self.stamp(9)
        for i in range(4): self.unpack(8+2*i, 152+2*i, 153+2*i)
        self.layernorm(152, 8)
        self.modulate(152, 128, 136, 8, 12)
        a(f"""
        ds_write_b64 v144, v[12:13]
        ds_write_b64 v144, v[14:15] offset:512
        s_waitcnt lgkmcnt(0)
        s_barrier
        """)
        self.gemv_mfma(4, 4, 5, 8, [32, 64], [128, 132, 136, 140, 16, 20, 24, 28])
        a(f"""
        s_waitcnt lgkmcnt(0)
        s_barrier
        """)
        self.gemv_reduce(6, 8)
        self.round1(8)
        a(f"""
        v_mov_b32 v11, 0x3d372713                    ; 0.044715
        v_mul_f32 v10, v8, v8
        v_mov_b32_dpp v9, v8 {ror8}
        v_fma_f32 v10, v10, v11, 1.0
        v_mul_f32 v10, v10, v8                       ; x + 0.044715 x^3
        v_mul_f32 v10, 0xc0135761, v10               ; -2*sqrt(2/pi)*log2e
        v_exp_f32 v10, v10
        v_add_f32 v10, 1.0, v10
        v_rcp_f32 v10, v10
        v_mul_f32 v8, v8, v10                        ; gelu
        """)
        self.round1(8)
        a(f"""
        v_mul_f32 v8, v8, v9
        v_cvt_pk_bf16_f32 v8, v8, v8
        s_mov_b32 exec_lo, 0x00ff00ff
        s_mov_b32 exec_hi, 0x00ff00ff
        ds_write_b16 v145, v8
        s_mov_b64 exec, -1
        s_waitcnt lgkmcnt(0)
        s_barrier
        """)
        for x in range(4): a(f"ds_read_b128 {q(8+4*x)}, v{146+x}")
        for x in range(4):
            a(f"s_waitcnt lgkmcnt({3-x})")
            for hf in range(2):
                c = 4*hf + x
                a(f"v_mfma_f32_16x16x32_bf16 {q(128+4*hf)}, {q(8+4*x)}, {q(96+4*c)}, {'0' if x == 0 else q(128+4*hf)}")
        for i in range(4): a(f"v_min_u32 v{128+i}, -2, v{128+i}")
        a(f"buffer_store_dwordx4 v[128:131], v150, {WS}, 0 offen sc1")
        for i in range(4): a(f"v_min_u32 v{132+i}, -2, v{132+i}")
        a(f"buffer_store_dwordx4 v[132:135], v150, {WS}, 0 offen offset:1024 sc1")
        self.stamp(10)
        a("s_branch L_fin2")

        a.label("L_S")
        self.aff(4, WS_MOD + 1536*8, [(0,6,16)], [(S_B,24576),(S_WAVE,1024)])
        self.aff(7, WS_SC, [(0,6,16)], [(S_HKV,16384),(S_B,4096),(S_WAVE,1024)])
        self.flavor_masks(S_M+8, "-1", "-1")
        a(f"""
        v_add_u32 v5, 4096, v4
        s_mov_b32 s{S_T2}, 98304
        v_mov_b32 v17, s{S_TAG}
        v_mov_b32 v19, s{S_TAG}
        """)
        self.lds_wait(L_CNT+28, 8, VZ, 1, sleep=2)
        self.stamp(4)
        self.poll_tagged([f"buffer_load_dwordx4 {q(32+4*i)}, v{4+(i>>1)}, {WS}, {('0', 's%d' % S_T2)[i&1]} offen sc1" for i in range(4)],
                         [33+2*i for i in range(8)])
        self.stamp(5)
        a(f"""
        v_add_f32 v8, v32, v36
        v_add_f32 v9, v34, v38
        v_add_f32 v10, v40, v44
        v_add_f32 v11, v42, v46
        v_cvt_pk_bf16_f32 v16, v8, v9
        """)
        self.round2(10, 11, 12)
        a(f"""
        v_add_f32 v10, 1.0, v10
        v_add_f32 v11, 1.0, v11
        v_cvt_pk_bf16_f32 v18, v10, v11
        """)
        self.flavor_store(S_M+8, f"buffer_store_dwordx4 v[16:19], v7, {WS}, 0 offen")
        self.stamp(6)
        a("s_branch L_P")

        a.label("L_Rpre")
        self.srd(SRD_B, S_X, 4096)
        self.srd(SRD_A, S_WO, 4096*1024)
        a(f"""
        s_and_b32 s{S_T1}, s{S_J}, 3
        s_lshr_b32 s{S_T2}, s{S_J}, 2
        """)
        self.aff(2, 0, [(4,1,65536),(5,1,1024),(0,4,16)], [(S_HKV,4*131072),(S_T1,131072),(S_T2,256),(S_WAVE,2048)])
        self.aff(4, WS_OP, [(2,2,4096),(4,2,128),(0,2,16)], [(S_HKV,65536),(S_T1,16384),(S_WAVE,512)])
        self.aff(5, WS_ST, [(0,4,16)], [(S_HKV,1024),(S_T1,256)])
        self.aff(6, L_PW, [(0,4,144),(4,2,16)], [(S_WAVE,PWS)])
        self.aff(7, L_PW, [(3,3,144),(0,3,16)], [(S_WAVE,8*144)])
        self.aff(3, WS_AP, [(0,6,16)], [(S_HKV,4*8192),(S_T1,8192),(S_T2,2048),(S_WAVE,1024)])
        self.aff(21, 0, [(4,2,1024),(0,3,2)], [(S_CQ,16)])
        self.aff(22, WS_MOD + 1024*8, [(4,2,24576),(3,1,98304),(0,3,8)], [(S_CQ,64)])
        a(f"s_and_b32 s{S_T3}, s{S_HKV}, 1")
        self.aff(163, WS_AP, [(3,3,8192),(0,3,16)], [(S_CQ,128)])
        self.aff(164, WS_X1, [(4,2,2048),(2,1,16)], [(S_HKV,8192),(S_CQ,32)])
        self.aff(165, 0, [(4,2,1024)], [(S_CQ,16),(S_T3,8)])
        self.flavor_masks(S_M+8, "0x00110011", "0x00110011")
        a(f"s_mov_b32 s{S_T2}, {1536*8}")
        self.lds_wait(L_CNT+12, 8, VZ, 1, sleep=2)
        self.stamp(4)
        self.tile_loads(2, SRD_A, [j*8192 for j in range(8)], 32, o.wpol)
        a(f"buffer_load_ushort v160, v21, {sp(SRD_B,4)}, 0 offen")
        def wtr():
            for e in range(4):
                a(f"s_waitcnt vmcnt({3+6-2*e})")
                self.transpose_pair(32, 96, e, 4)
            for i in range(16): a(f"v_mov_b32 v{144+i}, 0")
        self.poll_tagged([f"buffer_load_dwordx2 v[8:9], v22, {WS}, 0 offen sc1",
                          f"buffer_load_dwordx2 v[10:11], v22, {WS}, s{S_T2} offen sc1"], [9, 11], pre=wtr)
        a(f"""
        v_lshlrev_b32 v160, 16, v160                ; x
        v_add_f32_dpp v161, v8, v8 {ror8}
        v_add_f32_dpp v162, v10, v10 {ror8}
        """)
        self.round2(161, 162, 2)
        if not o.rec: self.stamp(9)
        groups = [([f"buffer_load_dwordx4 {q(128+8*e+4*z)}, v4, {WS}, 0 offen offset:{e*2048+z*64} sc1" for z in range(2)],
                   range(128+8*e, 136+8*e), "-1") for e in range(2)]
        groups.append(([f"buffer_load_dwordx4 v[8:11], v5, {WS}, 0 offen sc1"], range(8, 12), "-1"))
        self.poll_sent(groups, 16)
        self.stamp(5)
        bc = "op_sel_hi:[1,0]"
        a(f"""
        v_max_f32 v16, v8, v10
        v_max_f32_dpp v16, v16, v16 {ror8}
        v_max_f32_dpp v16, v16, v16 {ror4}
        v_sub_f32 v8, v8, v16
        v_sub_f32 v10, v10, v16
        v_exp_f32 v8, v8
        v_exp_f32 v10, v10
        v_mul_f32 v16, v8, v9
        v_fmac_f32 v16, v10, v11
        """)
        for i in range(4): a(f"v_pk_mul_f32 {q(128+2*i,2)}, {q(128+2*i,2)}, v[8:9] {bc}")
        a(f"v_add_f32_dpp v16, v16, v16 {ror8}")
        for i in range(4): a(f"v_pk_fma_f32 {q(128+2*i,2)}, {q(136+2*i,2)}, v[10:11], {q(128+2*i,2)} op_sel_hi:[1,0,1]")
        a(f"v_add_f32_dpp v16, v16, v16 {ror4}")
        for i in range(8): a(f"v_add_f32_dpp v{128+i}, v{128+i}, v{128+i} {ror8}")
        a(f"v_rcp_f32 v16, v16")
        for i in range(8): a(f"v_add_f32_dpp v{128+i}, v{128+i}, v{128+i} {ror4}")
        for i in range(4): a(f"v_pk_mul_f32 {q(128+2*i,2)}, {q(128+2*i,2)}, v[16:17] {bc}")
        for x in range(4):
            m = 0x000f000f << (4*x)
            a(f"s_mov_b32 exec_lo, {m}\ns_mov_b32 exec_hi, {m}")
            for i in range(4): a(f"v_cvt_pk_bf16_f32 v{144+4*x+i}, v{128+2*i}, v{129+2*i}")
        a("s_mov_b64 exec, -1")
        for x in range(4):
            for hf in range(2):
                D = 16 + 4*hf
                a(f"v_mfma_f32_16x16x32_bf16 {q(D)}, {q(144+4*x)}, {q(96+4*(4*hf+x))}, {'0' if x == 0 else q(D)}")
        for hf in range(2): a(f"ds_write_b128 v6, {q(16+4*hf)} offset:{hf*64}")
        a(f"""
        s_mov_b32 s{S_T1}, {8*8192}
        s_mov_b32 s{S_T2}, {16*8192}
        s_mov_b32 s{S_T3}, {24*8192}
        s_cmp_ge_u32 s{S_WAVE}, 2
        s_waitcnt lgkmcnt(0)
        s_barrier
        s_cbranch_scc1 L_R
        """)
        for k in range(4): a(f"ds_read_b128 {q(8+4*k)}, v7 offset:{k*PWS}")
        a(f"""
        s_waitcnt lgkmcnt(2)
        v_pk_add_f32 v[8:9], v[8:9], v[12:13]
        v_pk_add_f32 v[10:11], v[10:11], v[14:15]
        s_waitcnt lgkmcnt(0)
        v_pk_add_f32 v[16:17], v[16:17], v[20:21]
        v_pk_add_f32 v[18:19], v[18:19], v[22:23]
        v_pk_add_f32 v[8:9], v[8:9], v[16:17]
        v_pk_add_f32 v[10:11], v[10:11], v[18:19]
        """)
        for i in range(4): a(f"v_min_u32 v{8+i}, -2, v{8+i}")
        a(f"buffer_store_dwordx4 v[8:11], v3, {WS}, 0 offen sc1")
        self.stamp(6)
        a.label("L_R")
        so = ["0", f"s{S_T1}", f"s{S_T2}", f"s{S_T3}"]
        self.poll_sent([([f"buffer_load_dwordx4 {q(32+4*t)}, v163, {WS}, {so[t]} offen sc1"], range(32+4*t, 36+4*t), "-1")
                        for t in range(4)], 16)
        self.stamp(7)
        self.sum4q(32, 8)
        self.scatter4(8)
        a(f"v_add_f32_dpp v8, v8, v8 {ror8}")
        self.round1(8)
        a("v_mul_f32 v8, v8, v161")
        self.round1(8)
        a("v_add_f32 v8, v8, v160")
        a(f"v_mov_b32 v160, v8")
        self.pack4(8)
        self.flavor_store(S_M+8, f"buffer_store_dwordx4 v[8:11], v164, {WS}, 0 offen")
        self.stamp(8)
        a(f"""
        s_lshr_b32 s{S_T0}, s{S_HKV}, 1
        s_cmp_lg_u32 s{S_T0}, s{S_WAVE}
        s_cbranch_scc1 L_fin2
        s_mov_b32 s{S_T1}, {16*8192}
        s_mov_b32 s{S_T2}, {32*8192}
        s_mov_b32 s{S_T3}, {48*8192}
        v_mov_b32 v44, 0
        v_mov_b32 v45, 0
        v_mov_b32 v46, 0
        v_mov_b32 v47, 0
        s_and_b32 s{S_U}, s{S_HKV}, 1
        s_lshl_b32 s{S_U}, s{S_U}, 2
        s_lshl_b32 s{S_U}, 0x00010001, s{S_U}
        """)
        self.round1(160)
        self.srd(SRD_A, S_OUT, 4096)
        self.poll_sent([([f"buffer_load_dwordx4 {q(32+4*t)}, v166, {WS}, {so[t]} offen sc1"],
                         range(32+4*t, 36+4*t), "-1" if t < 3 else ("-1", "0")) for t in range(4)], 16)
        self.sum4q(32, 8)
        self.scatter4(8)
        a(f"""
        v_add_f32_dpp v8, v8, v8 {ror8}
        v_add_f32_dpp v8, v8, v8 {ror4}
        """)
        self.round1(8)
        a("v_mul_f32 v8, v8, v162")
        self.round1(8)
        a(f"""
        v_add_f32 v8, v8, v160
        v_mov_b32_dpp v9, v8 quad_perm:[1,1,3,3] row_mask:0xf bank_mask:0xf
        v_cvt_pk_bf16_f32 v8, v8, v9
        v_mov_b32_dpp v9, v8 quad_perm:[2,2,2,2] row_mask:0xf bank_mask:0xf
        s_mov_b32 exec_lo, s{S_U}
        s_mov_b32 exec_hi, s{S_U}
        buffer_store_dwordx2 v[8:9], v165, {sp(SRD_A,4)}, 0 offen
        s_cmp_lg_u32 s2, 32
        s_cbranch_scc1 L_fin
        s_mov_b64 exec, 1
        s_add_u32 s{S_T0}, s{S_EPOCH}, 1
        v_mov_b32 v1, {WS_EPOCH}
        v_mov_b32 v2, s{S_T0}
        buffer_store_dword v2, v1, {WS}, 0 offen sc1
        """)
        a.label("L_fin")
        self.stamp(11)
        a.label("L_fin2")
        self.flush_stamps(12, 0, 0)
        self.lite_end()
        a.label("L_end")
        a("s_endpgm")

    def sum4q(self, R, D):
        self.a(f"""
        v_pk_add_f32 {q(R,2)}, {q(R,2)}, {q(R+4,2)}
        v_pk_add_f32 {q(R+2,2)}, {q(R+2,2)}, {q(R+6,2)}
        v_pk_add_f32 {q(R+8,2)}, {q(R+8,2)}, {q(R+12,2)}
        v_pk_add_f32 {q(R+10,2)}, {q(R+10,2)}, {q(R+14,2)}
        v_pk_add_f32 {q(D,2)}, {q(R,2)}, {q(R+8,2)}
        v_pk_add_f32 {q(D+2,2)}, {q(R+2,2)}, {q(R+10,2)}
        """)

    def mq_addr(self):
        self.aff(4, L_AV, [(0,2,AVS),(2,1,16),(4,2,32)], [(S_WAVE,128)])
        self.aff(165, L_PART, [(3,1,PS),(0,3,16)], [(S_WAVE,2*PS)])
        self.aff(6, L_PART, [(4,2,2*PS),(0,3,128),(3,1,16)], [(S_WAVE,32)])
        self.a(f"""
        s_mov_b32 s{S_M+12}, 0xff0000ff
        s_mov_b32 s{S_M+13}, 0
        """)

    def lds_arrive(self, off, wait=False):
        self.a(f"""
        v_mov_b32 v1, 1
        s_mov_b64 exec, 1
        ds_add_u32 v167, v1 offset:{off}
        s_mov_b64 exec, -1
        """)

    def build(self):
        if self.o.stamps:
            for k in range(1, 12):
                self.a(f"s_mov_b64 {sp(S_ST+2*k)}, 0")
        self.prologue()
        self.stream()
        self.aux()
        return self.a.text()


NEARLY = 28

def header():
    ref = open("adaLN_cond__sliding_block_cached__geglu_ffn__decode.s.ref").read().split("\n")
    out = []
    for l in ref:
        if l.startswith("; @launch"): break
        out.append(l)
    return "\n".join(out) + "\n"


def main():
    ap = argparse.ArgumentParser()
    ap.add_argument("out")
    ap.add_argument("--stamps", action="store_true")
    ap.add_argument("--lite", action="store_true")
    ap.add_argument("--depth", type=int, default=3)
    ap.add_argument("--tailfree", type=int, default=0)
    ap.add_argument("--nq", type=int, default=0)
    ap.add_argument("--chkstep", type=int, default=1)
    ap.add_argument("--qkextra", type=int, default=1)
    ap.add_argument("--trigw", type=int, default=31)
    ap.add_argument("--trigf", type=int, default=33)
    ap.add_argument("--pdm", type=int, default=1)
    ap.add_argument("--pdq", type=int, default=2)
    ap.add_argument("--gapm", type=int, default=14)
    ap.add_argument("--gapq", type=int, default=14)
    ap.add_argument("--slm", type=int, default=0)
    ap.add_argument("--slq", type=int, default=0)
    ap.add_argument("--trigq", type=int, default=19)
    ap.add_argument("--trigqn", type=int, default=1)
    ap.add_argument("--rec", type=int, default=0)
    ap.add_argument("--ppol", default="sc1")
    ap.add_argument("--pause", type=int, default=8)
    ap.add_argument("--pauseoff", type=int, default=24)
    ap.add_argument("--pausecnt", type=int, default=4)
    ap.add_argument("--pdh", type=int, default=3)
    ap.add_argument("--gaph", type=int, default=12)
    ap.add_argument("--dlyh", type=int, default=0)
    ap.add_argument("--spread", type=int, default=1)
    ap.add_argument("--predirty", type=int, default=2)
    ap.add_argument("--kadbg", type=int, default=0)
    ap.add_argument("--prepol", default="sc1")
    ap.add_argument("--kalean", type=int, default=0)
    ap.add_argument("--trigs", type=int, default=28)
    ap.add_argument("--trigp", type=int, default=0)
    ap.add_argument("--ppf", default="nt")
    ap.add_argument("--fdepth", type=int, default=6)
    ap.add_argument("--ldepth", type=int, default=0)
    ap.add_argument("--fsw", type=int, default=0)
    ap.add_argument("--lsw", type=int, default=16)
    ap.add_argument("--depth2", type=int, default=4)
    ap.add_argument("--sw2", type=int, default=24)
    ap.add_argument("--mearly", type=int, default=0)
    ap.add_argument("--clrfirst", type=int, default=0)
    ap.add_argument("--wdearly", type=int, default=1)
    ap.add_argument("--phalf", type=int, default=0)
    ap.add_argument("--hdepth", type=int, default=6)
    ap.add_argument("--abl", type=int, default=0)
    ap.add_argument("--swave", type=int, default=4)
    ap.add_argument("--cpol", default="")
    ap.add_argument("--xtpol", default="")
    ap.add_argument("--prio", type=int, default=0)
    ap.add_argument("--kvpol", default="nt")
    ap.add_argument("--wpol", default="nt")
    ap.add_argument("--fpol", default="nt")
    ap.add_argument("--sleep", type=int, default=0)
    ap.add_argument("--local", type=int, default=1)
    ap.add_argument("--qg", type=lambda x: int(x,0), default=0x1C0000)
    o = ap.parse_args()
    global WS_QG
    WS_QG = o.qg
    body = G(o).build()
    try: hd = header()
    except Exception: hd = "; generated\n"
    open(o.out, "w").write(kernel_file([(KN, body, 168, 102, 168)], [(KN, 256, 768, LDS_BYTES)], header=hd))


if __name__ == "__main__":
    main()
```

```python
import sys, argparse
from asmlib import *

WS_EPOCH = 0x0
WS_XT = 0xE000
WS_OP = 0x20000
WS_ST = 0xA0000
WS_AP = 0xB0000
WS_DP = 0xF0000
WS_X1 = 0x160000
WS_HG = 0x170000
WS_MOD = 0x180000
WS_QG = 0x1C0000
WS_STAMP = 0x200000
WS_SC = 0x300000
WS_SIZE = 0x1000000
L_CNT = 0x0
L_ZERO = 0x40
L_FLAG = 0x80
L_QF = 0x100
L_MX = 0x500
L_LS = 0x580
L_ACT = 0x600
L_AV = 0x800
AVS = 1024 + 64
L_PART = 0x1A00
PS = 1024 + 16
L_OL = 0x4000
OLS = 2048 + 32
L_PW = 0x8400
PWS = 16*144
LDS_BYTES = L_PW + 4*PWS

LOG2E = 0x3FB8AA3B
SCALE = 0x3DB504F3
TMO = 40000

S_X, S_K, S_V, S_WQ, S_WO, S_WG, S_WU = 4, 6, 8, 10, 12, 16, 18
S_WD, S_C, S_WM, S_OUT, S_DBG, S_WS = 20, 22, 24, 26, 28, 30
S_WAVE, S_HKV, S_IDX, S_B, S_CH = 32, 33, 34, 35, 36
S_TAG, S_EPOCH, S_TMO = 37, 38, 39
SRD_WS = 40
SRD_A = 44
SRD_B = 48
S_PLO, S_PHI = 52, 53
S_T0, S_T1, S_T2, S_T3 = 54, 55, 56, 57
S_M = 58
S_HI = 72
S_LOC = 73
S_ST = 74
S_CQ, S_TGT = 98, 99
S_U = 100
S_KH, S_J = 28, 29
S_TB = 6
S_PC = 14


def q(r, n=4): return f"v[{r}:{r+n-1}]"
def sp(r, n=2): return f"s[{r}:{r+n-1}]"


class G:
    def __init__(self, o):
        self.o = o
        self.a = Asm()
        self.nst = 0

    def stamp(self, k):
        if self.o.stamps or (self.o.lite and k == 0) or (self.o.dbl and k in (0, self.o.dbl)):
            self.a(f"s_memrealtime {sp(S_ST+2*k)}")

    def lite_end(self):
        if not self.o.lite: return
        self.a(f"""
        s_memrealtime {sp(S_ST+2)}
        s_mov_b64 exec, 1
        s_lshl_b32 s{S_T0}, s2, 8
        s_lshl_b32 s{S_T1}, s{S_WAVE}, 4
        s_add_u32 s{S_T0}, s{S_T0}, s{S_T1}
        s_add_u32 s{S_T0}, s{S_T0}, {WS_STAMP}
        v_mov_b32 v1, s{S_T0}
        s_waitcnt lgkmcnt(0)
        v_mov_b32 v2, s{S_ST}
        v_mov_b32 v3, s{S_ST+1}
        v_mov_b32 v4, s{S_ST+2}
        v_mov_b32 v5, s{S_ST+3}
        buffer_store_dwordx4 v[2:5], v1, {sp(SRD_WS,4)}, 0 offen
        """)

    def flush_stamps(self, n, slot, cond_wave):
        if not self.o.stamps: return
        a = self.a
        a(f"""
        s_waitcnt lgkmcnt(0)
        s_mov_b64 exec, -1
        s_lshl_b32 s{S_T0}, s2, 11
        s_lshl_b32 s{S_T1}, s{S_WAVE}, 7
        s_add_u32 s{S_T0}, s{S_T0}, s{S_T1}
        s_add_u32 s{S_T0}, s{S_T0}, {WS_STAMP}
        v_mbcnt_lo_u32_b32 v1, -1, 0
        v_lshlrev_b32 v1, 2, v1
        v_add_u32 v1, s{S_T0}, v1
        v_mov_b32 v2, 0
        """)
        for k in range(2*n): a(f"v_writelane_b32 v2, s{S_ST+k}, {k}")
        a(f"""
        s_mov_b32 exec_hi, 0
        buffer_store_dword v2, v1, {sp(SRD_WS,4)}, 0 offen
        """)

    def srd(self, dst, ptr, size):
        self.srd_hi(dst, size); self.srd_lo(dst, ptr)

    def srd_hi(self, dst, size):
        self.a(f"""
        s_mov_b32 s{dst+2}, {size}
        s_mov_b32 s{dst+3}, 0x20000
        """)

    def srd_lo(self, dst, ptr):
        self.a(f"s_mov_b64 {sp(dst)}, {sp(ptr)}")

    def transpose(self, src, dst, nrows=8):
        a = self.a
        ne = nrows // 2
        for e in range(ne):
            self.transpose_pair(src, dst, e, ne)

    def transpose_pair(self, src, dst, e, ne):
        a = self.a
        for d in range(4):
            lo, hi = src + 8*e + d, src + 8*e + 4 + d
            a(f"v_perm_b32 v{dst + (2*d)*ne + e}, v{hi}, v{lo}, s{S_PLO}")
            a(f"v_perm_b32 v{dst + (2*d+1)*ne + e}, v{hi}, v{lo}, s{S_PHI}")

    def transpose_inplace(self, b, t0, t1):
        a = self.a
        R = lambda row, d: b + 4*row + d
        for e in range(4):
            a(f"v_perm_b32 v{t0}, v{R(2*e+1,e)}, v{R(2*e,e)}, s{S_PLO}")
            a(f"v_perm_b32 v{R(2*e+1,e)}, v{R(2*e+1,e)}, v{R(2*e,e)}, s{S_PHI}")
            a(f"v_mov_b32 v{R(2*e,e)}, v{t0}")
            for d in range(e+1, 4):
                a(f"v_perm_b32 v{t0}, v{R(2*e+1,d)}, v{R(2*e,d)}, s{S_PLO}")
                a(f"v_perm_b32 v{t1}, v{R(2*e+1,d)}, v{R(2*e,d)}, s{S_PHI}")
                a(f"v_perm_b32 v{R(2*e,d)}, v{R(2*d+1,e)}, v{R(2*d,e)}, s{S_PLO}")
                a(f"v_perm_b32 v{R(2*e+1,d)}, v{R(2*d+1,e)}, v{R(2*d,e)}, s{S_PHI}")
                a(f"v_mov_b32 v{R(2*d,e)}, v{t0}")
                a(f"v_mov_b32 v{R(2*d+1,e)}, v{t1}")

    def rows_allreduce(self, op, r, t):
        self.a(f"""
        v_mov_b32 v{t}, v{r}
        v_permlane16_swap_b32 v{r}, v{t}
        {op} v{r}, v{r}, v{t}
        v_mov_b32 v{t}, v{r}
        v_permlane32_swap_b32 v{r}, v{t}
        {op} v{r}, v{r}, v{t}
        """)

    def wave_allreduce2(self, r0, r1, t0, t1):
        a = self.a
        for m in ("quad_perm:[1,0,3,2]", "quad_perm:[2,3,0,1]", "row_half_mirror", "row_mirror"):
            a(f"v_add_f32_dpp v{r0}, v{r0}, v{r0} {m} row_mask:0xf bank_mask:0xf")
            a(f"v_add_f32_dpp v{r1}, v{r1}, v{r1} {m} row_mask:0xf bank_mask:0xf")
        for sw in ("16", "32"):
            a(f"""
            v_mov_b32 v{t0}, v{r0}
            v_mov_b32 v{t1}, v{r1}
            v_permlane{sw}_swap_b32 v{r0}, v{t0}
            v_permlane{sw}_swap_b32 v{r1}, v{t1}
            v_add_f32 v{r0}, v{r0}, v{t0}
            v_add_f32 v{r1}, v{r1}, v{t1}
            """)

    def scatter4(self, r):
        self.a(f"""
        v_permlane32_swap_b32 v{r}, v{r+2}
        v_permlane32_swap_b32 v{r+1}, v{r+3}
        v_add_f32 v{r}, v{r}, v{r+2}
        v_add_f32 v{r+1}, v{r+1}, v{r+3}
        v_permlane16_swap_b32 v{r}, v{r+1}
        v_add_f32 v{r}, v{r}, v{r+1}
        """)

    def unpack(self, pk, lo, hi):
        self.a(f"""
        v_and_b32 v{hi}, s{S_HI}, v{pk}
        v_lshlrev_b32 v{lo}, 16, v{pk}
        """) if lo == pk else self.a(f"""
        v_lshlrev_b32 v{lo}, 16, v{pk}
        v_and_b32 v{hi}, s{S_HI}, v{pk}
        """)

    def round2(self, r0, r1, t):
        self.a(f"v_cvt_pk_bf16_f32 v{t}, v{r0}, v{r1}")
        self.unpack(t, r0, r1)

    def round1(self, r):
        self.a(f"""
        v_cvt_pk_bf16_f32 v{r}, v{r}, v{r}
        v_and_b32 v{r}, s{S_HI}, v{r}
        """)

    def lds_sync(self, cnt, target, vt0, vt1):
        a = self.a
        L = a.newlabel("Lsync"); E = a.newlabel("Lsyncx")
        a(f"""
        v_mov_b32 v{vt0}, {cnt}
        v_mov_b32 v{vt1}, 1
        s_waitcnt lgkmcnt(0)
        s_mov_b64 exec, 1
        ds_add_u32 v{vt0}, v{vt1}
        s_mov_b64 exec, -1
        s_mov_b32 s{S_TMO}, {TMO*8}
        {L}:
        ds_read_b32 v{vt1}, v{vt0}
        s_sub_u32 s{S_TMO}, s{S_TMO}, 1
        s_cbranch_scc1 {E}
        s_waitcnt lgkmcnt(0)
        v_readfirstlane_b32 s{S_T0}, v{vt1}
        s_cmp_lt_u32 s{S_T0}, {target}
        s_cbranch_scc1 {L}
        {E}:
        s_waitcnt lgkmcnt(0)
        """)

    def poll_tagged(self, loads, tagregs, pre=None, sleepy=True, wait0=0):
        a = self.a
        L = a.newlabel("Lpt"); E = a.newlabel("Lptx"); C = a.newlabel("Lptc")
        a(f"s_mov_b32 s{S_TMO}, {TMO}")
        if pre:
            for l in loads: a(l)
            pre()
            a(f"s_waitcnt vmcnt({wait0})\ns_branch {C}")
        a.label(L)
        if self.o.sleep and sleepy: a(f"s_sleep {self.o.sleep}")
        for l in loads: a(l)
        a(f"""
        s_sub_u32 s{S_TMO}, s{S_TMO}, 1
        s_waitcnt vmcnt(0)
        s_cbranch_scc1 {E}
        """)
        a.label(C)
        for i, r in enumerate(tagregs):
            if i == 0: a(f"v_cmp_ne_u32 vcc, s{S_TAG}, v{r}")
            else:
                a(f"v_cmp_ne_u32 {sp(S_T0)}, s{S_TAG}, v{r}")
                a(f"s_or_b64 vcc, vcc, {sp(S_T0)}")
        a(f"s_cbranch_scc1 {L}" if len(tagregs) > 1 else f"s_cbranch_vccnz {L}")
        a.label(E)

    def embed(self, r, vm, n=4):
        for i in range(n): self.a(f"v_bfi_b32 v{r+i}, v{vm}, s{S_TB+i%4}, v{r+i}")

    def poll_emb(self, groups, tmp):
        a = self.a
        L = a.newlabel("Lps"); E = a.newlabel("Lpsx")
        a(f"s_mov_b32 s{S_TMO}, {TMO}")
        for i, (loads, regs, dst, init) in enumerate(groups):
            if isinstance(init, tuple):
                a(f"s_mov_b32 s{S_M+2*i}, {init[0]}\ns_mov_b32 s{S_M+2*i+1}, {init[1]}")
            else:
                a(f"s_mov_b64 {sp(S_M+2*i)}, {init}")
        a.label(L)
        for i, (loads, regs, dst, init) in enumerate(groups):
            a(f"s_mov_b64 exec, {sp(S_M+2*i)}")
            for l in loads: a(l)
        a(f"""
        s_mov_b64 exec, -1
        s_sub_u32 s{S_TMO}, s{S_TMO}, 1
        s_cbranch_scc1 {E}
        """)
        left = sum(len(g[0]) for g in groups)
        for i, (loads, regs, dst, init) in enumerate(groups):
            left -= len(loads)
            a(f"s_waitcnt vmcnt({left})")
            rs = list(regs)
            if dst is None:
                for k, r in enumerate(rs): a(f"v_xor_b32 v{tmp+k}, s{S_TAG}, v{r}")
                assert len(rs) == 2
                a(f"v_or_b32 v{tmp}, v{tmp}, v{tmp+1}\nv_cmp_ne_u32 {sp(S_M+2*i)}, 0, v{tmp}")
                continue
            for k, r in enumerate(rs): a(f"v_xor_b32 v{dst+k}, s{S_TB+k%4}, v{r}")
            rs = [dst+k for k in range(len(rs))]
            a(f"v_or3_b32 v{tmp}, v{rs[0]}, v{rs[1]}, v{rs[2]}")
            rs = rs[3:]
            while len(rs) >= 2:
                a(f"v_or3_b32 v{tmp}, v{tmp}, v{rs[0]}, v{rs[1]}"); rs = rs[2:]
            a(f"v_or_b32 v{tmp}, v{tmp}, v{rs[0]}")
            a(f"v_cmp_ne_u32_sdwa {sp(S_M+2*i)}, v{tmp}, v167 src0_sel:BYTE_0 src1_sel:DWORD")
        a(f"s_or_b64 vcc, {sp(S_M)}, {sp(S_M+2)}")
        for i in range(2, len(groups)):
            a(f"s_or_b64 vcc, vcc, {sp(S_M+2*i)}")
        a(f"""
        s_cbranch_scc1 {L}
        {E}:
        s_waitcnt vmcnt(0)
        """)

    def capture(self, fn):
        old = self.a
        self.a = Asm(); self.a.nlabel = old.nlabel
        fn()
        lines = self.a.lines; old.nlabel = self.a.nlabel
        self.a = old
        return lines

    def aff(self, vd, base, lt=(), st=(), vt=1):
        a = self.a
        first = base == 0 and len(st) > 0
        if not first: a(f"s_mov_b32 s{S_U}, {base}")
        for (sr, mul) in st:
            d = S_U if first else S_U+1
            if mul == 1:
                a(f"s_mov_b32 s{S_U}, s{sr}" if first else f"s_add_u32 s{S_U}, s{S_U}, s{sr}")
            elif mul in (2, 4, 8, 16) and not first:
                a(f"s_lshl{mul.bit_length()-1}_add_u32 s{S_U}, s{sr}, s{S_U}")
            else:
                a(f"s_lshl_b32 s{d}, s{sr}, {mul.bit_length()-1}" if mul & (mul-1) == 0 else f"s_mul_i32 s{d}, s{sr}, {mul}")
                if not first: a(f"s_add_u32 s{S_U}, s{S_U}, s{S_U+1}")
            first = False
        acc = f"s{S_U}"
        if not lt: a(f"v_mov_b32 v{vd}, {acc}")
        for (sh, w, mul) in lt:
            if sh == 0 and w >= 6: src = "v0"
            else:
                src = f"v{vt}"
                if sh + w >= 6: a(f"v_lshrrev_b32 v{vt}, {sh}, v0")
                elif sh == 0: a(f"v_and_b32 v{vt}, {(1<<w)-1}, v0")
                else: a(f"v_bfe_u32 v{vt}, v0, {sh}, {w}")
            if mul & (mul-1) == 0:
                a(f"v_lshl_add_u32 v{vd}, {src}, {mul.bit_length()-1}, {acc}")
            else:
                a(f"v_mul_u32_u24 v{vt}, {mul}, {src}\nv_add_u32 v{vd}, {acc}, v{vt}")
            acc = f"v{vd}"

    def flavor_masks(self, dst, lo, hi):
        self.a(f"""
        s_cmp_lg_u32 s{S_LOC}, 0
        s_cselect_b32 s{dst}, {lo}, 0
        s_cselect_b32 s{dst+1}, {hi}, 0
        s_cselect_b32 s{dst+2}, 0, {lo}
        s_cselect_b32 s{dst+3}, 0, {hi}
        """)

    def flavor_store(self, m, ins):
        self.a(f"""
        s_mov_b64 exec, {sp(m)}
        {ins}
        s_mov_b64 exec, {sp(m+2)}
        {ins} sc1
        s_mov_b64 exec, -1
        """)

    def quad_reduce(self, r, r2):
        a = self.a
        for i in range(4): a(f"v_add_f32 v{r+i}, v{r+i}, v{r2+i}")
        for m in ("[1,0,3,2]", "[2,3,0,1]"):
            for i in range(4):
                a(f"v_add_f32_dpp v{r+i}, v{r+i}, v{r+i} quad_perm:{m} row_mask:0xf bank_mask:0xf")
        self.embed(r, 31)

    def tile_loads(self, va, srd, offs, dst, pol):
        a = self.a
        cur = None
        for i, off in enumerate(offs):
            hi, lo = off & ~4095, off & 4095
            if hi == 0: so = "0"
            else:
                if cur != hi: a(f"s_mov_b32 s{S_T0}, {hi}"); cur = hi
                so = f"s{S_T0}"
            a(f"buffer_load_dwordx4 {q(dst+4*i)}, v{va}, {sp(srd,4)}, {so} offen offset:{lo} {pol}")

    def tile_loads_k(self, va, srd, stride, sk, dst, pol, n=8):
        a = self.a
        for i in range(n):
            so = "0" if i == 0 else f"s{sk}" if i == 1 else f"s{S_T0}"
            if i == 2: a(f"s_lshl_b32 s{S_T0}, s{sk}, 1")
            elif i > 2: a(f"s_add_u32 s{S_T0}, s{S_T0}, s{sk}")
            a(f"buffer_load_dwordx4 {q(dst+4*i)}, v{va}, {sp(srd,4)}, {so} offen {pol}")

    def gemv_reduce(self, vr, R):
        a = self.a
        a(f"""
        ds_read_b128 {q(R)}, v{vr}
        ds_read_b128 {q(R+4)}, v{vr} offset:{PS}
        s_waitcnt lgkmcnt(0)
        v_pk_add_f32 {q(R,2)}, {q(R,2)}, {q(R+4,2)}
        v_pk_add_f32 {q(R+2,2)}, {q(R+2,2)}, {q(R+6,2)}
        """)
        self.scatter4(R)

    def pack4(self, R):
        self.a(f"""
        v_mov_b32_dpp v{R+1}, v{R} quad_perm:[1,1,3,3] row_mask:0xf bank_mask:0xf
        v_mov_b32 v{R+3}, s{S_TAG}
        v_cvt_pk_bf16_f32 v{R}, v{R}, v{R+1}
        v_mov_b32 v{R+1}, s{S_TAG}
        v_mov_b32_dpp v{R+2}, v{R} quad_perm:[2,2,2,2] row_mask:0xf bank_mask:0xf
        """)

    def round8(self, X, T):
        for i in range(4): self.a(f"v_cvt_pk_bf16_f32 v{T+i}, v{X+2*i}, v{X+2*i+1}")
        for i in range(4): self.unpack(T+i, X+2*i, X+2*i+1)

    def layernorm(self, X, T):
        a = self.a
        bc = "op_sel_hi:[1,0]"; ng = "neg_lo:[0,1] neg_hi:[0,1]"
        a(f"v_readfirstlane_b32 s{S_U}, v{X}")
        for i in range(4): a(f"v_pk_add_f32 {q(T+2*i,2)}, {q(X+2*i,2)}, {sp(S_U)} {bc} {ng}")
        a(f"""
        v_pk_add_f32 {q(T+8,2)}, {q(T,2)}, {q(T+2,2)}
        v_pk_mul_f32 {q(T+10,2)}, {q(T,2)}, {q(T,2)}
        v_pk_fma_f32 {q(T+10,2)}, {q(T+2,2)}, {q(T+2,2)}, {q(T+10,2)}
        v_pk_add_f32 {q(T,2)}, {q(T+4,2)}, {q(T+6,2)}
        v_pk_fma_f32 {q(T+10,2)}, {q(T+4,2)}, {q(T+4,2)}, {q(T+10,2)}
        v_pk_add_f32 {q(T+8,2)}, {q(T+8,2)}, {q(T,2)}
        v_pk_fma_f32 {q(T+10,2)}, {q(T+6,2)}, {q(T+6,2)}, {q(T+10,2)}
        v_add_f32 v{T+8}, v{T+8}, v{T+9}
        v_add_f32 v{T+10}, v{T+10}, v{T+11}
        v_permlane32_swap_b32 v{T+8}, v{T+10}
        v_add_f32 v{T+8}, v{T+8}, v{T+10}
        v_add_f32_dpp v{T+8}, v{T+8}, v{T+8} quad_perm:[1,0,3,2] row_mask:0xf bank_mask:0xf
        v_add_f32_dpp v{T+8}, v{T+8}, v{T+8} quad_perm:[2,3,0,1] row_mask:0xf bank_mask:0xf
        v_add_f32_dpp v{T+8}, v{T+8}, v{T+8} row_half_mirror row_mask:0xf bank_mask:0xf
        v_add_f32_dpp v{T+8}, v{T+8}, v{T+8} row_mirror row_mask:0xf bank_mask:0xf
        v_readlane_b32 s{S_T0}, v{T+8}, 0
        v_readlane_b32 s{S_T1}, v{T+8}, 16
        v_readlane_b32 s{S_T2}, v{T+8}, 32
        v_readlane_b32 s{S_T3}, v{T+8}, 48
        v_mov_b32 v{T+10}, 0x3b000000
        v_mul_f32 v{T+8}, s{S_T0}, v{T+10}
        v_mul_f32 v{T+9}, s{S_T2}, v{T+10}
        v_fmac_f32 v{T+8}, s{S_T1}, v{T+10}          ; E[d]
        v_fmac_f32 v{T+9}, s{S_T3}, v{T+10}          ; E[d^2]
        v_fma_f32 v{T+9}, -v{T+8}, v{T+8}, v{T+9}    ; var
        v_add_f32 v{T+8}, s{S_U}, v{T+8}             ; mean
        v_max_f32 v{T+9}, 0, v{T+9}
        v_cvt_pk_bf16_f32 v{T+10}, v{T+8}, v{T+9}
        v_lshlrev_b32 v{T+8}, 16, v{T+10}
        v_and_b32 v{T+10}, s{S_HI}, v{T+10}
        v_add_f32 v{T+10}, 0x3727c5ac, v{T+10}
        v_cvt_pk_bf16_f32 v{T+10}, v{T+10}, v{T+10}
        v_and_b32 v{T+10}, s{S_HI}, v{T+10}
        v_sqrt_f32 v{T+10}, v{T+10}
        """)
        for i in range(4): a(f"v_pk_add_f32 {q(X+2*i,2)}, {q(X+2*i,2)}, {q(T+8,2)} {bc} {ng}")
        a(f"""
        v_cvt_pk_bf16_f32 v{T+10}, v{T+10}, v{T+10}
        v_and_b32 v{T+10}, s{S_HI}, v{T+10}
        v_rcp_f32 v{T+10}, v{T+10}
        """)
        self.round8(X, T)
        for i in range(4): a(f"v_pk_mul_f32 {q(X+2*i,2)}, {q(X+2*i,2)}, {q(T+10,2)} {bc}")
        self.round8(X, T)

    def gettag(self, wait=True):
        if wait: self.a("s_waitcnt lgkmcnt(0)")
        self.a(f"""
        s_lshl_b32 s{S_TAG}, s{S_EPOCH}, 1
        s_add_u32 s{S_TAG}, s{S_TAG}, 0x9E3779B8
        """)

    def tagbytes(self):
        self.a(f"""
        s_mul_i32 s{S_TB+3}, s{S_EPOCH}, 0x01010101
        s_add_u32 s{S_TB+3}, s{S_TB+3}, 0x5B3C1E87
        s_and_b32 s{S_TB}, s{S_TB+3}, 0xff
        s_bfe_u32 s{S_TB+1}, s{S_TB+3}, 0x80008
        s_bfe_u32 s{S_TB+2}, s{S_TB+3}, 0x80010
        s_lshr_b32 s{S_TB+3}, s{S_TB+3}, 24
        """)

    def predirty(self):
        self.a(f"""
        s_mov_b32 exec_lo, 0x00010001
        s_mov_b32 exec_hi, 0x00010001
        buffer_load_dword v16, v7, {sp(SRD_WS,4)}, 0 offen {self.o.prepol}
        s_mov_b64 exec, -1
        """)

    def xt_publish(self, pre=False, allw=False):
        a = self.a
        if pre and self.o.predirty: self.predirty()
        L = a.newlabel("Lxt")
        if not allw: a(f"""
        s_cmp_lg_u32 s{S_WAVE}, 1
        s_cbranch_scc1 {L}
        """)
        self.aff(1, WS_XT, [], [(S_HKV,256),(S_IDX,8)])
        a(f"""
        v_mov_b32 v2, s{S_LOC}
        v_mov_b32 v3, s{S_TAG}
        s_mov_b64 exec, 1
        buffer_store_dwordx2 v[2:3], v1, {sp(SRD_WS,4)}, 0 offen {self.o.xtpol}
        s_mov_b64 exec, -1
        {L}:
        """)

    def gemv_mfma(self, nkb, va, vd, A, Bs, Dq):
        a = self.a
        for i in range(len(Bs)): a(f"ds_read_b128 {q(A+4*i)}, v{va} offset:{64*nkb*i}")
        for i, B in enumerate(Bs):
            a(f"s_waitcnt lgkmcnt({len(Bs)-1-i})")
            for c in range(8):
                a(f"v_mfma_f32_16x16x32_bf16 {q(Dq[c])}, {q(A+4*i)}, {q(B+4*c)}, {'0' if i == 0 else q(Dq[c])}")
        a(f"s_mov_b64 exec, {sp(S_M+12)}")
        cs = 128 if nkb == 2 else 64
        for c in range(8):
            a(f"ds_write_b128 v{vd}, {q(Dq[c])} offset:{c*cs}")
        a("s_mov_b64 exec, -1")

    def roundn(self, X, T, n):
        for i in range(n//2): self.a(f"v_cvt_pk_bf16_f32 v{T+i}, v{X+2*i}, v{X+2*i+1}")
        for i in range(n//2): self.unpack(T+i, X+2*i, X+2*i+1)

    def modulate(self, X, C1, SH, T, out, n=8):
        a = self.a
        for i in range(n//2): a(f"v_pk_mul_f32 {q(X+2*i,2)}, {q(X+2*i,2)}, {q(C1+2*i,2)}")
        self.roundn(X, T, n)
        for i in range(n//2): a(f"v_pk_add_f32 {q(X+2*i,2)}, {q(X+2*i,2)}, {q(SH+2*i,2)}")
        for i in range(n//2): a(f"v_cvt_pk_bf16_f32 v{out+i}, v{X+2*i}, v{X+2*i+1}")

    def poll_pipe(self, sets, done, gap, sl=0, rec=None, or1=None):
        a = self.a
        D = len(sets); nl = len(sets[0][0])
        L = a.newlabel("Lpp"); E = a.newlabel("Lppx")
        DL = [a.newlabel("Lppd") for _ in sets]
        a(f"s_mov_b32 s{S_TMO}, {TMO}")
        for k, (loads, tags) in enumerate(sets):
            for l in loads: a(l)
            if k < D-1 and gap: a(f"s_sleep {gap}")
        a.label(L)
        for k, (loads, tags) in enumerate(sets):
            a(f"s_waitcnt vmcnt({(D-1)*nl})")
            t = self.PT
            if len(tags) <= 5:
                a(f"v_xor_b32 v{t}, s{S_TAG}, v{tags[0]}")
                for r in tags[1:]:
                    a(f"v_xor_b32 v{t+1}, s{S_TAG}, v{r}\nv_or_b32 v{t}, v{t}, v{t+1}")
            else:
                if len(tags) % 2 == 0: tags = list(tags) + [tags[-1]]
                for i in range(1, len(tags), 2):
                    a(f"v_max3_u32 v{t}, v{tags[0] if i == 1 else t}, v{tags[i]}, v{tags[i+1]}")
                    a(f"v_min3_u32 v{t+1}, v{tags[0] if i == 1 else t+1}, v{tags[i]}, v{tags[i+1]}")
                a(f"v_xor_b32 v{t}, s{S_TAG}, v{t}\nv_xor_b32 v{t+1}, s{S_TAG}, v{t+1}\nv_or_b32 v{t}, v{t}, v{t+1}")
            a(f"v_cmp_lt_u32 vcc, {1 if or1 else 0}, v{t}")
            a(f"s_cbranch_vccz {DL[k]}")
            if 0: a(f"s_cbranch_scc0 {DL[k]}" if len(tags) > 1 else f"s_cbranch_vccz {DL[k]}")
            if sl: a(f"s_sleep {sl}")
            for l in loads: a(l)
        a(f"""
        s_sub_u32 s{S_TMO}, s{S_TMO}, 1
        s_cbranch_scc0 {L}
        s_waitcnt vmcnt(0)
        """)
        for k in range(D):
            a.label(DL[k])
            done(k)
            if k < D-1: a(f"s_branch {E}")
        a.label(E)
        if rec is not None and self.o.stamps and self.o.rec:
            a(f"""
            s_waitcnt lgkmcnt(0)
            s_sub_u32 s{S_T0}, {TMO}, s{S_TMO}
            s_mul_i32 s{S_T0}, s{S_T0}, 100
            s_add_u32 s{S_ST+2*rec}, s{S_ST}, s{S_T0}
            s_addc_u32 s{S_ST+2*rec+1}, s{S_ST+1}, 0
            """)

    def lds_wait(self, off, target, vz, vt, sleep=1):
        a = self.a
        L = a.newlabel("Lw"); E = a.newlabel("Lwx")
        a(f"""
        s_mov_b32 s{S_TMO}, {TMO*8}
        {L}:
        ds_read_b32 v{vt}, v{vz} offset:{off}
        s_sub_u32 s{S_TMO}, s{S_TMO}, 1
        s_cbranch_scc1 {E}
        """)
        if sleep: a(f"s_sleep {sleep}")
        a(f"""
        s_waitcnt lgkmcnt(0)
        v_readfirstlane_b32 s{S_T0}, v{vt}
        s_cmp_lt_u32 s{S_T0}, {target}
        s_cbranch_scc1 {L}
        {E}:
        s_waitcnt lgkmcnt(0)
        """)

    def consts(self):
        self.a(f"""
        s_mov_b32 s{S_PLO}, 0x05040100
        s_mov_b32 s{S_PHI}, 0x07060302
        s_mov_b32 s{S_HI}, 0xffff0000
        """)

    def prologue(self):
        a = self.a
        self.stamp(0)
        a(f"""
        s_cmp_ge_u32 s2, 256
        s_cbranch_scc1 L_end
        s_load_dwordx16 s[4:19], s[0:1], 0
        s_load_dwordx8 s[20:27], s[0:1], 64
        s_load_dwordx2 s[30:31], s[0:1], 104
        v_lshrrev_b32 v1, 6, v0
        v_and_b32 v0, 63, v0
        s_and_b32 s{S_HKV}, s2, 7
        v_readfirstlane_b32 s{S_WAVE}, v1
        s_lshr_b32 s{S_IDX}, s2, 3
        s_and_b32 s{S_B}, s{S_IDX}, 3
        s_cmp_lt_u32 s{S_WAVE}, 4
        s_cbranch_scc0 L_str
        """)

    def stream_defs(self):
        o = self.o
        kreg = lambda t, u: 32 + 16*t + 4*u
        vreg = lambda t, u: 96 + 16*t + 4*u
        dreg = lambda t, u: (8 + 4*u) if t == 0 else (32 + 16*(t-1) + 4*u)
        so = [f"s{S_CQ}", f"s{S_T1}", f"s{S_T2}", f"s{S_T3}"]
        loads = []
        for (rf, va, srd) in ((kreg, 4, SRD_A), (vreg, 5, SRD_B)):
            for t in range(4):
                for u in range(4):
                    loads.append(f"buffer_load_dwordx4 {q(rf(t,u))}, v{va}, {sp(srd,4)}, {so[t]} offen offset:{u*1024} {o.kvpol}")
        return loads, kreg, dreg

    def stream_early(self):
        a = self.a; o = self.o
        loads, kreg, dreg = self.stream_defs()
        S_W = 3
        a(f"""
        L_str:
        s_lshr_b32 s{S_CH}, s{S_IDX}, 2
        s_sub_u32 s{S_W}, s{S_WAVE}, 4
        s_lshl3_add_u32 s{S_T0}, s{S_B}, s{S_HKV}
        s_lshl_b32 s{S_T0}, s{S_T0}, 7
        s_add_u32 s{S_T0}, s{S_T0}, s{S_CH}
        s_lshl3_add_u32 s{S_T0}, s{S_T0}, s{S_W}
        s_addk_i32 s{S_T0}, 768
        s_lshl_b32 s{S_T0}, s{S_T0}, 12
        v_bfe_u32 v1, v0, 2, 2
        v_lshrrev_b32 v2, 4, v0
        v_and_b32 v3, 3, v0
        v_lshlrev_b32 v6, 8, v1
        v_lshl_add_u32 v6, v2, 6, v6
        v_lshl_add_u32 v6, v3, 4, v6
        v_add_u32 v4, s{S_T0}, v6
        v_lshl_add_u32 v5, v0, 4, s{S_T0}
        s_lshr_b32 s{S_CQ}, s{S_CH}, 1
        s_lshl_b32 s{S_CQ}, s{S_CQ}, 18
        """)
        self.srd_hi(SRD_A, 0x8000000)
        a(f"""
        s_sub_u32 s{S_T0}, s{S_IDX}, 20
        s_cmp_lt_u32 s{S_IDX}, {NEARLY}
        s_waitcnt lgkmcnt(0)
        """)
        self.srd_lo(SRD_A, S_K)
        a(f"""
        s_cbranch_scc0 L_sH0
        s_barrier
        L_sH0:
        """)
        for l in loads[:o.depth]: a(l)
        a(f"""
        s_cbranch_scc0 L_sH
        s_cmp_lt_u32 s{S_T0}, 7
        s_cbranch_scc1 L_sF
        s_branch L_sN
        """)

    def stream(self):
        a = self.a; o = self.o
        loads, kreg, dreg = self.stream_defs()
        a.label("L_sN")
        self.stream_body(False, loads, kreg, dreg, "", o.depth2, o.sw2)
        a.label("L_sF")
        self.stream_body(False, loads, kreg, dreg, "f", o.fdepth, o.fsw)
        a.label("L_sH")
        self.stream_body(True, loads, kreg, dreg)

    def stream_body(self, h, loads, kreg, dreg, X="", depth=0, sw=0):
        a = self.a; o = self.o
        S_W = 3
        S_N = S_TGT
        X = "h" if h else X
        depth = o.hdepth if h else depth or o.depth
        dn = lambda n: depth if (h or n >= sw) else o.depth
        first = o.pause if h else dn(0)
        assert o.depth <= 4 and o.spread == 1
        for l in loads[o.depth:min(first, 4)]: a(l)
        a(f"""
        s_xor_b32 s{S_T1}, s{S_CQ}, {1<<18}
        s_xor_b32 s{S_T2}, s{S_CQ}, {2<<18}
        s_xor_b32 s{S_T3}, s{S_CQ}, {3<<18}
        """)
        for l in loads[4:first]: a(l)
        self.srd(SRD_B, S_V, 0x8000000)
        self.srd(SRD_WS, S_WS, WS_SIZE)
        self.consts()
        a(f"""
        v_mov_b32 v163, 0
        v_mov_b32 v161, 1
        """)
        a(f"s_load_dword s{S_EPOCH}, {sp(S_WS)}, {WS_EPOCH}")
        if h: a("s_barrier")
        a(f"""
        v_cmp_eq_u32 {sp(S_M)}, 1, v3
        v_cmp_eq_u32 {sp(S_M+2)}, 2, v3
        v_cmp_eq_u32 {sp(S_M+4)}, 3, v3
        v_lshlrev_b32 v7, 5, v1                 ; h*32
        s_lshr_b32 s{S_T0}, s{S_CH}, 1
        s_and_b32 s{S_N}, s{S_CH}, 1
        """)
        self.aff(160, WS_ST, [(2,2,512)], [(S_HKV,2048),(S_T0,128),(S_B,32),(S_N,16)], vt=2)
        self.aff(164, 0, [(2,2,32)], [(S_W,4)], vt=2)
        self.aff(165, L_OL, [(0,6,4)], [(S_W,OLS)], vt=2)
        self.aff(166, L_OL, [(0,2,2*OLS),(2,4,16)], [(S_W,256)], vt=2)
        self.aff(167, WS_OP, [(4,2,16384),(2,2,64)], [(S_HKV,65536),(S_CH,2048),(S_W,256),(S_B,16)], vt=2)
        def cnt_add(off):
            a(f"""
            s_mov_b64 exec, 1
            ds_add_u32 v163, v161 offset:{off}
            s_mov_b64 exec, -1
            """)
        if h:
            self.lds_wait(L_CNT+o.pauseoff, o.pausecnt, 163, 162, sleep=2)
            if o.trigq < first: cnt_add(L_CNT+20)

        def step(n, wait=True):
            if wait and n < 32 - o.tailfree and n >= dn(n): a(f"s_waitcnt vmcnt({dn(n)-1})")
            a(loads[n])
            if n == o.trigw: cnt_add(L_CNT+12)
            if n == o.trigf: cnt_add(L_CNT+16)
            if n == o.trigq: cnt_add(L_CNT+20)
            if n == o.trigs: cnt_add(L_CNT+28)
            if n == o.trigp: cnt_add(L_CNT+32)
            if n in (4, 8, 12, 16, 24, 28): self.stamp({4:6,8:7,12:8,16:9,24:10,28:11}[n])
        N0 = min(n for n in range(16, 32) if n - dn(n) >= 15)
        chk = [n for n in range(max(N0, o.nq), 31) if (n - N0) % o.chkstep == 0]
        rd = f"ds_read_b32 v162, v163 offset:{L_CNT+8}"
        for n in range(first, 32):
            step(n)
            if n in chk:
                a(f"""
                s_waitcnt lgkmcnt(0)
                v_readfirstlane_b32 s{S_T0}, v162
                s_cmp_ge_u32 s{S_T0}, 4
                s_cbranch_scc1 L{X}_qk{n}
                """)
            if n + 1 in chk: a(rd)
        self.stamp(2)
        a(f"s_mov_b32 s{S_N}, 32")
        self.lds_wait(L_CNT+8, 4, 163, 162, sleep=0)
        a.label(f"L{X}_QK")
        self.stamp(1)
        a(f"""
        ds_read_b128 v[0:3], v6 offset:{L_QF}
        ds_read_b32 v162, v163 offset:{L_FLAG}
        s_waitcnt lgkmcnt(0)
        v_readfirstlane_b32 s{S_LOC}, v162
        """)
        for t in range(4):
            for u in range(4):
                a(f"v_mfma_f32_16x16x32_bf16 {q(dreg(t,u))}, {q(kreg(t,u))}, v[0:3], 0")
        self.flavor_masks(S_M+6, "0x11111111", "0x11111111")
        self.gettag(False)
        self.tagbytes()
        qp = {1: "[1,0,3,2]", 2: "[2,3,0,1]", 3: "[3,2,1,0]"}
        for t in range(4):
            for rho in range(4):
                w = 24 + t if rho == 0 else 27 + rho
                c = [dreg(t, x ^ rho) + x for x in range(4)]
                a(f"""
                v_cndmask_b32 v{w}, v{c[0]}, v{c[1]}, {sp(S_M)}
                v_cndmask_b32 v{w}, v{w}, v{c[2]}, {sp(S_M+2)}
                v_cndmask_b32 v{w}, v{w}, v{c[3]}, {sp(S_M+4)}
                """)
            for rho in range(1, 4):
                a(f"v_add_f32_dpp v{24+t}, v{27+rho}, v{24+t} quad_perm:{qp[rho]} row_mask:0xf bank_mask:0xf")
        self.round2(24, 25, 28); self.round2(26, 27, 29)
        a(f"s_mov_b32 s{S_T0}, {SCALE}")
        for t in range(4): a(f"v_mul_f32 v{24+t}, s{S_T0}, v{24+t}")
        self.round2(24, 25, 28); self.round2(26, 27, 29)
        a(f"""
        v_max3_f32 v28, v24, v25, v26
        v_max_f32 v28, v28, v27
        v_max_f32_dpp v28, v28, v28 quad_perm:[1,0,3,2] row_mask:0xf bank_mask:0xf
        v_max_f32_dpp v28, v28, v28 quad_perm:[2,3,0,1] row_mask:0xf bank_mask:0xf
        """)
        self.rows_allreduce("v_max_f32", 28, 29)
        a(f"""
        v_min_u32 v28, -2, v28
        ds_write_b32 v164, v28 offset:{L_MX}
        """)
        ex = o.qkextra
        rets = sorted({min(n + 1 + ex, 32) for n in chk} | {32}, reverse=True)
        for r in rets[:-1]:
            a(f"s_cmp_eq_u32 s{S_N}, {r}\ns_cbranch_scc1 L{X}_B{r}")
        for n in range(rets[-1], 32):
            if n in rets: a.label(f"L{X}_B{n}")
            step(n)
        if chk: self.stamp(2)
        a.label(f"L{X}_B32")
        a(f"s_waitcnt vmcnt(8)")
        self.transpose(96, 32)
        L = a.newlabel("Lb3"); E = a.newlabel("Lb3x")
        a(f"""
        s_mov_b32 s{S_TMO}, {TMO*8}
        {L}:
        ds_read_b128 v[8:11], v7 offset:{L_MX}
        ds_read_b128 v[12:15], v7 offset:{L_MX+16}
        s_sub_u32 s{S_TMO}, s{S_TMO}, 1
        s_cbranch_scc1 {E}
        s_waitcnt lgkmcnt(0)
        v_max3_u32 v16, v8, v9, v10
        v_max3_u32 v17, v11, v12, v13
        v_max3_u32 v16, v16, v14, v15
        v_max_u32 v16, v16, v17
        v_cmp_eq_u32 vcc, -1, v16
        s_cbranch_vccnz {L}
        {E}:
        """)
        self.stamp(3)
        a(f"""
        s_mov_b32 s{S_T0}, {LOG2E}
        s_waitcnt lgkmcnt(0)
        v_max3_f32 v8, v8, v9, v10
        v_max3_f32 v12, v11, v12, v13
        v_max3_f32 v8, v8, v14, v15
        v_max_f32 v8, v8, v12
        v_mul_f32 v162, s{S_T0}, v8
        """)
        for t in range(4): a(f"v_fma_f32 v{24+t}, v{24+t}, s{S_T0}, -v162")
        for t in range(4): a(f"v_exp_f32 v{24+t}, v{24+t}")
        for t in range(4):
            a(f"v_mov_b32_dpp v{28+t}, v{24+t} quad_perm:[1,1,3,3] row_mask:0xf bank_mask:0xf")
        for t in range(4):
            a(f"v_cvt_pk_bf16_f32 v{8+2*t}, v{24+t}, v{28+t}")
        for t in range(4):
            a(f"v_mov_b32_dpp v{9+2*t}, v{8+2*t} quad_perm:[2,2,2,2] row_mask:0xf bank_mask:0xf")
        for c in range(8):
            a(f"v_mfma_f32_16x16x32_bf16 {q(96+4*c)}, v[8:11], {q(32+4*c)}, 0")
        a(f"""
        v_add_f32 v24, v24, v25
        v_add_f32 v26, v26, v27
        v_add_f32 v24, v24, v26
        v_add_f32_dpp v24, v24, v24 quad_perm:[1,0,3,2] row_mask:0xf bank_mask:0xf
        v_add_f32_dpp v24, v24, v24 quad_perm:[2,3,0,1] row_mask:0xf bank_mask:0xf
        """)
        self.rows_allreduce("v_add_f32", 24, 25)
        a(f"""
        v_min_u32 v24, -2, v24
        v_mov_b32 v31, 0xff
        s_waitcnt vmcnt(4)
        """)
        self.transpose_pair(128, 64, 0, 4)
        self.transpose_pair(128, 64, 1, 4)
        a(f"s_waitcnt vmcnt(2)")
        self.transpose_pair(128, 64, 2, 4)
        a(f"s_waitcnt vmcnt(0)")
        self.stamp(4)
        self.transpose_pair(128, 64, 3, 4)
        for c in range(8):
            a(f"v_mfma_f32_16x16x32_bf16 {q(96+4*c)}, v[12:15], {q(64+4*c)}, {q(96+4*c)}")
        if o.trigw == 32: cnt_add(L_CNT+12)
        if o.trigp == 32: cnt_add(L_CNT+32)
        if o.trigf == 32: cnt_add(L_CNT+16)
        for c in range(8):
            a(f"ds_write_b32 v165, v{96+4*c} offset:{c*256}")
        a(f"ds_write_b32 v164, v24 offset:{L_LS}")
        L = a.newlabel("Lb4"); E = a.newlabel("Lb4x")
        a(f"""
        s_mov_b32 s{S_TMO}, {TMO*8}
        {L}:
        ds_read_b128 v[16:19], v7 offset:{L_LS}
        ds_read_b128 v[20:23], v7 offset:{L_LS+16}
        ds_read_b128 v[8:11], v166
        ds_read_b128 v[12:15], v166 offset:{OLS}
        s_sub_u32 s{S_TMO}, s{S_TMO}, 1
        s_cbranch_scc1 {E}
        s_waitcnt lgkmcnt(2)
        v_max3_u32 v24, v16, v17, v18
        v_max3_u32 v25, v19, v20, v21
        v_max3_u32 v24, v24, v22, v23
        v_max_u32 v24, v24, v25
        v_cmp_eq_u32 vcc, -1, v24
        s_waitcnt lgkmcnt(0)
        s_cbranch_vccnz {L}
        {E}:
        s_waitcnt lgkmcnt(0)
        """)
        self.quad_reduce(8, 12)
        self.flavor_store(S_M+6, f"buffer_store_dwordx4 v[8:11], v167, {sp(SRD_WS,4)}, 0 offen")
        self.stamp(5)
        if o.trigw == 33: cnt_add(L_CNT+12)
        if o.trigp == 33: cnt_add(L_CNT+32)
        if o.trigf == 33: cnt_add(L_CNT+16)
        a(f"""
        s_cmp_lg_u32 s{S_W}, 7
        s_cbranch_scc1 L{X}_send
        v_pk_add_f32 v[16:17], v[16:17], v[18:19]
        v_pk_add_f32 v[20:21], v[20:21], v[22:23]
        s_and_b32 s{S_M+6}, s{S_M+6}, 0xffff
        v_pk_add_f32 v[16:17], v[16:17], v[20:21]
        s_mov_b32 s{S_M+7}, 0
        s_and_b32 s{S_M+8}, s{S_M+8}, 0xffff
        v_add_f32 v163, v16, v17
        s_mov_b32 s{S_M+9}, 0
        v_mov_b32 v164, s{S_TAG}
        """)
        self.flavor_store(S_M+6, f"buffer_store_dwordx3 v[162:164], v160, {sp(SRD_WS,4)}, 0 offen")
        a.label(f"L{X}_send")
        if o.dirty:
            a(f"""
            s_mov_b64 exec, -1
            s_lshl_b32 s{S_T0}, s2, 3
            s_add_u32 s{S_T0}, s{S_T0}, s{S_W}
            s_mul_i32 s{S_T0}, s{S_T0}, {1024*o.dirty}
            s_add_u32 s{S_T0}, s{S_T0}, 0x400000
            v_mbcnt_lo_u32_b32 v1, -1, 0
            v_mbcnt_hi_u32_b32 v1, -1, v1
            v_lshlrev_b32 v1, 4, v1
            """)
            for i in range(o.dirty): a(f"buffer_store_dwordx4 v[8:11], v1, {sp(SRD_WS,4)}, s{S_T0} offen offset:{1024*i} {o.dirtypol}")
        self.flush_stamps(12, 1, o.swave)
        self.lite_end()
        a("s_endpgm")
        for n in chk:
            a.label(f"L{X}_qk{n}")
            m = n + 1
            while m < min(n + 1 + ex, 32):
                step(m, wait=False); m += 1
            a(f"s_mov_b32 s{S_N}, {m}\ns_branch L{X}_QK")

    def aux(self):
        a = self.a; o = self.o
        ror8 = "row_ror:8 row_mask:0xf bank_mask:0xf"
        ror4 = "row_ror:4 row_mask:0xf bank_mask:0xf"
        WS = sp(SRD_WS, 4)
        VZ = 167
        self.PT = 24
        if o.prio: a(f"s_setprio {o.prio}")
        if o.cpf: a(f"""
        s_getpc_b64 {sp(S_M)}
        L_pc:
        s_lshl2_add_u32 s{S_T2}, s{S_IDX}, s{S_WAVE}
        s_min_u32 s{S_T2}, s{S_T2}, (L_last-L_pc)/256-1
        s_lshl_b32 s{S_T2}, s{S_T2}, 8
        v_lshl_add_u32 v3, v0, 2, s{S_T2}
        global_load_dword v162, v3, {sp(S_M)}
        """)
        a(f"""
        s_cmp_eq_u32 s{S_WAVE}, 1
        s_cselect_b32 s{S_T0}, -1, 0
        s_mul_i32 s{S_T1}, s{S_WAVE}, {L_MX}
        v_mov_b32 v1, s{S_T0}
        v_lshl_add_u32 v2, v0, 2, s{S_T1}
        ds_write_b32 v2, v1
        s_and_b32 s{S_KH}, s{S_IDX}, 1
        s_sub_u32 s{S_J}, s{S_IDX}, 4
        s_cmp_lt_u32 s{S_J}, 16
        s_cbranch_scc0 L_MH
        s_lshr_b32 s{S_T0}, s{S_J}, 1
        s_lshl3_add_u32 s3, s{S_HKV}, s{S_T0}
        """)
        self.aff(2, 0, [(3,3,8*8192),(0,3,16)], [(3,128),(S_WAVE,64*8192),(S_KH,256*8192)])
        self.srd_hi(SRD_B, 512*8192)
        a(f"s_movk_i32 s{S_T1}, 8192\ns_waitcnt lgkmcnt(0)")
        self.srd_lo(SRD_B, S_WQ)
        self.tile_loads_k(2, SRD_B, 8192, S_T1, 32, o.wpol)
        a(f"""
        s_load_dword s{S_EPOCH}, {sp(S_WS)}, {WS_EPOCH}
        s_barrier
        s_branch L_Q
        """)
        self.stream_early()
        a(f"""
        L_MH:
        s_cmp_lt_u32 s{S_IDX}, {NEARLY}
        s_cbranch_scc0 L_H
        s_sub_u32 s{S_T0}, s{S_IDX}, 16
        s_cmp_lt_u32 s{S_IDX}, 4
        s_cselect_b32 s{S_T0}, s{S_IDX}, s{S_T0}
        s_lshr_b32 s{S_T0}, s{S_T0}, 1
        s_lshl3_add_u32 s3, s{S_T0}, s{S_HKV}
        """)
        self.aff(2, 0, [(3,3,8*6144),(0,3,16)], [(3,128),(S_WAVE,64*6144),(S_KH,256*6144)])
        self.aff(1, 0, [(0,6,8)], [(S_WAVE,1024),(S_KH,512)])
        self.srd_hi(SRD_B, 512*6144)
        self.srd_hi(SRD_A, 4096)
        a(f"s_movk_i32 s{S_T1}, 6144\ns_waitcnt lgkmcnt(0)")
        self.srd_lo(SRD_A, S_C)
        self.srd_lo(SRD_B, S_WM)
        a(f"buffer_load_dwordx2 v[8:9], v1, {sp(SRD_A,4)}, 0 offen {o.cpol}")
        self.tile_loads_k(2, SRD_B, 6144, S_T1, 32, o.wpol)
        a(f"""
        s_load_dword s{S_EPOCH}, {sp(S_WS)}, {WS_EPOCH}
        s_barrier
        L_M2:
        """)
        self.aux_common()
        self.aff(5, L_AV, [(0,6,8)], [(S_WAVE,AVS)])
        self.aff(7, WS_MOD, [(4,2,24576),(0,4,8)], [(3,512),(S_WAVE,128),(S_KH,98304)])
        self.mq_addr()
        self.gettag()
        self.xt_publish(allw=True)
        a("s_waitcnt vmcnt(9)")
        for i in range(2): self.unpack(8+i, 16+2*i, 17+2*i)
        a(f"s_mov_b32 s{S_T0}, {LOG2E ^ 0x80000000}")
        for i in range(4): a(f"v_mul_f32 v{24+i}, s{S_T0}, v{16+i}")
        for i in range(4): a(f"v_exp_f32 v{24+i}, v{24+i}")
        for i in range(4): a(f"v_add_f32 v{24+i}, 1.0, v{24+i}")
        for i in range(4): a(f"v_rcp_f32 v{24+i}, v{24+i}")
        for i in range(4): a(f"v_mul_f32 v{16+i}, v{16+i}, v{24+i}")
        for i in range(2): a(f"v_cvt_pk_bf16_f32 v{28+i}, v{16+2*i}, v{17+2*i}")
        a(f"ds_write_b64 v5, v[28:29]")
        self.lds_arrive(L_CNT)
        for e in range(4):
            a(f"s_waitcnt vmcnt({7-2*e})")
            self.transpose_pair(32, 96, e, 4)
        a(f"s_mov_b32 s{S_LOC}, 0")
        self.mq_gemv()
        a("s_branch L_pubd")

        a.label("L_H")
        self.aff(1, 0, [(0,6,4)], [(S_B,1024),(S_WAVE,256)])
        a(f"""
        v_xor_b32 v2, 256, v1
        v_xor_b32 v3, 512, v1
        v_xor_b32 v4, 768, v1
        s_waitcnt lgkmcnt(0)
        """)
        self.srd(SRD_A, S_X, 4096)
        for i in range(4): a(f"buffer_load_dword v{8+i}, v{1+i}, {sp(SRD_A,4)}, 0 offen {o.cpol}")
        a(f"s_load_dword s{S_EPOCH}, {sp(S_WS)}, {WS_EPOCH}")
        self.aux_common()
        a("s_barrier")
        self.aff(164, WS_MOD, [(0,6,16)], [(S_B,24576),(S_WAVE,1024)])
        self.aff(163, WS_XT, [(0,5,8)], [(S_HKV,256)])
        self.aff(7, WS_HG, [(0,6,8)], [(S_HKV,8192),(S_B,2048),(S_WAVE,512)])
        self.gettag()
        self.xt_publish(True)
        a("s_waitcnt vmcnt(0)")
        for i in range(4): self.unpack(8+i, 128+2*i, 129+2*i)
        self.layernorm(128, 136)
        a(f"""
        s_mov_b32 s{S_T1}, 4096
        s_mov_b32 s{S_T2}, 98304
        s_mov_b32 s{S_T3}, {98304+4096}
        """)
        if o.dlyh: a(f"s_sleep {o.dlyh}")
        sets = []
        for k in range(o.pdm):
            R = 32 + 20*k
            ld = [f"buffer_load_dwordx4 {q(R+4*i)}, v164, {WS}, {so_} offen {o.ppol}"
                  for i, so_ in enumerate(("0", f"s{S_T2}", f"s{S_T1}", f"s{S_T3}"))]
            ld.append(f"buffer_load_dwordx2 {q(R+16,2)}, v163, {WS}, 0 offen {o.ppol}")
            sets.append((ld, [R+1+2*i for i in range(8)]))
        def mdone(k):
            R = 32 + 20*k
            for i in range(2):
                a(f"v_add_f32 v{136+i}, v{R+8+2*i}, v{R+12+2*i}")
                a(f"v_add_f32 v{138+i}, v{R+2*i}, v{R+4+2*i}")
            a(f"""
            v_cmp_ne_u32 vcc, s{S_LOC}, v{R+16}
            v_cmp_ne_u32 {sp(S_T2)}, s{S_TAG}, v{R+17}
            """)
        self.poll_pipe(sets, mdone, o.gapm, o.slm, rec=9)
        self.stamp(1)
        self.roundn(136, 24, 4)
        a(f"""
        s_or_b64 vcc, vcc, {sp(S_T2)}
        s_cselect_b32 s{S_LOC}, 0, {1 if o.local else 0}
        v_add_f32 v136, 1.0, v136
        v_add_f32 v137, 1.0, v137
        s_add_u32 s{S_T1}, s{S_TAG}, s{S_LOC}
        """)
        self.roundn(136, 24, 2)
        self.flavor_masks(S_M+8, "0x55555555", "0x55555555")
        self.modulate(128, 136, 138, 24, 16, n=2)
        a(f"""
        v_mov_b32 v17, s{S_T1}
        v_mov_b32 v19, s{S_T1}
        v_mov_b32_dpp v18, v16 quad_perm:[1,1,3,3] row_mask:0xf bank_mask:0xf
        """)
        self.flavor_store(S_M+8, f"buffer_store_dwordx4 v[16:19], v7, {WS}, 0 offen")
        a("s_branch L_pubd")

        a.label("L_Q")
        self.aux_common(False)
        a(f"""
        s_lshl_b32 s{S_CQ}, s{S_J}, 2
        s_add_u32 s{S_CQ}, s{S_CQ}, s{S_WAVE}        ; r
        s_lshr_b32 s{S_T0}, s{S_CQ}, 4
        s_and_b32 s{S_T1}, s{S_HKV}, 1
        s_and_b32 s{S_T2}, s{S_CQ}, 15
        """)
        self.aff(166, WS_DP, [(2,4,8192),(0,2,16)], [(S_T0,2048),(S_T1,1024),(S_T2,64)])
        self.aff(7, WS_QG, [(4,2,65536),(0,4,8)], [(3,512),(S_WAVE,128),(S_KH,32768)])
        self.aff(5, L_AV, [(0,6,8)], [(S_WAVE,AVS)])
        self.aff(164, WS_HG, [(0,6,16)], [(S_HKV,8192),(S_WAVE,2048),(S_KH,1024)])
        self.mq_addr()
        self.gettag()
        self.xt_publish(o.predirty == 1)
        a("s_waitcnt vmcnt(0)")
        self.transpose(32, 96)
        if o.predirty == 2: self.predirty()
        sets = [([f"buffer_load_dwordx4 {q(32+4*k)}, v164, {WS}, 0 offen {o.ppol}"], [33+4*k, 35+4*k]) for k in range(o.pdh)]
        def hdone(k):
            a(f"v_mov_b32 v{33+4*k}, v{34+4*k}\nds_write_b64 v5, {q(32+4*k,2)}")
        self.poll_pipe(sets, hdone, o.gaph, 0, rec=9, or1=True)
        self.lds_arrive(L_CNT)
        a(f"""
        v_and_b32 v24, 1, v24
        v_readfirstlane_b32 s{S_LOC}, v24
        """)
        self.mq_gemv()
        a.label("L_pubd")
        self.stamp(2)
        self.lds_arrive(L_CNT+24)

        self.aff(4, WS_QG, [(0,6,16)], [(S_B,65536),(S_HKV,4096),(S_WAVE,1024)])
        self.aff(6, L_QF, [(0,6,4)], [(S_WAVE,256)])
        a(f"s_mov_b32 s{S_T2}, 32768")
        sets = []
        for k in range(o.pdq):
            R = 128 + 8*k
            sets.append(([f"buffer_load_dwordx4 {q(R)}, v4, {WS}, 0 offen {o.ppol}",
                          f"buffer_load_dwordx4 {q(R+4)}, v4, {WS}, s{S_T2} offen {o.ppol}"], [R+1, R+3, R+5, R+7]))
        def qdone(k):
            R = 128 + 8*k
            a(f"v_add_f32 v12, v{R}, v{R+4}\nv_add_f32 v13, v{R+2}, v{R+6}")
        if o.trigq: self.lds_wait(L_CNT+20, o.trigqn, VZ, 1, sleep=4)
        self.poll_pipe(sets, qdone, o.gapq, o.slq, rec=10, or1=True)
        a(f"""
        v_and_b32 v24, 1, v24
        v_cvt_pk_bf16_f32 v12, v12, v13
        ds_write_b32 v{VZ}, v24 offset:{L_FLAG}
        ds_write_b32 v6, v12
        v_readfirstlane_b32 s{S_LOC}, v24
        """)
        self.lds_arrive(L_CNT+8)
        self.stamp(3)
        self.tagbytes()
        a(f"""
        s_cmp_lt_u32 s{S_J}, 16
        s_cbranch_scc1 L_Rpre
        s_cmp_lt_u32 s{S_IDX}, 4
        s_cbranch_scc1 L_S
        L_P:
        s_sub_u32 s{S_T2}, s{S_IDX}, 16
        s_cmp_lt_u32 s{S_IDX}, 4
        s_cselect_b32 s{S_T2}, s{S_IDX}, s{S_T2}     ; helper 0..15
        s_cmp_lt_u32 s{S_T2}, 8
        s_cselect_b32 s{SRD_A}, s{S_WG}, s{S_WU}
        s_cselect_b32 s{SRD_A+1}, s{S_WG+1}, s{S_WU+1}
        s_mov_b32 s{SRD_A+2}, {512*3584}
        s_mov_b32 s{SRD_A+3}, 0x20000
        s_and_b32 s{S_T2}, s{S_T2}, 7
        s_mul_i32 s{S_T3}, s{S_HKV}, 7
        s_lshr_b32 s{S_T3}, s{S_T3}, 1
        """)
        if o.trigp:
            self.aff(2, 0, [(2,4,3584),(0,2,128)], [(S_T2,64*3584),(S_WAVE,16*3584),(S_T3,128)])
            self.lds_wait(L_CNT+32, 8, VZ, 1, sleep=2)
            a(f"buffer_load_dword v3, v2, {sp(SRD_A,4)}, 0 offen {o.ppf}")
            if o.phalf: a(f"buffer_load_dword v4, v2, {sp(SRD_A,4)}, 0 offen offset:64 {o.ppf}")
        a(f"""
        s_sub_u32 s3, s{S_IDX}, 20
        s_cmp_ge_u32 s3, 7
        s_waitcnt vmcnt(0)
        s_cbranch_scc1 L_fin2
        """)
        a(f"""
        s_mul_i32 s{S_T0}, s{S_HKV}, 7
        s_add_u32 s3, s3, s{S_T0}                   ; f
        s_and_b32 s{S_T2}, s{S_WAVE}, 1
        s_lshr_b32 s{S_T3}, s{S_WAVE}, 1
        s_cmp_eq_u32 s{S_T2}, 0
        s_cselect_b32 s{SRD_A}, s{S_WG}, s{S_WU}
        s_cselect_b32 s{SRD_A+1}, s{S_WG+1}, s{S_WU+1}
        s_mov_b32 s{SRD_A+2}, {512*3584}
        s_mov_b32 s{SRD_A+3}, 0x20000
        """)
        self.srd(SRD_B, S_WD, 1792*1024)
        self.aff(2, 0, [(2,4,8*3584),(0,2,16)], [(S_T3,256*3584),(3,64)])
        self.aff(3, 0, [(4,2,8192),(0,4,16)], [(3,32768),(S_WAVE,256)])
        self.aff(4, L_AV, [(0,2,AVS),(2,2,16),(4,2,64)], [(S_T3,512)])
        self.aff(5, L_PART, [(2,2,PS),(0,2,16)], [(S_T3,4*PS),(S_T2,512)])
        self.aff(6, L_PART, [(4,2,2*PS),(0,4,64)], [(S_WAVE,16)])
        self.aff(7, WS_X1, [(0,6,16)], [(S_HKV,8192),(S_WAVE,2048)])
        self.aff(144, L_AV, [(0,6,8)], [(S_WAVE,AVS)])
        self.aff(145, L_ACT, [(4,2,64),(0,3,2)], [(S_WAVE,16)])
        self.aff(151, L_ACT, [(0,2,64),(4,2,16)], [])
        a(f"""
        v_mov_b32 v150, {L_ZERO}
        v_mov_b32 v160, 0xff
        v_bfe_u32 v8, v0, 2, 2
        """)
        for x in range(4):
            a(f"v_cmp_eq_u32 vcc, {x}, v8\nv_cndmask_b32 v{146+x}, v150, v151, vcc")
        self.aff(150, WS_DP, [(0,4,64),(4,2,16)], [(3,8192),(S_WAVE,2048)])
        self.aff(151, WS_SC, [(0,6,32)], [(S_HKV,16384),(S_WAVE,4096)])
        a(f"""
        s_mov_b32 s{S_M+12}, 0x00f0000f
        s_mov_b32 s{S_M+13}, 0xf0000f00
        """)
        if o.wdearly:
            self.lds_wait(L_CNT+12, 8, VZ, 1, sleep=2)
            self.tile_loads(3, SRD_B, [j*1024 for j in range(8)], 96, o.wpol)
        self.lds_wait(L_CNT+16, 8, VZ, 1, sleep=2)
        self.stamp(4)
        if not o.wdearly: self.tile_loads(3, SRD_B, [j*1024 for j in range(8)], 96, o.wpol)
        self.tile_loads(2, SRD_A, [j*3584 for j in range(8)], 32, o.fpol)
        self.tile_loads(2, SRD_A, [(128+j)*3584 for j in range(8)], 64, o.fpol)
        def ftr():
            a("s_waitcnt vmcnt(20)")
            self.transpose_inplace(96, 1, 2)
            a("s_waitcnt vmcnt(12)")
            self.transpose_inplace(32, 1, 2)
            a("s_waitcnt vmcnt(4)")
            self.stamp(5)
            self.transpose_inplace(64, 1, 2)
        self.poll_tagged([f"buffer_load_dwordx4 {q(8+4*z)}, v151, {WS}, 0 offen offset:{(z>>1)*2048+(z&1)*16} sc1" for z in range(4)],
                         [9+2*i for i in range(8)], pre=ftr)
        for z in range(4):
            self.unpack(8+4*z, 136+2*z, 137+2*z)
            self.unpack(10+4*z, 128+2*z, 129+2*z)
        self.stamp(6)
        self.poll_tagged([f"buffer_load_dwordx4 v[8:11], v7, {WS}, 0 offen sc1",
                          f"buffer_load_dwordx4 v[12:15], v7, {WS}, 0 offen offset:1024 sc1"], [9, 11, 13, 15], sleepy=False)
        self.stamp(9)
        for i in range(4): self.unpack(8+2*i, 152+2*i, 153+2*i)
        self.layernorm(152, 8)
        self.modulate(152, 128, 136, 8, 12)
        a(f"""
        ds_write_b64 v144, v[12:13]
        ds_write_b64 v144, v[14:15] offset:512
        s_waitcnt lgkmcnt(0)
        s_barrier
        """)
        self.gemv_mfma(4, 4, 5, 8, [32, 64], [128, 132, 136, 140, 16, 20, 24, 28])
        a(f"""
        s_waitcnt lgkmcnt(0)
        s_barrier
        """)
        self.gemv_reduce(6, 8)
        self.round1(8)
        a(f"""
        v_mov_b32 v11, 0x3d372713                    ; 0.044715
        v_mul_f32 v10, v8, v8
        v_mov_b32_dpp v9, v8 {ror8}
        v_fma_f32 v10, v10, v11, 1.0
        v_mul_f32 v10, v10, v8                       ; x + 0.044715 x^3
        v_mul_f32 v10, 0xc0135761, v10               ; -2*sqrt(2/pi)*log2e
        v_exp_f32 v10, v10
        v_add_f32 v10, 1.0, v10
        v_rcp_f32 v10, v10
        v_mul_f32 v8, v8, v10                        ; gelu
        """)
        self.round1(8)
        a(f"""
        v_mul_f32 v8, v8, v9
        v_cvt_pk_bf16_f32 v8, v8, v8
        s_mov_b32 exec_lo, 0x00ff00ff
        s_mov_b32 exec_hi, 0x00ff00ff
        ds_write_b16 v145, v8
        s_mov_b64 exec, -1
        s_waitcnt lgkmcnt(0)
        s_barrier
        """)
        for x in range(4): a(f"ds_read_b128 {q(8+4*x)}, v{146+x}")
        for x in range(4):
            a(f"s_waitcnt lgkmcnt({3-x})")
            for hf in range(2):
                c = 4*hf + x
                a(f"v_mfma_f32_16x16x32_bf16 {q(128+4*hf)}, {q(8+4*x)}, {q(96+4*c)}, {'0' if x == 0 else q(128+4*hf)}")
        self.embed(128, 160)
        a(f"buffer_store_dwordx4 v[128:131], v150, {WS}, 0 offen sc1")
        self.embed(132, 160)
        a(f"buffer_store_dwordx4 v[132:135], v150, {WS}, 0 offen offset:1024 sc1")
        self.stamp(10)
        a("s_branch L_fin2")

        a.label("L_S")
        self.aff(4, WS_MOD + 1536*8, [(0,6,16)], [(S_B,24576),(S_WAVE,1024)])
        self.aff(7, WS_SC, [(0,6,16)], [(S_HKV,16384),(S_B,4096),(S_WAVE,1024)])
        self.flavor_masks(S_M+8, "-1", "-1")
        a(f"""
        v_add_u32 v5, 4096, v4
        s_mov_b32 s{S_T2}, 98304
        v_mov_b32 v17, s{S_TAG}
        v_mov_b32 v19, s{S_TAG}
        """)
        self.lds_wait(L_CNT+28, 8, VZ, 1, sleep=2)
        self.stamp(4)
        self.poll_tagged([f"buffer_load_dwordx4 {q(32+4*i)}, v{4+(i>>1)}, {WS}, {('0', 's%d' % S_T2)[i&1]} offen sc1" for i in range(4)],
                         [33+2*i for i in range(8)])
        self.stamp(5)
        a(f"""
        v_add_f32 v8, v32, v36
        v_add_f32 v9, v34, v38
        v_add_f32 v10, v40, v44
        v_add_f32 v11, v42, v46
        v_cvt_pk_bf16_f32 v16, v8, v9
        """)
        self.round2(10, 11, 12)
        a(f"""
        v_add_f32 v10, 1.0, v10
        v_add_f32 v11, 1.0, v11
        v_cvt_pk_bf16_f32 v18, v10, v11
        """)
        self.flavor_store(S_M+8, f"buffer_store_dwordx4 v[16:19], v7, {WS}, 0 offen")
        self.stamp(6)
        a("s_branch L_P")

        a.label("L_Rpre")
        self.srd(SRD_B, S_X, 4096)
        self.srd(SRD_A, S_WO, 4096*1024)
        a(f"""
        s_and_b32 s{S_T1}, s{S_J}, 3
        s_lshr_b32 s{S_T2}, s{S_J}, 2
        """)
        self.aff(2, 0, [(4,1,65536),(5,1,1024),(0,4,16)], [(S_HKV,4*131072),(S_T1,131072),(S_T2,256),(S_WAVE,2048)])
        self.aff(4, WS_OP, [(2,2,4096),(4,2,128),(0,2,16)], [(S_HKV,65536),(S_T1,16384),(S_WAVE,512)])
        self.aff(5, WS_ST, [(0,4,32)], [(S_HKV,2048),(S_T1,512)])
        self.aff(6, L_PW, [(0,4,144),(4,2,16)], [(S_WAVE,PWS)])
        self.aff(7, L_PW, [(3,3,144),(0,3,16)], [(S_WAVE,8*144)])
        self.aff(3, WS_AP, [(0,6,16)], [(S_HKV,4*8192),(S_T1,8192),(S_T2,2048),(S_WAVE,1024)])
        self.aff(21, 0, [(4,2,1024),(0,3,2)], [(S_CQ,16)])
        self.aff(22, WS_MOD + 1024*8, [(4,2,24576),(3,1,98304),(0,3,8)], [(S_CQ,64)])
        a(f"s_and_b32 s{S_T3}, s{S_HKV}, 1")
        self.aff(163, WS_AP, [(3,3,8192),(0,3,16)], [(S_CQ,128)])
        self.aff(164, WS_X1, [(4,2,2048),(2,1,16)], [(S_HKV,8192),(S_CQ,32)])
        self.aff(165, 0, [(4,2,1024)], [(S_CQ,16),(S_T3,8)])
        self.flavor_masks(S_M+8, "0x00110011", "0x00110011")
        a(f"s_mov_b32 s{S_T2}, {1536*8}")
        self.lds_wait(L_CNT+12, 8, VZ, 1, sleep=2)
        self.stamp(4)
        self.tile_loads(2, SRD_A, [j*8192 for j in range(8)], 32, o.wpol)
        a(f"buffer_load_ushort v160, v21, {sp(SRD_B,4)}, 0 offen")
        def wtr():
            for e in range(4):
                a(f"s_waitcnt vmcnt({3+6-2*e})")
                self.transpose_pair(32, 96, e, 4)
            for i in range(16): a(f"v_mov_b32 v{144+i}, 0")
        self.poll_tagged([f"buffer_load_dwordx2 v[8:9], v22, {WS}, 0 offen sc1",
                          f"buffer_load_dwordx2 v[10:11], v22, {WS}, s{S_T2} offen sc1"], [9, 11], pre=wtr)
        a(f"""
        v_lshlrev_b32 v160, 16, v160                ; x
        v_add_f32_dpp v161, v8, v8 {ror8}
        v_add_f32_dpp v162, v10, v10 {ror8}
        """)
        self.round2(161, 162, 2)
        if not o.rec: self.stamp(9)
        a("v_mov_b32 v31, 0xff")
        groups = [([f"buffer_load_dwordx3 v[8:10], v5, {WS}, 0 offen sc1",
                    f"buffer_load_dwordx3 v[12:14], v5, {WS}, 0 offen offset:16 sc1"], [10, 14], None, "-1")]
        groups += [([f"buffer_load_dwordx4 {q(64+8*e+4*z)}, v4, {WS}, 0 offen offset:{e*2048+z*64} sc1" for z in range(2)],
                   range(64+8*e, 72+8*e), 128+8*e, "-1") for e in range(2)]
        self.poll_emb(groups, 16)
        self.stamp(5)
        bc = "op_sel_hi:[1,0]"
        a(f"""
        v_max_f32 v16, v8, v12
        v_max_f32_dpp v16, v16, v16 {ror8}
        v_max_f32_dpp v16, v16, v16 {ror4}
        v_sub_f32 v8, v8, v16
        v_sub_f32 v10, v12, v16
        v_exp_f32 v8, v8
        v_exp_f32 v10, v10
        v_mul_f32 v16, v8, v9
        v_fmac_f32 v16, v10, v13
        """)
        for i in range(4): a(f"v_pk_mul_f32 {q(128+2*i,2)}, {q(128+2*i,2)}, v[8:9] {bc}")
        a(f"v_add_f32_dpp v16, v16, v16 {ror8}")
        for i in range(4): a(f"v_pk_fma_f32 {q(128+2*i,2)}, {q(136+2*i,2)}, v[10:11], {q(128+2*i,2)} op_sel_hi:[1,0,1]")
        a(f"v_add_f32_dpp v16, v16, v16 {ror4}")
        for i in range(8): a(f"v_add_f32_dpp v{128+i}, v{128+i}, v{128+i} {ror8}")
        a(f"v_rcp_f32 v16, v16")
        for i in range(8): a(f"v_add_f32_dpp v{128+i}, v{128+i}, v{128+i} {ror4}")
        for i in range(4): a(f"v_pk_mul_f32 {q(128+2*i,2)}, {q(128+2*i,2)}, v[16:17] {bc}")
        for x in range(4):
            m = 0x000f000f << (4*x)
            a(f"s_mov_b32 exec_lo, {m}\ns_mov_b32 exec_hi, {m}")
            for i in range(4): a(f"v_cvt_pk_bf16_f32 v{144+4*x+i}, v{128+2*i}, v{129+2*i}")
        a("s_mov_b64 exec, -1")
        for x in range(4):
            for hf in range(2):
                D = 16 + 4*hf
                a(f"v_mfma_f32_16x16x32_bf16 {q(D)}, {q(144+4*x)}, {q(96+4*(4*hf+x))}, {'0' if x == 0 else q(D)}")
        for hf in range(2): a(f"ds_write_b128 v6, {q(16+4*hf)} offset:{hf*64}")
        a(f"""
        s_mov_b32 s{S_T1}, {8*8192}
        s_mov_b32 s{S_T2}, {16*8192}
        s_mov_b32 s{S_T3}, {24*8192}
        s_cmp_ge_u32 s{S_WAVE}, 2
        s_waitcnt lgkmcnt(0)
        s_barrier
        s_cbranch_scc1 L_R
        """)
        for k in range(4): a(f"ds_read_b128 {q(8+4*k)}, v7 offset:{k*PWS}")
        a(f"""
        s_waitcnt lgkmcnt(2)
        v_pk_add_f32 v[8:9], v[8:9], v[12:13]
        v_pk_add_f32 v[10:11], v[10:11], v[14:15]
        s_waitcnt lgkmcnt(0)
        v_pk_add_f32 v[16:17], v[16:17], v[20:21]
        v_pk_add_f32 v[18:19], v[18:19], v[22:23]
        v_pk_add_f32 v[8:9], v[8:9], v[16:17]
        v_pk_add_f32 v[10:11], v[10:11], v[18:19]
        """)
        self.embed(8, 31)
        a(f"buffer_store_dwordx4 v[8:11], v3, {WS}, 0 offen sc1")
        self.stamp(6)
        a.label("L_R")
        so = ["0", f"s{S_T1}", f"s{S_T2}", f"s{S_T3}"]
        self.poll_emb([([f"buffer_load_dwordx4 {q(32+4*t)}, v163, {WS}, {so[t]} offen sc1"], range(32+4*t, 36+4*t), 48+4*t, "-1")
                        for t in range(4)], 16)
        self.stamp(7)
        self.sum4q(48, 8)
        self.scatter4(8)
        a(f"v_add_f32_dpp v8, v8, v8 {ror8}")
        self.round1(8)
        a("v_mul_f32 v8, v8, v161")
        self.round1(8)
        a("v_add_f32 v8, v8, v160")
        a(f"v_mov_b32 v160, v8")
        self.pack4(8)
        self.flavor_store(S_M+8, f"buffer_store_dwordx4 v[8:11], v164, {WS}, 0 offen")
        self.stamp(8)
        a(f"""
        s_lshr_b32 s{S_T0}, s{S_HKV}, 1
        s_cmp_lg_u32 s{S_T0}, s{S_WAVE}
        s_cbranch_scc1 L_fin2
        s_mov_b32 s{S_T1}, {16*8192}
        s_mov_b32 s{S_T2}, {32*8192}
        s_mov_b32 s{S_T3}, {48*8192}
        v_mov_b32 v44, s{S_TB}
        v_mov_b32 v45, s{S_TB+1}
        v_mov_b32 v46, s{S_TB+2}
        v_mov_b32 v47, s{S_TB+3}
        s_and_b32 s{S_U}, s{S_HKV}, 1
        s_lshl_b32 s{S_U}, s{S_U}, 2
        s_lshl_b32 s{S_U}, 0x00010001, s{S_U}
        """)
        self.round1(160)
        self.srd(SRD_A, S_OUT, 4096)
        self.poll_emb([([f"buffer_load_dwordx4 {q(32+4*t)}, v166, {WS}, {so[t]} offen sc1"],
                         range(32+4*t, 36+4*t), 48+4*t, "-1" if t < 3 else ("-1", "0")) for t in range(4)], 16)
        self.sum4q(48, 8)
        self.scatter4(8)
        a(f"""
        v_add_f32_dpp v8, v8, v8 {ror8}
        v_add_f32_dpp v8, v8, v8 {ror4}
        """)
        self.round1(8)
        a("v_mul_f32 v8, v8, v162")
        self.round1(8)
        a(f"""
        v_add_f32 v8, v8, v160
        v_mov_b32_dpp v9, v8 quad_perm:[1,1,3,3] row_mask:0xf bank_mask:0xf
        v_cvt_pk_bf16_f32 v8, v8, v9
        v_mov_b32_dpp v9, v8 quad_perm:[2,2,2,2] row_mask:0xf bank_mask:0xf
        s_mov_b32 exec_lo, s{S_U}
        s_mov_b32 exec_hi, s{S_U}
        buffer_store_dwordx2 v[8:9], v165, {sp(SRD_A,4)}, 0 offen
        s_cmp_lg_u32 s2, 32
        s_cbranch_scc1 L_fin
        s_mov_b64 exec, 1
        s_add_u32 s{S_T0}, s{S_EPOCH}, 1
        v_mov_b32 v1, {WS_EPOCH}
        v_mov_b32 v2, s{S_T0}
        buffer_store_dword v2, v1, {WS}, 0 offen sc1
        """)
        a.label("L_fin")
        self.stamp(11)
        if o.dbl:
            a(f"""
            s_memrealtime {sp(S_U)}
            s_waitcnt lgkmcnt(0)
            s_sub_u32 s{S_T0}, s{S_ST+2*o.dbl}, s{S_ST}
            s_min_u32 s{S_T0}, s{S_T0}, 20000
            s_mul_i32 s{S_T0}, s{S_T0}, {o.dblk}
            s_mov_b32 s{S_T1}, s{S_U}
            L_dbl:
            s_memrealtime {sp(S_U)}
            s_waitcnt lgkmcnt(0)
            s_sub_u32 s{S_T2}, s{S_U}, s{S_T1}
            s_cmp_lt_u32 s{S_T2}, s{S_T0}
            s_cbranch_scc1 L_dbl
            """)
        a.label("L_fin2")
        self.flush_stamps(12, 0, 0)
        self.lite_end()
        a.label("L_end")
        a("s_endpgm")

    def aux_common(self, z=True):
        self.srd(SRD_WS, S_WS, WS_SIZE)
        self.consts()
        self.a(f"""
        v_mov_b32 v167, 0
        s_getreg_b32 s{S_LOC}, hwreg(HW_REG_XCC_ID, 0, 4)
        """)
        if z: self.a(f"""
        v_mov_b32 v166, 0
        s_mov_b32 s{S_CQ}, 0
        """)

    def mq_gemv(self):
        a = self.a; VZ = 167; WS = sp(SRD_WS, 4)
        self.lds_wait(L_CNT, 4, VZ, 1, sleep=0)
        self.stamp(1)
        self.gemv_mfma(2, 4, 165, 8, [96], [128+4*c for c in range(8)])
        self.lds_arrive(L_CNT+4)
        self.flavor_masks(S_M+8, "0x55555555", "0x55555555")
        a(f"""
        s_add_u32 s{S_T1}, s{S_TAG}, s{S_LOC}
        v_mov_b32 v17, s{S_T1}
        v_mov_b32 v19, s{S_T1}
        """)
        self.lds_wait(L_CNT+4, 4, VZ, 1, sleep=0)
        self.gemv_reduce(6, 8)
        a(f"""
        v_mov_b32 v16, v8
        v_mov_b32_dpp v18, v8 quad_perm:[1,1,3,3] row_mask:0xf bank_mask:0xf
        """)
        self.flavor_store(S_M+8, f"buffer_store_dwordx4 v[16:19], v7, {WS}, 0 offen")

    def sum4q(self, R, D):
        self.a(f"""
        v_pk_add_f32 {q(R,2)}, {q(R,2)}, {q(R+4,2)}
        v_pk_add_f32 {q(R+2,2)}, {q(R+2,2)}, {q(R+6,2)}
        v_pk_add_f32 {q(R+8,2)}, {q(R+8,2)}, {q(R+12,2)}
        v_pk_add_f32 {q(R+10,2)}, {q(R+10,2)}, {q(R+14,2)}
        v_pk_add_f32 {q(D,2)}, {q(R,2)}, {q(R+8,2)}
        v_pk_add_f32 {q(D+2,2)}, {q(R+2,2)}, {q(R+10,2)}
        """)

    def mq_addr(self):
        self.aff(4, L_AV, [(0,2,AVS),(2,1,16),(4,2,32)], [(S_WAVE,128)])
        self.aff(165, L_PART, [(3,1,PS),(0,3,16)], [(S_WAVE,2*PS)])
        self.aff(6, L_PART, [(4,2,2*PS),(0,3,128),(3,1,16)], [(S_WAVE,32)])
        self.a(f"""
        s_mov_b32 s{S_M+12}, 0xff0000ff
        s_mov_b32 s{S_M+13}, 0
        """)

    def lds_arrive(self, off, wait=False):
        self.a(f"""
        v_mov_b32 v1, 1
        s_mov_b64 exec, 1
        ds_add_u32 v167, v1 offset:{off}
        s_mov_b64 exec, -1
        """)

    def build(self):
        if self.o.stamps:
            for k in range(1, 12):
                self.a(f"s_mov_b64 {sp(S_ST+2*k)}, 0")
        self.prologue()
        self.aux()
        self.stream()
        self.a.lines.append(".p2align 8")
        self.a.label("L_last")
        return self.a.text()


NEARLY = 28

def header():
    ref = open("adaLN_cond__sliding_block_cached__geglu_ffn__decode.s.ref").read().split("\n")
    out = []
    for l in ref:
        if l.startswith("; @launch"): break
        out.append(l)
    return "\n".join(out) + "\n"


def main():
    ap = argparse.ArgumentParser()
    ap.add_argument("out")
    ap.add_argument("--stamps", action="store_true")
    ap.add_argument("--lite", action="store_true")
    ap.add_argument("--dbl", type=int, default=0)
    ap.add_argument("--cpf", type=int, default=1)
    ap.add_argument("--align", type=int, default=12)
    ap.add_argument("--dirty", type=int, default=0)
    ap.add_argument("--dirtypol", default="")
    ap.add_argument("--dblk", type=int, default=2)
    ap.add_argument("--depth", type=int, default=3)
    ap.add_argument("--tailfree", type=int, default=0)
    ap.add_argument("--nq", type=int, default=0)
    ap.add_argument("--chkstep", type=int, default=1)
    ap.add_argument("--qkextra", type=int, default=1)
    ap.add_argument("--trigw", type=int, default=31)
    ap.add_argument("--trigf", type=int, default=33)
    ap.add_argument("--pdm", type=int, default=1)
    ap.add_argument("--pdq", type=int, default=2)
    ap.add_argument("--gapm", type=int, default=14)
    ap.add_argument("--gapq", type=int, default=14)
    ap.add_argument("--slm", type=int, default=0)
    ap.add_argument("--slq", type=int, default=0)
    ap.add_argument("--trigq", type=int, default=19)
    ap.add_argument("--trigqn", type=int, default=1)
    ap.add_argument("--rec", type=int, default=0)
    ap.add_argument("--ppol", default="sc1")
    ap.add_argument("--pause", type=int, default=8)
    ap.add_argument("--pauseoff", type=int, default=24)
    ap.add_argument("--pausecnt", type=int, default=4)
    ap.add_argument("--pdh", type=int, default=3)
    ap.add_argument("--gaph", type=int, default=12)
    ap.add_argument("--dlyh", type=int, default=0)
    ap.add_argument("--spread", type=int, default=1)
    ap.add_argument("--predirty", type=int, default=1)
    ap.add_argument("--kadbg", type=int, default=0)
    ap.add_argument("--prepol", default="sc1")
    ap.add_argument("--kalean", type=int, default=0)
    ap.add_argument("--trigs", type=int, default=28)
    ap.add_argument("--trigp", type=int, default=0)
    ap.add_argument("--ppf", default="nt")
    ap.add_argument("--fdepth", type=int, default=6)
    ap.add_argument("--ldepth", type=int, default=0)
    ap.add_argument("--fsw", type=int, default=0)
    ap.add_argument("--lsw", type=int, default=16)
    ap.add_argument("--depth2", type=int, default=4)
    ap.add_argument("--sw2", type=int, default=24)
    ap.add_argument("--mearly", type=int, default=0)
    ap.add_argument("--clrfirst", type=int, default=0)
    ap.add_argument("--wdearly", type=int, default=1)
    ap.add_argument("--phalf", type=int, default=0)
    ap.add_argument("--hdepth", type=int, default=6)
    ap.add_argument("--abl", type=int, default=0)
    ap.add_argument("--swave", type=int, default=4)
    ap.add_argument("--cpol", default="")
    ap.add_argument("--xtpol", default="")
    ap.add_argument("--prio", type=int, default=0)
    ap.add_argument("--kvpol", default="nt")
    ap.add_argument("--wpol", default="nt")
    ap.add_argument("--fpol", default="nt")
    ap.add_argument("--sleep", type=int, default=0)
    ap.add_argument("--local", type=int, default=1)
    ap.add_argument("--qg", type=lambda x: int(x,0), default=0x1C0000)
    o = ap.parse_args()
    global WS_QG
    WS_QG = o.qg
    body = G(o).build()
    try: hd = header()
    except Exception: hd = "; generated\n"
    open(o.out, "w").write(kernel_file([(KN, body, 168, 102, 168)], [(KN, 256, 768, LDS_BYTES)], header=hd).replace(".p2align 8\n.type", f".p2align {o.align}\n.type"))


if __name__ == "__main__":
    main()
```

```python
import sys, argparse
from asmlib import *

WS_EPOCH = 0x0
WS_XT = 0xE000
WS_OP = 0x20000
WS_ST = 0xA0000
WS_AP = 0xB0000
WS_DP = 0xF0000
WS_X1 = 0x160000
WS_HG = 0x170000
WS_MOD = 0x180000
WS_QG = 0x1C0000
WS_STAMP = 0x200000
WS_SC = 0x300000
WS_SIZE = 0x1000000
L_CNT = 0x0
L_ZERO = 0x40
L_FLAG = 0x80
L_QF = 0x100
L_MX = 0x500
L_LS = 0x580
L_ACT = 0x600
L_AV = 0x800
AVS = 1024 + 64
L_PART = 0x1A00
PS = 1024 + 16
L_OL = 0x4000
OLS = 2048 + 32
L_PW = 0x8400
PWS = 16*144
LDS_BYTES = L_PW + 4*PWS

LOG2E = 0x3FB8AA3B
SCALE = 0x3DB504F3
TMO = 40000

S_X, S_K, S_V, S_WQ, S_WO, S_WG, S_WU = 4, 6, 8, 10, 12, 16, 18
S_WD, S_C, S_WM, S_OUT, S_DBG, S_WS = 20, 22, 24, 26, 28, 30
S_WAVE, S_HKV, S_IDX, S_B, S_CH = 32, 33, 34, 35, 36
S_TAG, S_EPOCH, S_TMO = 37, 38, 39
SRD_WS = 40
SRD_A = 44
SRD_B = 48
S_PLO, S_PHI = 52, 53
S_T0, S_T1, S_T2, S_T3 = 54, 55, 56, 57
S_M = 58
S_HI = 72
S_LOC = 73
S_ST = 74
S_CQ, S_TGT = 98, 99
S_U = 100
S_KH, S_J = 28, 29
S_TB = 6
S_PC = 14


def q(r, n=4): return f"v[{r}:{r+n-1}]"
def sp(r, n=2): return f"s[{r}:{r+n-1}]"


class G:
    def __init__(self, o):
        self.o = o
        self.a = Asm()
        self.nst = 0

    def stamp(self, k):
        if self.o.stamps or (self.o.lite and k == 0) or (self.o.dbl and k in (0, self.o.dbl)):
            self.a(f"s_memrealtime {sp(S_ST+2*k)}")

    def lite_end(self):
        if not self.o.lite: return
        self.a(f"""
        s_memrealtime {sp(S_ST+2)}
        s_mov_b64 exec, 1
        s_lshl_b32 s{S_T0}, s2, 8
        s_lshl_b32 s{S_T1}, s{S_WAVE}, 4
        s_add_u32 s{S_T0}, s{S_T0}, s{S_T1}
        s_add_u32 s{S_T0}, s{S_T0}, {WS_STAMP}
        v_mov_b32 v1, s{S_T0}
        s_waitcnt lgkmcnt(0)
        v_mov_b32 v2, s{S_ST}
        v_mov_b32 v3, s{S_ST+1}
        v_mov_b32 v4, s{S_ST+2}
        v_mov_b32 v5, s{S_ST+3}
        buffer_store_dwordx4 v[2:5], v1, {sp(SRD_WS,4)}, 0 offen
        """)

    def flush_stamps(self, n, slot, cond_wave):
        if not self.o.stamps: return
        a = self.a
        a(f"""
        s_waitcnt lgkmcnt(0)
        s_mov_b64 exec, -1
        s_lshl_b32 s{S_T0}, s2, 11
        s_lshl_b32 s{S_T1}, s{S_WAVE}, 7
        s_add_u32 s{S_T0}, s{S_T0}, s{S_T1}
        s_add_u32 s{S_T0}, s{S_T0}, {WS_STAMP}
        v_mbcnt_lo_u32_b32 v1, -1, 0
        v_lshlrev_b32 v1, 2, v1
        v_add_u32 v1, s{S_T0}, v1
        v_mov_b32 v2, 0
        """)
        for k in range(2*n): a(f"v_writelane_b32 v2, s{S_ST+k}, {k}")
        a(f"""
        s_mov_b32 exec_hi, 0
        buffer_store_dword v2, v1, {sp(SRD_WS,4)}, 0 offen
        """)

    def srd(self, dst, ptr, size):
        self.srd_hi(dst, size); self.srd_lo(dst, ptr)

    def srd_hi(self, dst, size):
        self.a(f"""
        s_mov_b32 s{dst+2}, {size}
        s_mov_b32 s{dst+3}, 0x20000
        """)

    def srd_lo(self, dst, ptr):
        self.a(f"s_mov_b64 {sp(dst)}, {sp(ptr)}")

    def transpose(self, src, dst, nrows=8):
        a = self.a
        ne = nrows // 2
        for e in range(ne):
            self.transpose_pair(src, dst, e, ne)

    def transpose_pair(self, src, dst, e, ne):
        a = self.a
        for d in range(4):
            lo, hi = src + 8*e + d, src + 8*e + 4 + d
            a(f"v_perm_b32 v{dst + (2*d)*ne + e}, v{hi}, v{lo}, s{S_PLO}")
            a(f"v_perm_b32 v{dst + (2*d+1)*ne + e}, v{hi}, v{lo}, s{S_PHI}")

    def transpose_inplace(self, b, t0, t1):
        a = self.a
        R = lambda row, d: b + 4*row + d
        for e in range(4):
            a(f"v_perm_b32 v{t0}, v{R(2*e+1,e)}, v{R(2*e,e)}, s{S_PLO}")
            a(f"v_perm_b32 v{R(2*e+1,e)}, v{R(2*e+1,e)}, v{R(2*e,e)}, s{S_PHI}")
            a(f"v_mov_b32 v{R(2*e,e)}, v{t0}")
            for d in range(e+1, 4):
                a(f"v_perm_b32 v{t0}, v{R(2*e+1,d)}, v{R(2*e,d)}, s{S_PLO}")
                a(f"v_perm_b32 v{t1}, v{R(2*e+1,d)}, v{R(2*e,d)}, s{S_PHI}")
                a(f"v_perm_b32 v{R(2*e,d)}, v{R(2*d+1,e)}, v{R(2*d,e)}, s{S_PLO}")
                a(f"v_perm_b32 v{R(2*e+1,d)}, v{R(2*d+1,e)}, v{R(2*d,e)}, s{S_PHI}")
                a(f"v_mov_b32 v{R(2*d,e)}, v{t0}")
                a(f"v_mov_b32 v{R(2*d+1,e)}, v{t1}")

    def rows_allreduce(self, op, r, t):
        self.a(f"""
        v_mov_b32 v{t}, v{r}
        v_permlane16_swap_b32 v{r}, v{t}
        {op} v{r}, v{r}, v{t}
        v_mov_b32 v{t}, v{r}
        v_permlane32_swap_b32 v{r}, v{t}
        {op} v{r}, v{r}, v{t}
        """)

    def wave_allreduce2(self, r0, r1, t0, t1):
        a = self.a
        for m in ("quad_perm:[1,0,3,2]", "quad_perm:[2,3,0,1]", "row_half_mirror", "row_mirror"):
            a(f"v_add_f32_dpp v{r0}, v{r0}, v{r0} {m} row_mask:0xf bank_mask:0xf")
            a(f"v_add_f32_dpp v{r1}, v{r1}, v{r1} {m} row_mask:0xf bank_mask:0xf")
        for sw in ("16", "32"):
            a(f"""
            v_mov_b32 v{t0}, v{r0}
            v_mov_b32 v{t1}, v{r1}
            v_permlane{sw}_swap_b32 v{r0}, v{t0}
            v_permlane{sw}_swap_b32 v{r1}, v{t1}
            v_add_f32 v{r0}, v{r0}, v{t0}
            v_add_f32 v{r1}, v{r1}, v{t1}
            """)

    def scatter4(self, r):
        self.a(f"""
        v_permlane32_swap_b32 v{r}, v{r+2}
        v_permlane32_swap_b32 v{r+1}, v{r+3}
        v_add_f32 v{r}, v{r}, v{r+2}
        v_add_f32 v{r+1}, v{r+1}, v{r+3}
        v_permlane16_swap_b32 v{r}, v{r+1}
        v_add_f32 v{r}, v{r}, v{r+1}
        """)

    def unpack(self, pk, lo, hi):
        self.a(f"""
        v_and_b32 v{hi}, s{S_HI}, v{pk}
        v_lshlrev_b32 v{lo}, 16, v{pk}
        """) if lo == pk else self.a(f"""
        v_lshlrev_b32 v{lo}, 16, v{pk}
        v_and_b32 v{hi}, s{S_HI}, v{pk}
        """)

    def round2(self, r0, r1, t):
        self.a(f"v_cvt_pk_bf16_f32 v{t}, v{r0}, v{r1}")
        self.unpack(t, r0, r1)

    def round1(self, r):
        self.a(f"""
        v_cvt_pk_bf16_f32 v{r}, v{r}, v{r}
        v_and_b32 v{r}, s{S_HI}, v{r}
        """)

    def lds_sync(self, cnt, target, vt0, vt1):
        a = self.a
        L = a.newlabel("Lsync"); E = a.newlabel("Lsyncx")
        a(f"""
        v_mov_b32 v{vt0}, {cnt}
        v_mov_b32 v{vt1}, 1
        s_waitcnt lgkmcnt(0)
        s_mov_b64 exec, 1
        ds_add_u32 v{vt0}, v{vt1}
        s_mov_b64 exec, -1
        s_mov_b32 s{S_TMO}, {TMO*8}
        {L}:
        ds_read_b32 v{vt1}, v{vt0}
        s_sub_u32 s{S_TMO}, s{S_TMO}, 1
        s_cbranch_scc1 {E}
        s_waitcnt lgkmcnt(0)
        v_readfirstlane_b32 s{S_T0}, v{vt1}
        s_cmp_lt_u32 s{S_T0}, {target}
        s_cbranch_scc1 {L}
        {E}:
        s_waitcnt lgkmcnt(0)
        """)

    def poll_tagged(self, loads, tagregs, pre=None, sleepy=True, wait0=0, st=S_T0, issued=0):
        a = self.a
        L = a.newlabel("Lpt"); E = a.newlabel("Lptx"); C = a.newlabel("Lptc")
        a(f"s_mov_b32 s{S_TMO}, {TMO}")
        if pre:
            for l in loads: a(l)
            pre()
            a(f"s_waitcnt vmcnt({wait0})\ns_branch {C}")
        if issued: a(f"s_waitcnt vmcnt(0)\ns_branch {C}")
        a.label(L)
        if self.o.sleep and sleepy: a(f"s_sleep {self.o.sleep}")
        for l in loads: a(l)
        a(f"""
        s_sub_u32 s{S_TMO}, s{S_TMO}, 1
        s_waitcnt vmcnt(0)
        s_cbranch_scc1 {E}
        """)
        a.label(C)
        for i, r in enumerate(tagregs):
            if i == 0: a(f"v_cmp_ne_u32 vcc, s{S_TAG}, v{r}")
            else:
                a(f"v_cmp_ne_u32 {sp(st)}, s{S_TAG}, v{r}")
                a(f"s_or_b64 vcc, vcc, {sp(st)}")
        a(f"s_cbranch_scc1 {L}" if len(tagregs) > 1 else f"s_cbranch_vccnz {L}")
        a.label(E)

    def embed(self, r, vm, n=4):
        for i in range(n): self.a(f"v_bfi_b32 v{r+i}, v{vm}, s{S_TB+i%4}, v{r+i}")

    def poll_emb(self, groups, tmp, dly=0, gap=0, mid=None):
        a = self.a
        L = a.newlabel("Lps"); E = a.newlabel("Lpsx")
        a(f"s_mov_b32 s{S_TMO}, {TMO}")
        for i, (loads, regs, dst, init) in enumerate(groups):
            if isinstance(init, tuple):
                a(f"s_mov_b32 s{S_M+2*i}, {init[0]}\ns_mov_b32 s{S_M+2*i+1}, {init[1]}")
            else:
                a(f"s_mov_b64 {sp(S_M+2*i)}, {init}")
        if dly > gap: a(f"s_sleep {dly-gap}")
        C = a.newlabel("Lpsc")
        if mid:
            for g in groups:
                for l in g[0]: a(l)
            mid(sum(len(g[0]) for g in groups))
            a(f"s_branch {C}")
        a.label(L)
        if gap: a(f"s_sleep {gap}")
        for i, (loads, regs, dst, init) in enumerate(groups):
            a(f"s_mov_b64 exec, {sp(S_M+2*i)}")
            for l in loads: a(l)
        a(f"""
        s_mov_b64 exec, -1
        s_sub_u32 s{S_TMO}, s{S_TMO}, 1
        s_cbranch_scc1 {E}
        """)
        a.label(C)
        left = sum(len(g[0]) for g in groups)
        for i, (loads, regs, dst, init) in enumerate(groups):
            left -= len(loads)
            a(f"s_waitcnt vmcnt({left})")
            rs = list(regs)
            if dst is None:
                for k, r in enumerate(rs): a(f"v_xor_b32 v{tmp+k}, s{S_TAG}, v{r}")
                assert len(rs) == 2
                a(f"v_or_b32 v{tmp}, v{tmp}, v{tmp+1}\nv_cmp_ne_u32 {sp(S_M+2*i)}, 0, v{tmp}")
                continue
            for k, r in enumerate(rs): a(f"v_xor_b32 v{dst+k}, s{S_TB+k%4}, v{r}")
            rs = [dst+k for k in range(len(rs))]
            a(f"v_or3_b32 v{tmp}, v{rs[0]}, v{rs[1]}, v{rs[2]}")
            rs = rs[3:]
            while len(rs) >= 2:
                a(f"v_or3_b32 v{tmp}, v{tmp}, v{rs[0]}, v{rs[1]}"); rs = rs[2:]
            a(f"v_or_b32 v{tmp}, v{tmp}, v{rs[0]}")
            a(f"v_cmp_ne_u32_sdwa {sp(S_M+2*i)}, v{tmp}, v167 src0_sel:BYTE_0 src1_sel:DWORD")
        a(f"s_or_b64 vcc, {sp(S_M)}, {sp(S_M+2)}")
        for i in range(2, len(groups)):
            a(f"s_or_b64 vcc, vcc, {sp(S_M+2*i)}")
        a(f"""
        s_cbranch_scc1 {L}
        {E}:
        s_waitcnt vmcnt(0)
        """)


    def poll_emb2(self, groups, tmp, dly=0, gap=0, D=3):
        a = self.a
        L = a.newlabel("Lps"); E = a.newlabel("Lpsx")
        a(f"s_mov_b32 s{S_TMO}, {TMO*4}")
        for i, (loads, regs, dst, init) in enumerate(groups):
            if isinstance(init, tuple):
                a(f"s_mov_b32 s{S_M+2*i}, {init[0]}\ns_mov_b32 s{S_M+2*i+1}, {init[1]}")
            else:
                a(f"s_mov_b64 {sp(S_M+2*i)}, {init}")
        if dly: a(f"s_sleep {dly}")
        a.label(L)
        for i, (loads, regs, dst, init) in enumerate(groups):
            a(f"s_mov_b64 exec, {sp(S_M+2*i)}")
            for l in loads: a(l)
        n = sum(len(g[0]) for g in groups)
        a(f"""
        s_mov_b64 exec, -1
        s_sub_u32 s{S_TMO}, s{S_TMO}, 1
        s_cbranch_scc1 {E}
        """)
        if gap: a(f"s_sleep {gap}")
        a(f"s_waitcnt vmcnt({(D-1)*n})")
        for i, (loads, regs, dst, init) in enumerate(groups):
            rs = list(regs)
            if isinstance(dst, tuple):
                for (d, r) in dst: a(f"v_mov_b32 v{d}, v{r}")
                raise Exception("unsupported")
            for k, r in enumerate(rs): a(f"v_xor_b32 v{dst+k}, s{S_TB+k%4}, v{r}")
            rs = [dst+k for k in range(len(rs))]
            a(f"v_or3_b32 v{tmp}, v{rs[0]}, v{rs[1]}, v{rs[2]}")
            rs = rs[3:]
            while len(rs) >= 2:
                a(f"v_or3_b32 v{tmp}, v{tmp}, v{rs[0]}, v{rs[1]}"); rs = rs[2:]
            a(f"v_or_b32 v{tmp}, v{tmp}, v{rs[0]}")
            a(f"v_cmp_ne_u32_sdwa {sp(S_M+2*i)}, v{tmp}, v167 src0_sel:BYTE_0 src1_sel:DWORD")
        a(f"s_or_b64 vcc, {sp(S_M)}, {sp(S_M+2)}")
        for i in range(2, len(groups)):
            a(f"s_or_b64 vcc, vcc, {sp(S_M+2*i)}")
        a(f"""
        s_cbranch_scc1 {L}
        {E}:
        """)
    def capture(self, fn):
        old = self.a
        self.a = Asm(); self.a.nlabel = old.nlabel
        fn()
        lines = self.a.lines; old.nlabel = self.a.nlabel
        self.a = old
        return lines

    def aff(self, vd, base, lt=(), st=(), vt=1):
        a = self.a
        first = base == 0 and len(st) > 0
        if not first: a(f"s_mov_b32 s{S_U}, {base}")
        for (sr, mul) in st:
            d = S_U if first else S_U+1
            if mul == 1:
                a(f"s_mov_b32 s{S_U}, s{sr}" if first else f"s_add_u32 s{S_U}, s{S_U}, s{sr}")
            elif mul in (2, 4, 8, 16) and not first:
                a(f"s_lshl{mul.bit_length()-1}_add_u32 s{S_U}, s{sr}, s{S_U}")
            else:
                a(f"s_lshl_b32 s{d}, s{sr}, {mul.bit_length()-1}" if mul & (mul-1) == 0 else f"s_mul_i32 s{d}, s{sr}, {mul}")
                if not first: a(f"s_add_u32 s{S_U}, s{S_U}, s{S_U+1}")
            first = False
        acc = f"s{S_U}"
        if not lt: a(f"v_mov_b32 v{vd}, {acc}")
        for (sh, w, mul) in lt:
            if sh == 0 and w >= 6: src = "v0"
            else:
                src = f"v{vt}"
                if sh + w >= 6: a(f"v_lshrrev_b32 v{vt}, {sh}, v0")
                elif sh == 0: a(f"v_and_b32 v{vt}, {(1<<w)-1}, v0")
                else: a(f"v_bfe_u32 v{vt}, v0, {sh}, {w}")
            if mul & (mul-1) == 0:
                a(f"v_lshl_add_u32 v{vd}, {src}, {mul.bit_length()-1}, {acc}")
            else:
                a(f"v_mul_u32_u24 v{vt}, {mul}, {src}\nv_add_u32 v{vd}, {acc}, v{vt}")
            acc = f"v{vd}"

    def flavor_masks(self, dst, lo, hi):
        self.a(f"""
        s_cmp_lg_u32 s{S_LOC}, 0
        s_cselect_b32 s{dst}, {lo}, 0
        s_cselect_b32 s{dst+1}, {hi}, 0
        s_cselect_b32 s{dst+2}, 0, {lo}
        s_cselect_b32 s{dst+3}, 0, {hi}
        """)

    def flavor_store(self, m, ins):
        self.a(f"""
        s_mov_b64 exec, {sp(m)}
        {ins}
        s_mov_b64 exec, {sp(m+2)}
        {ins} sc1
        s_mov_b64 exec, -1
        """)

    def quad_reduce(self, r, r2):
        a = self.a
        for i in range(4): a(f"v_add_f32 v{r+i}, v{r+i}, v{r2+i}")
        for m in ("[1,0,3,2]", "[2,3,0,1]"):
            for i in range(4):
                a(f"v_add_f32_dpp v{r+i}, v{r+i}, v{r+i} quad_perm:{m} row_mask:0xf bank_mask:0xf")
        self.embed(r, 31)

    def tile_loads(self, va, srd, offs, dst, pol):
        a = self.a
        cur = None
        for i, off in enumerate(offs):
            hi, lo = off & ~4095, off & 4095
            if hi == 0: so = "0"
            else:
                if cur != hi: a(f"s_mov_b32 s{S_T0}, {hi}"); cur = hi
                so = f"s{S_T0}"
            a(f"buffer_load_dwordx4 {q(dst+4*i)}, v{va}, {sp(srd,4)}, {so} offen offset:{lo} {pol}")

    def tile_loads_k(self, va, srd, stride, sk, dst, pol, n=8):
        a = self.a
        for i in range(n):
            so = "0" if i == 0 else f"s{sk}" if i == 1 else f"s{S_T0}"
            if i == 2: a(f"s_lshl_b32 s{S_T0}, s{sk}, 1")
            elif i > 2: a(f"s_add_u32 s{S_T0}, s{S_T0}, s{sk}")
            a(f"buffer_load_dwordx4 {q(dst+4*i)}, v{va}, {sp(srd,4)}, {so} offen {pol}")

    def gemv_reduce(self, vr, R):
        a = self.a
        a(f"""
        ds_read_b128 {q(R)}, v{vr}
        ds_read_b128 {q(R+4)}, v{vr} offset:{PS}
        s_waitcnt lgkmcnt(0)
        v_pk_add_f32 {q(R,2)}, {q(R,2)}, {q(R+4,2)}
        v_pk_add_f32 {q(R+2,2)}, {q(R+2,2)}, {q(R+6,2)}
        """)
        self.scatter4(R)

    def pack4(self, R):
        self.a(f"""
        v_mov_b32_dpp v{R+1}, v{R} quad_perm:[1,1,3,3] row_mask:0xf bank_mask:0xf
        v_mov_b32 v{R+3}, s{S_TAG}
        v_cvt_pk_bf16_f32 v{R}, v{R}, v{R+1}
        v_mov_b32 v{R+1}, s{S_TAG}
        v_mov_b32_dpp v{R+2}, v{R} quad_perm:[2,2,2,2] row_mask:0xf bank_mask:0xf
        """)

    def round8(self, X, T):
        for i in range(4): self.a(f"v_cvt_pk_bf16_f32 v{T+i}, v{X+2*i}, v{X+2*i+1}")
        for i in range(4): self.unpack(T+i, X+2*i, X+2*i+1)

    def layernorm(self, X, T):
        a = self.a
        bc = "op_sel_hi:[1,0]"; ng = "neg_lo:[0,1] neg_hi:[0,1]"
        a(f"v_readfirstlane_b32 s{S_U}, v{X}")
        for i in range(4): a(f"v_pk_add_f32 {q(T+2*i,2)}, {q(X+2*i,2)}, {sp(S_U)} {bc} {ng}")
        a(f"""
        v_pk_add_f32 {q(T+8,2)}, {q(T,2)}, {q(T+2,2)}
        v_pk_mul_f32 {q(T+10,2)}, {q(T,2)}, {q(T,2)}
        v_pk_fma_f32 {q(T+10,2)}, {q(T+2,2)}, {q(T+2,2)}, {q(T+10,2)}
        v_pk_add_f32 {q(T,2)}, {q(T+4,2)}, {q(T+6,2)}
        v_pk_fma_f32 {q(T+10,2)}, {q(T+4,2)}, {q(T+4,2)}, {q(T+10,2)}
        v_pk_add_f32 {q(T+8,2)}, {q(T+8,2)}, {q(T,2)}
        v_pk_fma_f32 {q(T+10,2)}, {q(T+6,2)}, {q(T+6,2)}, {q(T+10,2)}
        v_add_f32 v{T+8}, v{T+8}, v{T+9}
        v_add_f32 v{T+10}, v{T+10}, v{T+11}
        v_permlane32_swap_b32 v{T+8}, v{T+10}
        v_add_f32 v{T+8}, v{T+8}, v{T+10}
        v_add_f32_dpp v{T+8}, v{T+8}, v{T+8} quad_perm:[1,0,3,2] row_mask:0xf bank_mask:0xf
        v_add_f32_dpp v{T+8}, v{T+8}, v{T+8} quad_perm:[2,3,0,1] row_mask:0xf bank_mask:0xf
        v_add_f32_dpp v{T+8}, v{T+8}, v{T+8} row_half_mirror row_mask:0xf bank_mask:0xf
        v_add_f32_dpp v{T+8}, v{T+8}, v{T+8} row_mirror row_mask:0xf bank_mask:0xf
        v_readlane_b32 s{S_T0}, v{T+8}, 0
        v_readlane_b32 s{S_T1}, v{T+8}, 16
        v_readlane_b32 s{S_T2}, v{T+8}, 32
        v_readlane_b32 s{S_T3}, v{T+8}, 48
        v_mov_b32 v{T+10}, 0x3b000000
        v_mul_f32 v{T+8}, s{S_T0}, v{T+10}
        v_mul_f32 v{T+9}, s{S_T2}, v{T+10}
        v_fmac_f32 v{T+8}, s{S_T1}, v{T+10}          ; E[d]
        v_fmac_f32 v{T+9}, s{S_T3}, v{T+10}          ; E[d^2]
        v_fma_f32 v{T+9}, -v{T+8}, v{T+8}, v{T+9}    ; var
        v_add_f32 v{T+8}, s{S_U}, v{T+8}             ; mean
        v_max_f32 v{T+9}, 0, v{T+9}
        v_cvt_pk_bf16_f32 v{T+10}, v{T+8}, v{T+9}
        v_lshlrev_b32 v{T+8}, 16, v{T+10}
        v_and_b32 v{T+10}, s{S_HI}, v{T+10}
        v_add_f32 v{T+10}, 0x3727c5ac, v{T+10}
        v_cvt_pk_bf16_f32 v{T+10}, v{T+10}, v{T+10}
        v_and_b32 v{T+10}, s{S_HI}, v{T+10}
        v_sqrt_f32 v{T+10}, v{T+10}
        """)
        for i in range(4): a(f"v_pk_add_f32 {q(X+2*i,2)}, {q(X+2*i,2)}, {q(T+8,2)} {bc} {ng}")
        a(f"""
        v_cvt_pk_bf16_f32 v{T+10}, v{T+10}, v{T+10}
        v_and_b32 v{T+10}, s{S_HI}, v{T+10}
        v_rcp_f32 v{T+10}, v{T+10}
        """)
        self.round8(X, T)
        for i in range(4): a(f"v_pk_mul_f32 {q(X+2*i,2)}, {q(X+2*i,2)}, {q(T+10,2)} {bc}")
        self.round8(X, T)

    def gettag(self, wait=True):
        if wait: self.a("s_waitcnt lgkmcnt(0)")
        self.a(f"""
        s_lshl_b32 s{S_TAG}, s{S_EPOCH}, 1
        s_add_u32 s{S_TAG}, s{S_TAG}, 0x9E3779B8
        """)

    def tagbytes(self):
        self.a(f"""
        s_mul_i32 s{S_TB+3}, s{S_EPOCH}, 0x01010101
        s_add_u32 s{S_TB+3}, s{S_TB+3}, 0x5B3C1E87
        s_and_b32 s{S_TB}, s{S_TB+3}, 0xff
        s_bfe_u32 s{S_TB+1}, s{S_TB+3}, 0x80008
        s_bfe_u32 s{S_TB+2}, s{S_TB+3}, 0x80010
        s_lshr_b32 s{S_TB+3}, s{S_TB+3}, 24
        """)

    def predirty(self):
        self.a(f"""
        s_mov_b32 exec_lo, 0x00010001
        s_mov_b32 exec_hi, 0x00010001
        buffer_load_dword v16, v7, {sp(SRD_WS,4)}, 0 offen {self.o.prepol}
        s_mov_b64 exec, -1
        """)

    def xt_publish(self, pre=False, allw=False):
        a = self.a
        if pre and self.o.predirty: self.predirty()
        L = a.newlabel("Lxt")
        if not allw: a(f"""
        s_cmp_lg_u32 s{S_WAVE}, 1
        s_cbranch_scc1 {L}
        """)
        self.aff(1, WS_XT, [], [(S_HKV,256),(S_IDX,8)])
        a(f"""
        v_mov_b32 v2, s{S_LOC}
        v_mov_b32 v3, s{S_TAG}
        s_mov_b64 exec, 1
        buffer_store_dwordx2 v[2:3], v1, {sp(SRD_WS,4)}, 0 offen {self.o.xtpol}
        s_mov_b64 exec, -1
        {L}:
        """)

    def gemv_mfma(self, nkb, va, vd, A, Bs, Dq, fill=(), ilw=0):
        a = self.a
        fill = list(fill)
        cs = 128 if nkb == 2 else 64
        for i in range(len(Bs)): a(f"ds_read_b128 {q(A+4*i)}, v{va[i]}")
        npre = len(fill) - 3*(8*len(Bs) - (8 if ilw else 0))
        for _ in range(max(npre, 0)): a(fill.pop(0))
        for i, B in enumerate(Bs):
            a(f"s_waitcnt lgkmcnt({len(Bs)-1-i})")
            last = i == len(Bs)-1
            if last and ilw: a(f"s_mov_b64 exec, {sp(S_M+12)}")
            for c in range(8):
                a(f"v_mfma_f32_16x16x32_bf16 {q(Dq[c])}, {q(A+4*i)}, {q(B+4*c)}, {'0' if i == 0 else q(Dq[c])}")
                if last and ilw:
                    if c >= ilw: a(f"ds_write_b128 v{vd}, {q(Dq[c-ilw])} offset:{(c-ilw)*cs}")
                else:
                    for _ in range(3):
                        if fill: a(fill.pop(0))
        assert not fill
        if not ilw: a(f"s_mov_b64 exec, {sp(S_M+12)}")
        for c in range(8-ilw if ilw else 0, 8):
            a(f"ds_write_b128 v{vd}, {q(Dq[c])} offset:{c*cs}")
        a("s_mov_b64 exec, -1")

    def roundn(self, X, T, n):
        for i in range(n//2): self.a(f"v_cvt_pk_bf16_f32 v{T+i}, v{X+2*i}, v{X+2*i+1}")
        for i in range(n//2): self.unpack(T+i, X+2*i, X+2*i+1)

    def modulate(self, X, C1, SH, T, out, n=8):
        a = self.a
        for i in range(n//2): a(f"v_pk_mul_f32 {q(X+2*i,2)}, {q(X+2*i,2)}, {q(C1+2*i,2)}")
        self.roundn(X, T, n)
        for i in range(n//2): a(f"v_pk_add_f32 {q(X+2*i,2)}, {q(X+2*i,2)}, {q(SH+2*i,2)}")
        for i in range(n//2): a(f"v_cvt_pk_bf16_f32 v{out+i}, v{X+2*i}, v{X+2*i+1}")

    def poll_pipe(self, sets, done, gap, sl=0, rec=None, or1=None):
        a = self.a
        D = len(sets); nl = len(sets[0][0])
        L = a.newlabel("Lpp"); E = a.newlabel("Lppx")
        DL = [a.newlabel("Lppd") for _ in sets]
        a(f"s_mov_b32 s{S_TMO}, {TMO}")
        for k, (loads, tags) in enumerate(sets):
            for l in loads: a(l)
            if k < D-1 and gap: a(f"s_sleep {gap}")
        a.label(L)
        for k, (loads, tags) in enumerate(sets):
            a(f"s_waitcnt vmcnt({(D-1)*nl})")
            t = self.PT
            if len(tags) <= 5:
                a(f"v_xor_b32 v{t}, s{S_TAG}, v{tags[0]}")
                for r in tags[1:]:
                    a(f"v_xor_b32 v{t+1}, s{S_TAG}, v{r}\nv_or_b32 v{t}, v{t}, v{t+1}")
            else:
                if len(tags) % 2 == 0: tags = list(tags) + [tags[-1]]
                for i in range(1, len(tags), 2):
                    a(f"v_max3_u32 v{t}, v{tags[0] if i == 1 else t}, v{tags[i]}, v{tags[i+1]}")
                    a(f"v_min3_u32 v{t+1}, v{tags[0] if i == 1 else t+1}, v{tags[i]}, v{tags[i+1]}")
                a(f"v_xor_b32 v{t}, s{S_TAG}, v{t}\nv_xor_b32 v{t+1}, s{S_TAG}, v{t+1}\nv_or_b32 v{t}, v{t}, v{t+1}")
            a(f"v_cmp_lt_u32 vcc, {1 if or1 else 0}, v{t}")
            a(f"s_cbranch_vccz {DL[k]}")
            if 0: a(f"s_cbranch_scc0 {DL[k]}" if len(tags) > 1 else f"s_cbranch_vccz {DL[k]}")
            if sl: a(f"s_sleep {sl}")
            for l in loads: a(l)
        a(f"""
        s_sub_u32 s{S_TMO}, s{S_TMO}, 1
        s_cbranch_scc0 {L}
        s_waitcnt vmcnt(0)
        """)
        for k in range(D):
            a.label(DL[k])
            done(k)
            if k < D-1: a(f"s_branch {E}")
        a.label(E)
        if rec is not None and self.o.stamps and self.o.rec:
            a(f"""
            s_waitcnt lgkmcnt(0)
            s_sub_u32 s{S_T0}, {TMO}, s{S_TMO}
            s_mul_i32 s{S_T0}, s{S_T0}, 100
            s_add_u32 s{S_ST+2*rec}, s{S_ST}, s{S_T0}
            s_addc_u32 s{S_ST+2*rec+1}, s{S_ST+1}, 0
            """)

    def lds_wait(self, off, target, vz, vt, sleep=1):
        a = self.a
        L = a.newlabel("Lw"); E = a.newlabel("Lwx")
        a(f"""
        s_mov_b32 s{S_TMO}, {TMO*8}
        {L}:
        ds_read_b32 v{vt}, v{vz} offset:{off}
        s_sub_u32 s{S_TMO}, s{S_TMO}, 1
        s_cbranch_scc1 {E}
        """)
        if sleep: a(f"s_sleep {sleep}")
        a(f"""
        s_waitcnt lgkmcnt(0)
        v_readfirstlane_b32 s{S_T0}, v{vt}
        s_cmp_lt_u32 s{S_T0}, {target}
        s_cbranch_scc1 {L}
        {E}:
        s_waitcnt lgkmcnt(0)
        """)

    def consts(self):
        self.a(f"""
        s_mov_b32 s{S_PLO}, 0x05040100
        s_mov_b32 s{S_PHI}, 0x07060302
        s_mov_b32 s{S_HI}, 0xffff0000
        """)

    def prologue(self):
        a = self.a
        self.stamp(0)
        a(f"""
        s_cmp_ge_u32 s2, 256
        s_cbranch_scc1 L_end
        s_load_dwordx16 s[4:19], s[0:1], 0
        s_load_dwordx8 s[20:27], s[0:1], 64
        s_load_dwordx2 s[30:31], s[0:1], 104
        v_lshrrev_b32 v1, 6, v0
        v_and_b32 v0, 63, v0
        s_and_b32 s{S_HKV}, s2, 7
        v_readfirstlane_b32 s{S_WAVE}, v1
        s_lshr_b32 s{S_IDX}, s2, 3
        s_and_b32 s{S_B}, s{S_IDX}, 3
        s_cmp_lt_u32 s{S_WAVE}, 4
        s_cbranch_scc0 L_str
        """)

    def stream_defs(self):
        o = self.o
        kreg = lambda t, u: 32 + 16*t + 4*u
        vreg = lambda t, u: 96 + 16*t + 4*u
        dreg = lambda t, u: (8 + 4*u) if t == 0 else (32 + 16*(t-1) + 4*u)
        so = [f"s{S_CQ}", f"s{S_T1}", f"s{S_T2}", f"s{S_T3}"]
        loads = []
        for (rf, va, srd) in ((kreg, 4, SRD_A), (vreg, 5, SRD_B)):
            for t in range(4):
                for u in range(4):
                    loads.append(f"buffer_load_dwordx4 {q(rf(t,u))}, v{va}, {sp(srd,4)}, {so[t]} offen offset:{u*1024} {o.kvpol}")
        return loads, kreg, dreg

    def stream_early(self):
        a = self.a; o = self.o
        loads, kreg, dreg = self.stream_defs()
        S_W = 3
        a(f"""
        L_str:
        s_lshr_b32 s{S_CH}, s{S_IDX}, 2
        s_sub_u32 s{S_W}, s{S_WAVE}, 4
        s_lshl3_add_u32 s{S_T0}, s{S_B}, s{S_HKV}
        s_lshl_b32 s{S_T0}, s{S_T0}, 7
        s_add_u32 s{S_T0}, s{S_T0}, s{S_CH}
        s_lshl3_add_u32 s{S_T0}, s{S_T0}, s{S_W}
        s_addk_i32 s{S_T0}, 768
        s_lshl_b32 s{S_T0}, s{S_T0}, 12
        v_bfe_u32 v1, v0, 2, 2
        v_lshrrev_b32 v2, 4, v0
        v_and_b32 v3, 3, v0
        v_lshlrev_b32 v6, 8, v1
        v_lshl_add_u32 v6, v2, 6, v6
        v_lshl_add_u32 v6, v3, 4, v6
        v_add_u32 v4, s{S_T0}, v6
        v_lshl_add_u32 v5, v0, 4, s{S_T0}
        s_lshr_b32 s{S_CQ}, s{S_CH}, 1
        s_lshl_b32 s{S_CQ}, s{S_CQ}, 18
        """)
        self.srd_hi(SRD_A, 0x8000000)
        if (o.mh or o.ml): a(f"""
        s_cmp_lt_u32 s{S_IDX}, 20
        s_waitcnt lgkmcnt(0)
        """)
        else: a(f"""
        s_sub_u32 s{S_T0}, s{S_IDX}, 20
        s_bitcmp1_b32 s{S_HKV}, 0
        s_cselect_b32 s{S_T1}, {8 if o.msw == 1 else 6 if o.fswap else 7}, {8 if o.fswap else 7}
        s_cmp_lt_u32 s{S_IDX}, {NEARLY}
        s_waitcnt lgkmcnt(0)
        """)
        self.srd_lo(SRD_A, S_K)
        a("s_barrier" if o.hbar else f"""
        s_cbranch_scc0 L_sH0
        s_barrier
        L_sH0:
        """)
        for l in loads[:o.depth]: a(l)
        if (o.mh or o.ml): a(f"""
        s_cbranch_scc1 L_sN
        s_cmp_lt_u32 s{S_IDX}, {NEARLY}
        s_cbranch_scc1 L_sF
        s_branch L_sH
        """)
        else: a(f"""
        s_cbranch_scc0 L_sH
        s_cmp_lt_u32 s{S_T0}, s{S_T1}
        s_cbranch_scc1 L_sF
        s_branch L_sN{"0" if o.fast else ""}
        """)

    def stream(self):
        a = self.a; o = self.o
        loads, kreg, dreg = self.stream_defs()
        if o.fast: a(f"""
        L_sN0:
        s_lshr_b32 s{S_T0}, s{S_IDX}, 1
        s_cmp_eq_u32 s{S_T0}, 5
        s_cbranch_scc1 L_s{"F" if o.fast == 1 else "G"}
        """)
        if o.msw == 2: a(f"s_cmp_eq_u32 s{S_T0}, 13\ns_cbranch_scc1 L_sG")
        if o.mpause: a(f"s_cmp_lt_u32 s{S_IDX}, 4\ns_cbranch_scc1 L_sM")
        elif o.g3: a(f"s_and_b32 s{S_T0}, s2, 0xe7\ns_cmp_eq_u32 s{S_T0}, 3\ns_cbranch_scc1 L_sG")
        a.label("L_sN")
        self.stream_body(False, loads, kreg, dreg, "", o.depth2, o.sw2)
        if o.fast > 1:
            a.label("L_sG")
            self.stream_body(False, loads, kreg, dreg, "g", o.fast, 0)
        if o.mpause:
            a.label("L_sM")
            self.stream_body(False, loads, kreg, dreg, "m", o.mpause, 3)
        a.label("L_sF")
        self.stream_body(False, loads, kreg, dreg, "f", o.fdepth, o.fsw)
        a.label("L_sH")
        self.stream_body(True, loads, kreg, dreg)

    def stream_body(self, h, loads, kreg, dreg, X="", depth=0, sw=0):
        a = self.a; o = self.o
        S_W = 3
        S_N = S_TGT
        X = "h" if h else X
        depth = o.hdepth if h else depth or o.depth
        dn = lambda n: depth if (h or n >= sw) else o.depth
        if o.dsched and X == "" and not h:
            ds = [int(c) for c in o.dsched]
            dn = lambda n: ds[n // 4]
        first = o.pause if h else dn(0)
        assert o.depth <= 4 and o.spread == 1
        for l in loads[o.depth:min(first, 4)]: a(l)
        a(f"""
        s_xor_b32 s{S_T1}, s{S_CQ}, {1<<18}
        s_xor_b32 s{S_T2}, s{S_CQ}, {2<<18}
        s_xor_b32 s{S_T3}, s{S_CQ}, {3<<18}
        """)
        for l in loads[4:first]: a(l)
        self.srd(SRD_B, S_V, 0x8000000)
        self.srd(SRD_WS, S_WS, WS_SIZE)
        self.consts()
        a(f"""
        v_mov_b32 v163, 0
        v_mov_b32 v161, 1
        """)
        a(f"s_load_dword s{S_EPOCH}, {sp(S_WS)}, {WS_EPOCH}")
        if (h and not o.hbar) or ((o.mh or o.ml) and X == "f"): a("s_barrier")
        if o.gpf: a(f"""
        s_cmp_lt_u32 s{S_IDX}, 16
        s_cselect_b32 s12, s{S_WG}, s{S_WU}
        s_cselect_b32 s13, s{S_WG+1}, s{S_WU+1}
        s_mov_b32 s14, {512*3584}
        s_mov_b32 s15, 0x20000
        s_mul_i32 s10, s{S_HKV}, 7
        s_lshr_b32 s10, s10, 1
        s_and_b32 s11, s{S_IDX}, 15
        """)
        gpf = f"buffer_load_dword v4, v4, s[12:15], 0 offen {o.ppf}"
        pf = 1 if o.gpf == 31 else 0
        a(f"""
        v_cmp_eq_u32 {sp(S_M)}, 1, v3
        v_cmp_eq_u32 {sp(S_M+2)}, 2, v3
        v_cmp_eq_u32 {sp(S_M+4)}, 3, v3
        v_lshlrev_b32 v7, 5, v1                 ; h*32
        s_lshr_b32 s{S_T0}, s{S_CH}, 1
        s_and_b32 s{S_N}, s{S_CH}, 1
        """)
        self.aff(160, WS_ST, [(2,2,512)], [(S_HKV,2048),(S_T0,128),(S_B,32),(S_N,16)], vt=2)
        self.aff(164, 0, [(2,2,32)], [(S_W,4)], vt=2)
        self.aff(165, L_OL, [(0,6,4)], [(S_W,OLS)], vt=2)
        self.aff(166, L_OL, [(0,2,2*OLS),(2,4,16)], [(S_W,256)], vt=2)
        self.aff(167, WS_OP, [(4,2,16384),(2,2,64)], [(S_HKV,65536),(S_CH,2048),(S_W,256),(S_B,16)], vt=2)
        def cnt_add(off):
            a(f"""
            s_mov_b64 exec, 1
            ds_add_u32 v163, v161 offset:{off}
            s_mov_b64 exec, -1
            """)
        if X == "m": self.lds_wait(L_CNT+24, 4, 163, 162, sleep=2)
        if h:
            for i in range(o.trick):
                a(f"s_waitcnt vmcnt({o.trickd-1})")
                a(loads[first]); first += 1
            self.lds_wait(L_CNT+o.pauseoff, o.pausecnt, 163, 162, sleep=2)
            if o.htrigq < first: cnt_add(L_CNT+20)

        def step(n, wait=True):
            if wait and n < 32 - o.tailfree and n >= dn(n): a(f"s_waitcnt vmcnt({dn(n)-1})")
            a(loads[n])
            if n == 16 and o.gpf: self.aff(4, 0, [(4,2,3584),(0,4,32)], [(11,32*3584),(S_W,4*3584),(10,128)], vt=2)
            if n == o.gpf: a(gpf)
            if n == (o.ftrigw if X == "f" else o.trigw): cnt_add(L_CNT+12)
            if n == o.trigf: cnt_add(L_CNT+16)
            if n == (o.ftrigq if X == "f" else o.htrigq if h else o.trigq): cnt_add(L_CNT+20)
            if n == o.trigs: cnt_add(L_CNT+28)
            if o.ml and X != "f" and n == (o.trigmh if h else o.trigm): cnt_add(L_CNT+44)
            if n == o.trigp or (o.trigh and n == o.trigh): cnt_add(L_CNT+32)
            if n in (4, 8, 12, 16, 24, 28): self.stamp({4:6,8:7,12:8,16:9,24:10,28:11}[n])
        N0 = min(n for n in range(16, 32) if n - dn(n) >= 15)
        chk = [n for n in range(max(N0, o.nq), 31) if (n - N0) % o.chkstep == 0]
        rd = f"ds_read_b32 v162, v163 offset:{L_CNT+8}"
        for n in range(first, 32):
            step(n)
            if n in chk:
                a(f"""
                s_waitcnt lgkmcnt(0)
                v_readfirstlane_b32 s{S_T0}, v162
                s_cmp_ge_u32 s{S_T0}, 4
                s_cbranch_scc1 L{X}_qk{n}
                """)
            if n + 1 in chk: a(rd)
        self.stamp(2)
        a(f"s_mov_b32 s{S_N}, 32")
        self.lds_wait(L_CNT+8, 4, 163, 162, sleep=0)
        a.label(f"L{X}_QK")
        self.stamp(1)
        a(f"""
        ds_read_b128 v[0:3], v6 offset:{L_QF}
        ds_read_b32 v162, v163 offset:{L_FLAG}
        s_waitcnt lgkmcnt(0)
        v_readfirstlane_b32 s{S_LOC}, v162
        """)
        for t in range(4):
            for u in range(4):
                a(f"v_mfma_f32_16x16x32_bf16 {q(dreg(t,u))}, {q(kreg(t,u))}, v[0:3], 0")
        self.flavor_masks(S_M+6, "0x11111111", "0x11111111")
        self.gettag(False)
        self.tagbytes()
        qp = {1: "[1,0,3,2]", 2: "[2,3,0,1]", 3: "[3,2,1,0]"}
        for t in range(4):
            for rho in range(4):
                w = 24 + t if rho == 0 else 27 + rho
                c = [dreg(t, x ^ rho) + x for x in range(4)]
                a(f"""
                v_cndmask_b32 v{w}, v{c[0]}, v{c[1]}, {sp(S_M)}
                v_cndmask_b32 v{w}, v{w}, v{c[2]}, {sp(S_M+2)}
                v_cndmask_b32 v{w}, v{w}, v{c[3]}, {sp(S_M+4)}
                """)
            for rho in range(1, 4):
                a(f"v_add_f32_dpp v{24+t}, v{27+rho}, v{24+t} quad_perm:{qp[rho]} row_mask:0xf bank_mask:0xf")
        self.round2(24, 25, 28); self.round2(26, 27, 29)
        a(f"s_mov_b32 s{S_T0}, {SCALE}")
        for t in range(4): a(f"v_mul_f32 v{24+t}, s{S_T0}, v{24+t}")
        self.round2(24, 25, 28); self.round2(26, 27, 29)
        a(f"""
        v_max3_f32 v28, v24, v25, v26
        v_max_f32 v28, v28, v27
        v_max_f32_dpp v28, v28, v28 quad_perm:[1,0,3,2] row_mask:0xf bank_mask:0xf
        v_max_f32_dpp v28, v28, v28 quad_perm:[2,3,0,1] row_mask:0xf bank_mask:0xf
        """)
        self.rows_allreduce("v_max_f32", 28, 29)
        a(f"""
        v_min_u32 v28, -2, v28
        ds_write_b32 v164, v28 offset:{L_MX}
        """)
        ex = o.qkextra
        rets = sorted({min(n + 1 + ex, 32) for n in chk} | {32}, reverse=True)
        for r in rets[:-1]:
            a(f"s_cmp_eq_u32 s{S_N}, {r}\ns_cbranch_scc1 L{X}_B{r}")
        for n in range(rets[-1], 32):
            if n in rets: a.label(f"L{X}_B{n}")
            step(n)
        if chk: self.stamp(2)
        a.label(f"L{X}_B32")
        a(f"s_waitcnt vmcnt({8+pf})")
        self.transpose(96, 32)
        L = a.newlabel("Lb3"); E = a.newlabel("Lb3x")
        a(f"""
        s_mov_b32 s{S_TMO}, {TMO*8}
        {L}:
        ds_read_b128 v[8:11], v7 offset:{L_MX}
        ds_read_b128 v[12:15], v7 offset:{L_MX+16}
        s_sub_u32 s{S_TMO}, s{S_TMO}, 1
        s_cbranch_scc1 {E}
        s_waitcnt lgkmcnt(0)
        v_max3_u32 v16, v8, v9, v10
        v_max3_u32 v17, v11, v12, v13
        v_max3_u32 v16, v16, v14, v15
        v_max_u32 v16, v16, v17
        v_cmp_eq_u32 vcc, -1, v16
        s_cbranch_vccnz {L}
        {E}:
        """)
        self.stamp(3)
        a(f"""
        s_mov_b32 s{S_T0}, {LOG2E}
        s_waitcnt lgkmcnt(0)
        v_max3_f32 v8, v8, v9, v10
        v_max3_f32 v12, v11, v12, v13
        v_max3_f32 v8, v8, v14, v15
        v_max_f32 v8, v8, v12
        v_mul_f32 v162, s{S_T0}, v8
        """)
        for t in range(4): a(f"v_fma_f32 v{24+t}, v{24+t}, s{S_T0}, -v162")
        for t in range(4): a(f"v_exp_f32 v{24+t}, v{24+t}")
        for t in range(4):
            a(f"v_mov_b32_dpp v{28+t}, v{24+t} quad_perm:[1,1,3,3] row_mask:0xf bank_mask:0xf")
        for t in range(4):
            a(f"v_cvt_pk_bf16_f32 v{8+2*t}, v{24+t}, v{28+t}")
        for t in range(4):
            a(f"v_mov_b32_dpp v{9+2*t}, v{8+2*t} quad_perm:[2,2,2,2] row_mask:0xf bank_mask:0xf")
        for c in range(8):
            a(f"v_mfma_f32_16x16x32_bf16 {q(96+4*c)}, v[8:11], {q(32+4*c)}, 0")
        a(f"""
        v_add_f32 v24, v24, v25
        v_add_f32 v26, v26, v27
        v_add_f32 v24, v24, v26
        v_add_f32_dpp v24, v24, v24 quad_perm:[1,0,3,2] row_mask:0xf bank_mask:0xf
        v_add_f32_dpp v24, v24, v24 quad_perm:[2,3,0,1] row_mask:0xf bank_mask:0xf
        """)
        self.rows_allreduce("v_add_f32", 24, 25)
        a(f"""
        v_min_u32 v24, -2, v24
        v_mov_b32 v31, 0xff
        s_waitcnt vmcnt({4+pf})
        """)
        self.transpose_pair(128, 64, 0, 4)
        self.transpose_pair(128, 64, 1, 4)
        a(f"s_waitcnt vmcnt({2+pf})")
        self.transpose_pair(128, 64, 2, 4)
        a(f"s_waitcnt vmcnt({pf})")
        self.stamp(4)
        if o.gpf == 32: a(gpf)
        self.transpose_pair(128, 64, 3, 4)
        for c in range(8):
            a(f"v_mfma_f32_16x16x32_bf16 {q(96+4*c)}, v[12:15], {q(64+4*c)}, {q(96+4*c)}")
        if (o.ftrigw if X == "f" else o.trigw) == 32: cnt_add(L_CNT+12)
        if o.trigs == 32: cnt_add(L_CNT+28)
        if o.ml and X != "f" and (o.trigmh if h else o.trigm) == 32: cnt_add(L_CNT+44)
        if o.trigp == 32: cnt_add(L_CNT+32)
        if o.trigf == 32: cnt_add(L_CNT+16)
        for c in range(8):
            a(f"ds_write_b32 v165, v{96+4*c} offset:{c*256}")
        a(f"ds_write_b32 v164, v24 offset:{L_LS}")
        L = a.newlabel("Lb4"); E = a.newlabel("Lb4x")
        a(f"""
        s_mov_b32 s{S_TMO}, {TMO*8}
        {L}:
        ds_read_b128 v[16:19], v7 offset:{L_LS}
        ds_read_b128 v[20:23], v7 offset:{L_LS+16}
        ds_read_b128 v[8:11], v166
        ds_read_b128 v[12:15], v166 offset:{OLS}
        s_sub_u32 s{S_TMO}, s{S_TMO}, 1
        s_cbranch_scc1 {E}
        s_waitcnt lgkmcnt(2)
        v_max3_u32 v24, v16, v17, v18
        v_max3_u32 v25, v19, v20, v21
        v_max3_u32 v24, v24, v22, v23
        v_max_u32 v24, v24, v25
        v_cmp_eq_u32 vcc, -1, v24
        s_waitcnt lgkmcnt(0)
        s_cbranch_vccnz {L}
        {E}:
        s_waitcnt lgkmcnt(0)
        """)
        self.quad_reduce(8, 12)
        self.flavor_store(S_M+6, f"buffer_store_dwordx4 v[8:11], v167, {sp(SRD_WS,4)}, 0 offen")
        self.stamp(5)
        if o.gpf == 33: a(gpf)
        if (o.ftrigw if X == "f" else o.trigw) == 33: cnt_add(L_CNT+12)
        if o.trigs == 33: cnt_add(L_CNT+28)
        if o.ml and X != "f" and (o.trigmh if h else o.trigm) == 33: cnt_add(L_CNT+44)
        if o.trigp == 33: cnt_add(L_CNT+32)
        if o.trigf == 33: cnt_add(L_CNT+16)
        a(f"""
        s_cmp_lg_u32 s{S_W}, 7
        s_cbranch_scc1 L{X}_send
        v_pk_add_f32 v[16:17], v[16:17], v[18:19]
        v_pk_add_f32 v[20:21], v[20:21], v[22:23]
        s_and_b32 s{S_M+6}, s{S_M+6}, 0xffff
        v_pk_add_f32 v[16:17], v[16:17], v[20:21]
        s_mov_b32 s{S_M+7}, 0
        s_and_b32 s{S_M+8}, s{S_M+8}, 0xffff
        v_add_f32 v163, v16, v17
        s_mov_b32 s{S_M+9}, 0
        v_mov_b32 v164, s{S_TAG}
        """)
        self.flavor_store(S_M+6, f"buffer_store_dwordx3 v[162:164], v160, {sp(SRD_WS,4)}, 0 offen")
        a.label(f"L{X}_send")
        if o.hpf and X != "f":
            a(f"""
            s_mov_b64 exec, -1
            s_add_u32 s{S_T0}, s{S_IDX}, 4
            s_and_b32 s{S_T0}, s{S_T0}, 31
            s_cmp_lt_u32 s{S_T0}, 8
            s_cbranch_scc0 L{X}_nopf
            s_bitcmp1_b32 s{S_T0}, 0
            s_cselect_b32 s12, s{S_WG}, s{S_WU}
            s_cselect_b32 s13, s{S_WG+1}, s{S_WU+1}
            s_mov_b32 s14, {512*3584}
            s_mov_b32 s15, 0x20000
            s_lshr_b32 s{S_T0}, s{S_T0}, 1
            s_mul_i32 s10, s{S_HKV}, 7
            s_add_u32 s10, s10, 1
            s_lshr_b32 s10, s10, 1
            v_mbcnt_lo_u32_b32 v0, -1, 0
            v_mbcnt_hi_u32_b32 v0, -1, v0
            """)
            if o.hpf == 1: self.aff(4, 0, [(2,4,3584),(0,2,128)], [(S_T0,128*3584),(S_W,16*3584),(10,128)], vt=2)
            else:
                a(f"s_and_b32 s11, s{S_T0}, 1\ns_lshr_b32 s{S_T0}, s{S_T0}, 1\ns_mov_b32 exec_hi, 0")
                self.aff(4, 128*3584, [(2,3,3584),(0,2,128)], [(S_T0,256*3584),(11,64*3584),(S_W,8*3584),(10,128)], vt=2)
            a(f"""
            buffer_load_dword v4, v4, s[12:15], 0 offen {o.ppf}
            s_waitcnt vmcnt(0)
            L{X}_nopf:
            """)
        if o.dirty:
            a(f"""
            s_mov_b64 exec, -1
            s_lshl_b32 s{S_T0}, s2, 3
            s_add_u32 s{S_T0}, s{S_T0}, s{S_W}
            s_mul_i32 s{S_T0}, s{S_T0}, {1024*o.dirty}
            s_add_u32 s{S_T0}, s{S_T0}, 0x400000
            v_mbcnt_lo_u32_b32 v1, -1, 0
            v_mbcnt_hi_u32_b32 v1, -1, v1
            v_lshlrev_b32 v1, 4, v1
            """)
            for i in range(o.dirty): a(f"buffer_store_dwordx4 v[8:11], v1, {sp(SRD_WS,4)}, s{S_T0} offen offset:{1024*i} {o.dirtypol}")
        self.flush_stamps(12, 1, o.swave)
        self.lite_end()
        if o.gpf: a("s_waitcnt vmcnt(0)")
        a("s_endpgm")
        for n in chk:
            a.label(f"L{X}_qk{n}")
            m = n + 1
            while m < min(n + 1 + ex, 32):
                step(m, wait=False); m += 1
            a(f"s_mov_b32 s{S_N}, {m}\ns_branch L{X}_QK")

    def aux(self):
        a = self.a; o = self.o
        ror8 = "row_ror:8 row_mask:0xf bank_mask:0xf"
        ror4 = "row_ror:4 row_mask:0xf bank_mask:0xf"
        WS = sp(SRD_WS, 4)
        VZ = 167
        self.PT = 24
        if o.prio: a(f"s_setprio {o.prio}")
        if o.cpf: a(f"""
        s_getpc_b64 {sp(S_M)}
        L_pc:
        s_lshl2_add_u32 s{S_T2}, s{S_IDX}, s{S_WAVE}
        s_min_u32 s{S_T2}, s{S_T2}, (L_last-L_pc)/256-1
        s_lshl_b32 s{S_T2}, s{S_T2}, 8
        v_lshl_add_u32 v3, v0, 2, s{S_T2}
        global_load_dword v162, v3, {sp(S_M)}
        """)
        a(f"""
        s_cmp_eq_u32 s{S_WAVE}, 1
        s_cselect_b32 s{S_T0}, -1, 0
        s_mul_i32 s{S_T1}, s{S_WAVE}, {L_MX}
        v_mov_b32 v1, s{S_T0}
        v_lshl_add_u32 v2, v0, 2, s{S_T1}
        ds_write_b32 v2, v1
        s_and_b32 s{S_KH}, s{S_IDX}, 1
        s_sub_u32 s{S_J}, s{S_IDX}, 4
        s_cmp_lt_u32 s{S_J}, 16
        s_cbranch_scc0 L_MH
        s_lshr_b32 s{S_T0}, s{S_J}, 1
        s_lshl3_add_u32 s3, s{S_HKV}, s{S_T0}
        """)
        self.aff(2, 0, [(3,3,8*8192),(0,3,16)], [(3,128),(S_WAVE,64*8192),(S_KH,256*8192)])
        self.srd_hi(SRD_B, 512*8192)
        a(f"s_movk_i32 s{S_T1}, 8192\ns_waitcnt lgkmcnt(0)")
        self.srd_lo(SRD_B, S_WQ)
        self.tile_loads_k(2, SRD_B, 8192, S_T1, 32, o.wpol)
        a(f"""
        s_load_dword s{S_EPOCH}, {sp(S_WS)}, {WS_EPOCH}
        s_barrier
        s_branch L_Q
        """)
        self.stream_early()
        if (o.mh or o.ml): a(f"""
        L_MH:
        s_cmp_lt_u32 s{S_IDX}, 4
        s_cbranch_scc0 L_HF
        s_lshr_b32 s{S_T0}, s{S_IDX}, 1
        s_lshl3_add_u32 s3, s{S_T0}, s{S_HKV}
        """)
        else: a(f"""
        L_MH:
        s_cmp_lt_u32 s{S_IDX}, {NEARLY}
        s_cbranch_scc0 L_H
        s_sub_u32 s{S_T0}, s{S_IDX}, 16
        s_cmp_lt_u32 s{S_IDX}, 4
        s_cselect_b32 s{S_T0}, s{S_IDX}, s{S_T0}
        s_lshr_b32 s{S_T0}, s{S_T0}, 1
        s_lshl3_add_u32 s3, s{S_T0}, s{S_HKV}
        """)
        if o.msw:
            a(f"s_mov_b32 s{S_T0}, s3")
            for x, y in ((19,41),(27,45),(35,47)):
                a(f"s_cmp_eq_u32 s{S_T0}, {x}\ns_cselect_b32 s3, {y}, s3\ns_cmp_eq_u32 s{S_T0}, {y}\ns_cselect_b32 s3, {x}, s3")
        self.aff(2, 0, [(3,3,8*6144),(0,3,16)], [(3,128),(S_WAVE,64*6144),(S_KH,256*6144)])
        self.aff(1, 0, [(0,6,8)], [(S_WAVE,1024),(S_KH,512)])
        self.srd_hi(SRD_B, 512*6144)
        self.srd_hi(SRD_A, 4096)
        a(f"s_movk_i32 s{S_T1}, 6144\ns_waitcnt lgkmcnt(0)")
        if o.abl & 1: a(f"""
        s_cmp_lt_u32 s{S_IDX}, 4
        s_cselect_b32 s{S_T1}, s{S_T1}, 0
        s_cselect_b32 s{S_T2}, -1, 0x70
        v_and_b32 v2, s{S_T2}, v2
        """)
        self.srd_lo(SRD_A, S_C)
        self.srd_lo(SRD_B, S_WM)
        a(f"buffer_load_dwordx2 v[8:9], v1, {sp(SRD_A,4)}, 0 offen {o.cpol}")
        self.tile_loads_k(2, SRD_B, 6144, S_T1, 32, o.mpol)
        a(f"""
        s_load_dword s{S_EPOCH}, {sp(S_WS)}, {WS_EPOCH}
        s_barrier
        L_M2:
        """)
        self.aux_common()
        self.aff(5, L_AV, [(0,6,8)], [(S_WAVE,AVS)])
        self.aff(7, WS_MOD, [(4,2,24576),(0,4,8)], [(3,512),(S_WAVE,128),(S_KH,98304)])
        self.mq_addr()
        self.gettag()
        self.xt_publish(allw=True)
        a("s_waitcnt vmcnt(9)")
        for i in range(2): self.unpack(8+i, 16+2*i, 17+2*i)
        a(f"s_mov_b32 s{S_T0}, {LOG2E ^ 0x80000000}")
        for i in range(4): a(f"v_mul_f32 v{24+i}, s{S_T0}, v{16+i}")
        for i in range(4): a(f"v_exp_f32 v{24+i}, v{24+i}")
        for i in range(4): a(f"v_add_f32 v{24+i}, 1.0, v{24+i}")
        for i in range(4): a(f"v_rcp_f32 v{24+i}, v{24+i}")
        for i in range(4): a(f"v_mul_f32 v{16+i}, v{16+i}, v{24+i}")
        for i in range(2): a(f"v_cvt_pk_bf16_f32 v{28+i}, v{16+2*i}, v{17+2*i}")
        a(f"ds_write_b64 v5, v[28:29]")
        self.lds_arrive(L_CNT)
        for e in range(4):
            a(f"s_waitcnt vmcnt({7-2*e})")
            self.transpose_pair(32, 96, e, 4)
        a(f"s_mov_b32 s{S_LOC}, 0")
        self.mq_gemv()
        a("s_branch L_pubd")

        def fsel():
            a(f"""
            s_sub_u32 s3, s{S_IDX}, 20
            s_bitcmp1_b32 s{S_HKV}, 0
            s_cselect_b32 s{S_T1}, {6 if o.fswap else 7}, {8 if o.fswap else 7}
            s_cselect_b32 s{S_T2}, {1 if o.fswap else 0}, 0
            s_cmp_ge_u32 s3, s{S_T1}
            """)
        def fprep():
            a(f"""
            s_mul_i32 s{S_T0}, s{S_HKV}, 7
            s_add_u32 s3, s3, s{S_T2}
            s_add_u32 s3, s3, s{S_T0}                   ; f
            s_and_b32 s12, s3, 6
            s_cmp_eq_u32 s12, 6
            s_cselect_b32 s10, {1 if o.fswap in (1, 3) else 0}, {1 if o.fswap == 1 else 0}
            s_and_b32 s10, s3, s10
            s_xor_b32 s11, s10, 1
            s_and_b32 s{S_T2}, s{S_WAVE}, 1
            s_lshr_b32 s{S_T3}, s{S_WAVE}, 1
            s_cmp_eq_u32 s{S_T2}, 0
            s_cselect_b32 s{SRD_A}, s{S_WG}, s{S_WU}
            s_cselect_b32 s{SRD_A+1}, s{S_WG+1}, s{S_WU+1}
            s_mov_b32 s{SRD_A+2}, {512*3584}
            s_mov_b32 s{SRD_A+3}, 0x20000
            """)
            self.srd(SRD_B, S_WD, 1792*1024)
            self.aff(2, 0, [(2,4,8*3584),(0,2,16)], [(S_T3,256*3584),(3,64),(10,128*3584)])
            self.aff(3, 0, [(4,2,8192),(0,4,16)], [(3,32768),(S_WAVE,256)])
        def fb1(X):
            if o.fswap == 3:
                a(f"s_cmp_eq_u32 s12, 6\ns_cbranch_scc0 L_fnt{X}")
                self.tile_loads(2, SRD_A, [j*3584 for j in range(8)], 32, "")
                a(f"s_branch L_f2{X}\nL_fnt{X}:")
            self.tile_loads(2, SRD_A, [j*3584 for j in range(8)], 32, o.fpol)
            a.label(f"L_f2{X}")
        def fwd():
            if o.abl & 2: a("v_and_b32 v3, 0x70, v3")
            self.tile_loads(3, SRD_B, [(0 if o.abl & 2 else j*1024) for j in range(8)], 96, o.wpol)
        if (o.mh or o.ml):
            a(f"""
            L_HF:
            s_cmp_lt_u32 s{S_IDX}, {NEARLY}
            s_cbranch_scc0 L_H
            s_waitcnt lgkmcnt(0)
            s_load_dword s{S_EPOCH}, {sp(S_WS)}, {WS_EPOCH}
            s_barrier
            """)
            if o.mh:
                fsel()
                a("s_cbranch_scc1 L_fe2")
                fprep()
            if o.fedly: a(f"s_sleep {o.fedly}")
            if o.mh & 1: fb1("e")
            if o.mh & 2: fwd()
            a.label("L_fe2")
            self.aux_common()
            self.gettag()
            self.xt_publish()
            a("s_branch L_qp")
        a.label("L_H")
        self.aff(1, 0, [(0,6,4)], [(S_B,1024),(S_WAVE,256)])
        a(f"""
        v_xor_b32 v2, 256, v1
        v_xor_b32 v3, 512, v1
        v_xor_b32 v4, 768, v1
        s_waitcnt lgkmcnt(0)
        """)
        self.srd(SRD_A, S_X, 4096)
        for i in range(4): a(f"buffer_load_dword v{8+i}, v{1+i}, {sp(SRD_A,4)}, 0 offen {o.cpol}")
        a(f"s_load_dword s{S_EPOCH}, {sp(S_WS)}, {WS_EPOCH}")
        HR = 32
        if o.mh:
            HR = 64
            a(f"""
            s_barrier
            s_sub_u32 s{S_T0}, s{S_IDX}, 26
            s_lshl3_add_u32 s3, s{S_T0}, s{S_HKV}
            """)
            self.aff(1, 0, [(0,6,16)], [(S_WAVE,1024)])
            self.srd_lo(SRD_A, S_C)
            self.srd(SRD_B, S_WM, 512*6144)
            a(f"buffer_load_dwordx4 v[12:15], v1, {sp(SRD_A,4)}, 0 offen {o.cpol}")
            self.aff(2, 0, [(3,3,8*6144),(0,3,16)], [(3,128),(S_WAVE,64*6144)])
            a(f"s_movk_i32 s{S_T1}, 6144\nv_add_u32 v3, {256*6144}, v2")
            self.tile_loads_k(2, SRD_B, 6144, S_T1, 32, o.wpol)
            self.tile_loads_k(3, SRD_B, 6144, S_T1, 64, o.wpol)
        if o.hbar: a("s_barrier")
        self.aux_common()
        if not o.mh and not o.hbar: a("s_barrier")
        self.aff(164, WS_MOD, [(0,6,16)], [(S_B,24576),(S_WAVE,1024)])
        self.aff(163, WS_XT, [(0,5,8)], [(S_HKV,256)])
        self.aff(7, WS_HG, [(0,6,8)], [(S_HKV,8192),(S_B,2048),(S_WAVE,512)])
        self.gettag()
        if o.mh:
            self.xt_publish(True, allw=True)
            nx = 1 + (1 if o.predirty else 0)
            a(f"s_waitcnt vmcnt({17+nx})")
        elif o.hbar == 2:
            self.xt_publish(True, allw=True)
            a(f"s_waitcnt vmcnt({1 + (1 if o.predirty else 0)})")
        else:
            self.xt_publish(True)
            a("s_waitcnt vmcnt(0)")
        for i in range(4): self.unpack(8+i, 128+2*i, 129+2*i)
        self.layernorm(128, 136)
        if o.mh:
            self.aff(5, L_AV, [(0,6,16)], [(S_WAVE,AVS)])
            self.aff(162, WS_MOD, [(4,2,24576),(0,4,8)], [(3,512),(S_WAVE,128)])
            self.mq_addr()
            a(f"v_add_u32 v161, 512, v4\ns_waitcnt vmcnt({16+nx})")
            for i in range(4): self.unpack(12+i, 148+2*i, 149+2*i)
            a(f"s_mov_b32 s{S_T0}, {LOG2E ^ 0x80000000}")
            for i in range(8): a(f"v_mul_f32 v{24+i}, s{S_T0}, v{148+i}")
            for i in range(8): a(f"v_exp_f32 v{24+i}, v{24+i}")
            for i in range(8): a(f"v_add_f32 v{24+i}, 1.0, v{24+i}")
            for i in range(8): a(f"v_rcp_f32 v{24+i}, v{24+i}")
            for i in range(8): a(f"v_mul_f32 v{148+i}, v{148+i}, v{24+i}")
            for i in range(4): a(f"v_cvt_pk_bf16_f32 v{28+i}, v{148+2*i}, v{149+2*i}")
            a(f"ds_write_b128 v5, v[28:31]")
            self.lds_arrive(L_CNT)
            a(f"s_waitcnt vmcnt({8+nx})")
            self.transpose(32, 96)
            a(f"s_waitcnt vmcnt(0)")
            self.transpose(64, 32)
        a(f"""
        s_mov_b32 s{S_T1}, 4096
        s_mov_b32 s{S_T2}, 98304
        s_mov_b32 s{S_T3}, {98304+4096}
        """)
        self.stamp(4)
        if o.dlyh: a(f"s_sleep {o.dlyh}")
        sets = []
        for k in range(o.pdm):
            R = HR + 20*k
            ld = [f"buffer_load_dwordx4 {q(R+4*i)}, v164, {WS}, {so_} offen {o.ppol}"
                  for i, so_ in enumerate(("0", f"s{S_T2}", f"s{S_T1}", f"s{S_T3}"))]
            ld.append(f"buffer_load_dwordx2 {q(R+16,2)}, v163, {WS}, 0 offen {o.ppol}")
            sets.append((ld, [R+1+2*i for i in range(8)]))
        def mdone(k):
            R = HR + 20*k
            for i in range(2):
                a(f"v_add_f32 v{136+i}, v{R+8+2*i}, v{R+12+2*i}")
                a(f"v_add_f32 v{138+i}, v{R+2*i}, v{R+4+2*i}")
            a(f"""
            v_cmp_ne_u32 vcc, s{S_LOC}, v{R+16}
            v_cmp_ne_u32 {sp(S_T2)}, s{S_TAG}, v{R+17}
            """)
        self.poll_pipe(sets, mdone, o.gapm, o.slm, rec=9)
        self.stamp(1)
        self.roundn(136, 24, 4)
        a(f"""
        s_or_b64 vcc, vcc, {sp(S_T2)}
        s_cselect_b32 s{S_LOC}, 0, {1 if o.local else 0}
        v_add_f32 v136, 1.0, v136
        v_add_f32 v137, 1.0, v137
        s_add_u32 s{S_T1}, s{S_TAG}, s{S_LOC}
        """)
        self.roundn(136, 24, 2)
        self.flavor_masks(S_M+8, "0x55555555", "0x55555555")
        self.modulate(128, 136, 138, 24, 16, n=2)
        a(f"""
        v_mov_b32 v17, s{S_T1}
        v_mov_b32 v19, s{S_T1}
        v_mov_b32_dpp v18, v16 quad_perm:[1,1,3,3] row_mask:0xf bank_mask:0xf
        """)
        self.flavor_store(S_M+8, f"buffer_store_dwordx4 v[16:19], v7, {WS}, 0 offen")
        if o.mh:
            self.stamp(2)
            self.lds_arrive(L_CNT+24)
            a(f"s_mov_b32 s{S_LOC}, 0\nv_mov_b32 v7, v162")
            self.mq_gemv([4, 161], [96, 32], 4)
            self.stamp(5)
            a("s_branch L_qp")
        else: a("s_branch L_pubd")

        a.label("L_Q")
        self.aux_common(False)
        a(f"""
        s_lshl_b32 s{S_CQ}, s{S_J}, 2
        s_add_u32 s{S_CQ}, s{S_CQ}, s{S_WAVE}        ; r
        s_lshr_b32 s{S_T0}, s{S_CQ}, 4
        s_and_b32 s{S_T1}, s{S_HKV}, 1
        s_and_b32 s{S_T2}, s{S_CQ}, 15
        """)
        self.aff(166, WS_DP, [(2,4,8192),(0,2,16)], [(S_T0,2048),(S_T1,1024),(S_T2,64)])
        self.aff(7, WS_QG, [(4,2,65536),(0,4,8)], [(3,512),(S_WAVE,128),(S_KH,32768)])
        self.aff(5, L_AV, [(0,6,8)], [(S_WAVE,AVS)])
        self.aff(164, WS_HG, [(0,6,16)], [(S_HKV,8192),(S_WAVE,2048),(S_KH,1024)])
        self.mq_addr()
        def preop():
            a(f"""
            s_mov_b64 exec, 0xff
            buffer_load_dword v26, v26, {WS}, 0 offen {o.prepol}
            s_mov_b32 exec_lo, 0xf
            buffer_load_dword v27, v27, {WS}, 0 offen {o.prepol}
            s_mov_b64 exec, -1
            """)
        def preap():
            a(f"""
            s_mov_b32 exec_hi, 0
            buffer_load_dword v28, v28, {WS}, 0 offen {o.prepol}
            s_mov_b64 exec, -1
            """)
        def opaddr():
            self.aff(26, WS_OP, [(0,3,128)], [(S_HKV,65536),(S_J,4096),(S_WAVE,1024)])
            self.aff(27, WS_ST, [(0,2,128)], [(S_HKV,2048),(S_WAVE,512)])
        def apaddr():
            self.aff(28, WS_AP, [(0,5,8192)], [(S_CQ,128)])
        if o.preop == 4: opaddr(); preop()
        if o.preap == 4: apaddr(); preap()
        self.gettag()
        self.xt_publish(o.predirty == 1)
        a("s_waitcnt vmcnt(0)")
        self.transpose(32, 96)
        if o.predirty == 2: self.predirty()
        if o.dlyq: a(f"s_sleep {o.dlyq}")
        if o.trigh: self.lds_wait(L_CNT+32, 1, VZ, 1, sleep=4)
        sets = [([f"buffer_load_dwordx4 {q(32+4*k)}, v164, {WS}, 0 offen {o.ppol}"], [33+4*k, 35+4*k]) for k in range(o.pdh)]
        def hdone(k):
            a(f"v_mov_b32 v{33+4*k}, v{34+4*k}\nds_write_b64 v5, {q(32+4*k,2)}")
        self.poll_pipe(sets, hdone, o.gaph, o.slh, rec=9, or1=True)
        self.lds_arrive(L_CNT)
        a(f"""
        v_and_b32 v24, 1, v24
        v_readfirstlane_b32 s{S_LOC}, v24
        """)
        self.mq_gemv()
        a.label("L_pubd")
        self.stamp(2)
        self.lds_arrive(L_CNT+24)

        a.label("L_qp")
        self.aff(4, WS_QG, [(0,6,16)], [(S_B,65536),(S_HKV,4096),(S_WAVE,1024)])
        self.aff(6, L_QF, [(0,6,4)], [(S_WAVE,256)])
        a(f"s_mov_b32 s{S_T2}, 32768")
        sets = []
        for k in range(o.pdq):
            R = 128 + 8*k
            sets.append(([f"buffer_load_dwordx4 {q(R)}, v4, {WS}, 0 offen {o.ppol}",
                          f"buffer_load_dwordx4 {q(R+4)}, v4, {WS}, s{S_T2} offen {o.ppol}"], [R+1, R+3, R+5, R+7]))
        def qdone(k):
            R = 128 + 8*k
            a(f"v_add_f32 v12, v{R}, v{R+4}\nv_add_f32 v13, v{R+2}, v{R+6}")
        if o.trigq: self.lds_wait(L_CNT+20, o.trigqn, VZ, 1, sleep=4)
        if o.qsel:
            L = a.newlabel("Lpq"); E = a.newlabel("Lpqx")
            a(f"""
            s_mov_b32 s{S_TMO}, {TMO}
            s_mov_b64 {sp(S_M)}, -1
            s_mov_b64 {sp(S_M+2)}, -1
            {L}:
            s_mov_b64 exec, {sp(S_M)}
            buffer_load_dwordx4 v[128:131], v4, {WS}, 0 offen {o.ppol}
            s_mov_b64 exec, {sp(S_M+2)}
            buffer_load_dwordx4 v[132:135], v4, {WS}, s{S_T2} offen {o.ppol}
            s_mov_b64 exec, -1
            s_sub_u32 s{S_TMO}, s{S_TMO}, 1
            s_cbranch_scc1 {E}
            s_waitcnt vmcnt(1)
            v_xor_b32 v24, s{S_TAG}, v129
            v_xor_b32 v25, s{S_TAG}, v131
            v_or_b32 v24, v24, v25
            v_cmp_lt_u32 {sp(S_M)}, 1, v24
            s_waitcnt vmcnt(0)
            v_xor_b32 v26, s{S_TAG}, v133
            v_xor_b32 v25, s{S_TAG}, v135
            v_or_b32 v25, v26, v25
            v_cmp_lt_u32 {sp(S_M+2)}, 1, v25
            s_or_b64 vcc, {sp(S_M)}, {sp(S_M+2)}
            s_cbranch_scc1 {L}
            {E}:
            s_waitcnt vmcnt(0)
            v_or_b32 v24, v24, v25
            """)
            qdone(0)
        else: self.poll_pipe(sets, qdone, o.gapq, o.slq, rec=10, or1=True)
        a(f"""
        v_and_b32 v24, 1, v24
        v_cvt_pk_bf16_f32 v12, v12, v13
        ds_write_b32 v{VZ}, v24 offset:{L_FLAG}
        ds_write_b32 v6, v12
        v_readfirstlane_b32 s{S_LOC}, v24
        """)
        self.lds_arrive(L_CNT+8)
        self.stamp(3)
        self.tagbytes()
        a(f"""
        s_cmp_lt_u32 s{S_J}, 16
        s_cbranch_scc1 L_Rpre
        """)
        if o.ml: a(f"""
        s_add_u32 s{S_T0}, s{S_IDX}, 4
        s_and_b32 s{S_T0}, s{S_T0}, 31
        s_cmp_lt_u32 s{S_T0}, 8
        s_cbranch_scc1 L_ML
        """)
        else: a(f"""
        s_cmp_lt_u32 s{S_IDX}, 4
        s_cbranch_scc1 L_S
        """)
        fsel()
        a(f"""
        s_waitcnt vmcnt(0)
        s_cbranch_scc1 L_fin2
        """)
        fprep()
        self.aff(161, 0, [(2,4,8*3584),(0,2,16)], [(S_T3,256*3584),(3,64),(11,128*3584)])
        self.aff(162, L_AV, [(0,2,AVS),(2,2,16),(4,2,64)], [(S_T3,512),(11,256)])
        self.aff(4, L_AV, [(0,2,AVS),(2,2,16),(4,2,64)], [(S_T3,512),(10,256)])
        self.aff(5, L_PART, [(2,2,PS),(0,2,16)], [(S_T3,4*PS),(S_T2,512)])
        self.aff(6, L_PART, [(4,2,2*PS),(0,4,64)], [(S_WAVE,16)])
        self.aff(7, WS_X1, [(0,6,16)], [(S_HKV,8192),(S_WAVE,2048)])
        self.aff(144, L_AV, [(0,6,8)], [(S_WAVE,AVS)])
        self.aff(145, L_ACT, [(4,2,64),(0,3,2)], [(S_WAVE,16)])
        self.aff(151, L_ACT, [(0,2,64),(4,2,16)], [])
        a(f"""
        v_mov_b32 v150, {L_ZERO}
        v_mov_b32 v160, 0xff
        v_bfe_u32 v8, v0, 2, 2
        """)
        for x in range(4):
            a(f"v_cmp_eq_u32 vcc, {x}, v8\nv_cndmask_b32 v{146+x}, v150, v151, vcc")
        self.aff(150, WS_DP, [(0,4,64),(4,2,16)], [(3,8192),(S_WAVE,2048)])
        self.aff(151, WS_SC, [(0,6,32)], [(S_HKV,16384),(S_WAVE,4096)])
        a(f"""
        s_mov_b32 s{S_M+12}, 0x00f0000f
        s_mov_b32 s{S_M+13}, 0xf0000f00
        """)
        if o.mh & 1: self.transpose_inplace(32, 1, 8)
        if o.mh & 2: self.transpose_inplace(96, 1, 8)
        if o.wdearly and o.mh != 3 and not o.wdl:
            self.lds_wait(L_CNT+12, 8, VZ, 1, sleep=2)
            if o.mh & 2: fb1("")
            else: fwd()
        self.lds_wait(L_CNT+16, 8, VZ, 1, sleep=2)
        if o.fdly: a(f"s_sleep {o.fdly}")
        self.stamp(4)
        if not o.wdearly and not o.mh & 2 and not o.wdl: fwd()
        if not o.mh or (o.mh == 2 and not o.wdearly): fb1("")
        self.tile_loads(161, SRD_A, [j*3584 for j in range(8)], 64, o.fpol2)
        XR = 24 if o.x1e else 8
        xl = [f"buffer_load_dwordx4 {q(XR)}, v7, {WS}, 0 offen {o.fpp}", f"buffer_load_dwordx4 {q(XR+4)}, v7, {WS}, 0 offen offset:1024 {o.fpp}"]
        nw = 8 if o.wdl else 0
        def ftr():
            if o.wdl: fwd()
            elif not o.mh:
                a("s_waitcnt vmcnt(20)")
                self.transpose_inplace(96, 1, 2)
            if o.mh != 3:
                a(f"s_waitcnt vmcnt({12+nw})")
                self.transpose_inplace(96 if o.mh == 1 else 32, 1, 2)
            a(f"s_waitcnt vmcnt({4+nw})")
            self.stamp(5)
            if o.x1e:
                for l in xl: a(l)
            self.transpose_inplace(64, 1, 2)
        self.poll_tagged([f"buffer_load_dwordx4 {q(8+4*z)}, v151, {WS}, 0 offen offset:{(z>>1)*2048+(z&1)*16} sc1" for z in range(4)],
                         [9+2*i for i in range(8)], pre=ftr, wait0=nw + (2 if o.x1e else 0))
        for z in range(4):
            self.unpack(8+4*z, 136+2*z, 137+2*z)
            self.unpack(10+4*z, 128+2*z, 129+2*z)
        self.stamp(6)
        self.poll_tagged(xl, [XR+1, XR+3, XR+5, XR+7], sleepy=False, issued=o.x1e)
        self.stamp(9)
        for i in range(4): self.unpack(XR+2*i, 152+2*i, 153+2*i)
        self.layernorm(152, 8)
        self.modulate(152, 128, 136, 8, 12)
        a(f"""
        ds_write_b64 v144, v[12:13]
        ds_write_b64 v144, v[14:15] offset:512
        s_waitcnt lgkmcnt(0)
        """)
        if o.fst: self.stamp(1)
        a("s_barrier")
        if o.fst: self.stamp(2)
        fill = [str(l).strip() for l in self.capture(lambda: self.transpose_inplace(96, 1, 2))] if o.wdl else []
        self.gemv_mfma(4, [4, 162], 5, 8, [32, 64], [128, 132, 136, 140, 16, 20, 24, 28], fill, o.ilw)
        a(f"""
        s_waitcnt lgkmcnt(0)
        """)
        if o.fst: self.stamp(7)
        a("s_barrier")
        if o.fst: self.stamp(8)
        self.gemv_reduce(6, 8)
        self.round1(8)
        a(f"""
        v_mov_b32 v11, 0x3d372713                    ; 0.044715
        v_mul_f32 v10, v8, v8
        v_mov_b32_dpp v9, v8 {ror8}
        v_fma_f32 v10, v10, v11, 1.0
        v_mul_f32 v10, v10, v8                       ; x + 0.044715 x^3
        v_mul_f32 v10, 0xc0135761, v10               ; -2*sqrt(2/pi)*log2e
        v_exp_f32 v10, v10
        v_add_f32 v10, 1.0, v10
        v_rcp_f32 v10, v10
        v_mul_f32 v8, v8, v10                        ; gelu
        """)
        self.round1(8)
        a(f"""
        v_mul_f32 v8, v8, v9
        v_cvt_pk_bf16_f32 v8, v8, v8
        s_mov_b32 exec_lo, 0x00ff00ff
        s_mov_b32 exec_hi, 0x00ff00ff
        ds_write_b16 v145, v8
        s_mov_b64 exec, -1
        s_waitcnt lgkmcnt(0)
        """)
        if o.fst: self.stamp(3)
        a("s_barrier")
        if o.fst: self.stamp(4)
        for x in range(4): a(f"ds_read_b128 {q(8+4*x)}, v{146+x}")
        for x in range(4):
            a(f"s_waitcnt lgkmcnt({3-x})")
            for hf in range(2):
                c = 4*hf + x
                a(f"v_mfma_f32_16x16x32_bf16 {q(128+4*hf)}, {q(8+4*x)}, {q(96+4*c)}, {'0' if x == 0 else q(128+4*hf)}")
        self.embed(128, 160)
        a(f"buffer_store_dwordx4 v[128:131], v150, {WS}, 0 offen sc1")
        self.embed(132, 160)
        a(f"buffer_store_dwordx4 v[132:135], v150, {WS}, 0 offen offset:1024 sc1")
        self.stamp(10)
        a("s_branch L_fin2")

        if o.ml:
            a(f"""
            L_ML:
            s_lshr_b32 s{S_T0}, s{S_T0}, 1
            s_lshl_b32 s{S_T0}, s{S_T0}, 2
            s_lshr_b32 s{S_T0}, 0x4352, s{S_T0}
            s_and_b32 s{S_T0}, s{S_T0}, 15
            s_lshl3_add_u32 s3, s{S_T0}, s{S_HKV}
            """)
            self.aff(1, 0, [(0,6,8)], [(S_WAVE,1024),(S_KH,512)])
            self.srd(SRD_A, S_C, 4096)
            self.srd(SRD_B, S_WM, 512*6144)
            a(f"buffer_load_dwordx2 v[8:9], v1, {sp(SRD_A,4)}, 0 offen {o.cpol}")
            self.aff(2, 0, [(3,3,8*6144),(0,3,16)], [(3,128),(S_WAVE,64*6144),(S_KH,256*6144)])
            self.aff(5, L_AV, [(0,6,8)], [(S_WAVE,AVS)])
            self.aff(7, WS_MOD, [(4,2,24576),(0,4,8)], [(3,512),(S_WAVE,128),(S_KH,98304)])
            self.mq_addr()
            a("s_waitcnt vmcnt(0)")
            for i in range(2): self.unpack(8+i, 16+2*i, 17+2*i)
            a(f"s_mov_b32 s{S_T0}, {LOG2E ^ 0x80000000}")
            for i in range(4): a(f"v_mul_f32 v{24+i}, s{S_T0}, v{16+i}")
            for i in range(4): a(f"v_exp_f32 v{24+i}, v{24+i}")
            for i in range(4): a(f"v_add_f32 v{24+i}, 1.0, v{24+i}")
            for i in range(4): a(f"v_rcp_f32 v{24+i}, v{24+i}")
            for i in range(4): a(f"v_mul_f32 v{16+i}, v{16+i}, v{24+i}")
            for i in range(2): a(f"v_cvt_pk_bf16_f32 v{28+i}, v{16+2*i}, v{17+2*i}")
            a(f"ds_write_b64 v5, v[28:29]")
            self.lds_arrive(L_CNT+36)
            a(f"s_movk_i32 s{S_T1}, 6144")
            self.lds_wait(L_CNT+44, o.trigmn, VZ, 1, sleep=2)
            self.stamp(7)
            self.tile_loads_k(2, SRD_B, 6144, S_T1, 32, o.wpol)
            for e in range(4):
                a(f"s_waitcnt vmcnt({6-2*e})")
                self.transpose_pair(32, 96, e, 4)
            a(f"s_mov_b32 s13, s{S_LOC}\ns_mov_b32 s{S_LOC}, 0")
            self.mq_gemv(st=8, c0=36)
            self.stamp(9)
            a(f"""
            s_mov_b32 s{S_LOC}, s13
            s_cmp_lt_u32 s{S_IDX}, 4
            s_cbranch_scc0 L_fin2
            """)
        a.label("L_S")
        self.aff(4, WS_MOD + 1536*8, [(0,6,16)], [(S_B,24576),(S_WAVE,1024)])
        self.aff(7, WS_SC, [(0,6,16)], [(S_HKV,16384),(S_B,4096),(S_WAVE,1024)])
        self.flavor_masks(S_M+8, "-1", "-1")
        a(f"""
        v_add_u32 v5, 4096, v4
        s_mov_b32 s{S_T2}, 98304
        v_mov_b32 v17, s{S_TAG}
        v_mov_b32 v19, s{S_TAG}
        """)
        self.lds_wait(L_CNT+28, 8, VZ, 1, sleep=2)
        if o.sdly: a(f"s_sleep {o.sdly}")
        self.stamp(4)
        if o.mh:
            self.poll_tagged([f"buffer_load_dwordx4 {q(32+4*i)}, v{4+i}, {WS}, 0 offen sc1" for i in range(2)], [33+2*i for i in range(4)])
            self.stamp(5)
            a(f"""
            v_mov_b32 v10, v36
            v_mov_b32 v11, v38
            v_cvt_pk_bf16_f32 v16, v32, v34
            """)
        else:
            self.poll_tagged([f"buffer_load_dwordx4 {q(32+4*i)}, v{4+(i>>1)}, {WS}, {('0', 's%d' % S_T2)[i&1]} offen sc1" for i in range(4)],
                         [33+2*i for i in range(8)])
            self.stamp(5)
            a(f"""
            v_add_f32 v8, v32, v36
            v_add_f32 v9, v34, v38
            v_add_f32 v10, v40, v44
            v_add_f32 v11, v42, v46
            v_cvt_pk_bf16_f32 v16, v8, v9
            """)
        self.round2(10, 11, 12)
        a(f"""
        v_add_f32 v10, 1.0, v10
        v_add_f32 v11, 1.0, v11
        v_cvt_pk_bf16_f32 v18, v10, v11
        """)
        self.flavor_store(S_M+8, f"buffer_store_dwordx4 v[16:19], v7, {WS}, 0 offen")
        self.stamp(6)
        a("s_branch L_fin2")

        a.label("L_Rpre")
        self.srd(SRD_B, S_X, 4096)
        self.srd(SRD_A, S_WO, 4096*1024)
        a(f"""
        s_and_b32 s{S_T1}, s{S_J}, 3
        s_lshr_b32 s{S_T2}, s{S_J}, 2
        """)
        if o.wq: a(f"s_bfe_u32 s{S_T3}, s{S_J}, 0x10001\ns_xor_b32 s{S_T2}, s{S_T2}, s{S_T3}")
        self.aff(5, WS_ST, [(0,4,32)], [(S_HKV,2048),(S_T1,512)])
        if o.preop in (1, 2, 3): opaddr()
        if o.preop == 1: preop()
        if o.preap in (1, 2, 3): apaddr()
        if o.preap == 1: preap()
        self.aff(2, 0, [(4,1,65536),(5,1,1024),(0,4,16)], [(S_HKV,4*131072),(S_T1,131072),(S_T2,256),(S_WAVE,2048)])
        self.aff(4, WS_OP, [(2,2,4096),(4,2,128),(0,2,16)], [(S_HKV,65536),(S_T1,16384),(S_WAVE,512)])
        self.aff(6, L_PW, [(0,4,144),(4,2,16)], [(S_WAVE,PWS)])
        self.aff(7, L_PW, [(3,3,144),(0,3,16)], [(S_WAVE,8*144)])
        self.aff(3, WS_AP, [(0,6,16)], [(S_HKV,4*8192),(S_T1,8192),(S_T2,2048),(S_WAVE,1024)])
        self.aff(21, 0, [(4,2,1024),(0,3,2)], [(S_CQ,16)])
        self.aff(30, WS_MOD + 1024*8, [(4,2,24576),(0,3,8)] if o.mh else [(4,2,24576),(3,1,98304),(0,3,8)], [(S_CQ,64)])
        a(f"s_and_b32 s{S_T3}, s{S_HKV}, 1")
        self.aff(163, WS_AP, [(3,3,8192),(0,3,16)], [(S_CQ,128)])
        self.aff(164, WS_X1, [(4,2,2048),(2,1,16)], [(S_HKV,8192),(S_CQ,32)])
        self.aff(165, 0, [(4,2,1024)], [(S_CQ,16),(S_T3,8)])
        self.flavor_masks(S_M+8, "0x00110011", "0x00110011")
        a(f"s_movk_i32 s10, {1536*8}")
        if 3 in (o.preop, o.preap):
            self.lds_wait(L_CNT+28, 8, VZ, 1, sleep=2)
            if o.preop == 3: preop()
            if o.preap == 3: preap()
        self.lds_wait(L_CNT+12, 8, VZ, 1, sleep=2)
        self.stamp(4)
        if o.preop == 2: preop()
        if o.preap == 2: preap()
        self.tile_loads(2, SRD_A, [j*8192 for j in range(8)], 32, o.wpol)
        gl = [f"buffer_load_dwordx2 v[26:27], v30, {WS}, 0 offen sc1",
              f"buffer_load_dwordx2 v[28:29], v30, {WS}, s10 offen sc1"]
        def gfin():
            a(f"""
            v_lshlrev_b32 v160, 16, v160                ; x
            """)
            if o.mh: a("v_cvt_pk_bf16_f32 v2, v26, v28"); self.unpack(2, 161, 162)
            else:
                a(f"v_add_f32_dpp v161, v26, v26 {ror8}\nv_add_f32_dpp v162, v28, v28 {ror8}")
                self.round2(161, 162, 2)
        def wtr(k=3):
            for e in range(4):
                a(f"s_waitcnt vmcnt({k+6-2*e})")
                self.transpose_pair(32, 96, e, 4)
            for i in range(16): a(f"v_mov_b32 v{144+i}, 0")
        if not o.glate:
            a(f"buffer_load_ushort v160, v21, {sp(SRD_B,4)}, 0 offen")
            self.poll_tagged(gl, [27, 29], pre=wtr)
            gfin()
        elif o.wpe:
            a("v_mov_b32 v160, v21")
            for i in range(16): a(f"v_mov_b32 v{144+i}, 0")
            for e in range(4 - o.wpe):
                a(f"s_waitcnt vmcnt({6-2*e})")
                self.transpose_pair(32, 96, e, 4)
            if o.wpw: a(f"s_waitcnt vmcnt({2*o.wpe - o.wpw})")
        else:
            a("v_mov_b32 v160, v21")
            wtr(0)
        def wmid(nl):
            for e in range(4 - o.wpe, 4):
                a(f"s_waitcnt vmcnt({nl+6-2*e})")
                self.transpose_pair(32, 96, e, 4)
            self.stamp(9)
        if not o.rec and not o.wpe: self.stamp(9)
        if o.wgate: self.lds_wait(L_CNT+16, 8, VZ, 1, sleep=2)
        if o.wgate > 1: a(f"s_sleep {o.wgate}")
        a("v_mov_b32 v31, 0xff")
        groups = [([f"buffer_load_dwordx3 v[8:10], v5, {WS}, 0 offen {o.wpp}",
                    f"buffer_load_dwordx3 v[12:14], v5, {WS}, 0 offen offset:16 {o.wpp}"], [10, 14], None, "-1")]
        groups += [([f"buffer_load_dwordx4 {q(64+8*e+4*z)}, v4, {WS}, 0 offen offset:{e*2048+z*64} {o.wpp}" for z in range(2)],
                   range(64+8*e, 72+8*e), 128+8*e, "-1") for e in range(2)]
        self.poll_emb(groups, 16, 0, o.wgap, wmid if o.wpe else None)
        self.stamp(5)
        bc = "op_sel_hi:[1,0]"
        a(f"""
        v_max_f32 v16, v8, v12
        v_max_f32_dpp v16, v16, v16 {ror8}
        v_max_f32_dpp v16, v16, v16 {ror4}
        v_sub_f32 v8, v8, v16
        v_sub_f32 v10, v12, v16
        v_exp_f32 v8, v8
        v_exp_f32 v10, v10
        v_mul_f32 v16, v8, v9
        v_fmac_f32 v16, v10, v13
        """)
        for i in range(4): a(f"v_pk_mul_f32 {q(128+2*i,2)}, {q(128+2*i,2)}, v[8:9] {bc}")
        a(f"v_add_f32_dpp v16, v16, v16 {ror8}")
        for i in range(4): a(f"v_pk_fma_f32 {q(128+2*i,2)}, {q(136+2*i,2)}, v[10:11], {q(128+2*i,2)} op_sel_hi:[1,0,1]")
        a(f"v_add_f32_dpp v16, v16, v16 {ror4}")
        for i in range(8): a(f"v_add_f32_dpp v{128+i}, v{128+i}, v{128+i} {ror8}")
        a(f"v_rcp_f32 v16, v16")
        for i in range(8): a(f"v_add_f32_dpp v{128+i}, v{128+i}, v{128+i} {ror4}")
        for i in range(4): a(f"v_pk_mul_f32 {q(128+2*i,2)}, {q(128+2*i,2)}, v[16:17] {bc}")
        for x in range(4):
            m = 0x000f000f << (4*x)
            a(f"s_mov_b32 exec_lo, {m}\ns_mov_b32 exec_hi, {m}")
            for i in range(4): a(f"v_cvt_pk_bf16_f32 v{144+4*x+i}, v{128+2*i}, v{129+2*i}")
        a("s_mov_b64 exec, -1")
        for x in range(4):
            for hf in range(2):
                D = 16 + 4*hf
                a(f"v_mfma_f32_16x16x32_bf16 {q(D)}, {q(144+4*x)}, {q(96+4*(4*hf+x))}, {'0' if x == 0 else q(D)}")
        for hf in range(2): a(f"ds_write_b128 v6, {q(16+4*hf)} offset:{hf*64}")
        a(f"""
        s_mov_b32 s{S_T1}, {8*8192}
        s_mov_b32 s{S_T2}, {16*8192}
        s_mov_b32 s{S_T3}, {24*8192}
        s_cmp_ge_u32 s{S_WAVE}, 2
        s_waitcnt lgkmcnt(0)
        s_barrier
        s_cbranch_scc1 L_R
        """)
        for k in range(4): a(f"ds_read_b128 {q(8+4*k)}, v7 offset:{k*PWS}")
        a(f"""
        s_waitcnt lgkmcnt(2)
        v_pk_add_f32 v[8:9], v[8:9], v[12:13]
        v_pk_add_f32 v[10:11], v[10:11], v[14:15]
        s_waitcnt lgkmcnt(0)
        v_pk_add_f32 v[16:17], v[16:17], v[20:21]
        v_pk_add_f32 v[18:19], v[18:19], v[22:23]
        v_pk_add_f32 v[8:9], v[8:9], v[16:17]
        v_pk_add_f32 v[10:11], v[10:11], v[18:19]
        """)
        self.embed(8, 31)
        a(f"buffer_store_dwordx4 v[8:11], v3, {WS}, 0 offen sc1")
        self.stamp(6)
        a.label("L_R")
        so = ["0", f"s{S_T1}", f"s{S_T2}", f"s{S_T3}"]
        def rpoll():
            if o.rpipe:
                a(f"s_xor_b32 s{S_U}, s{S_TB}, 1")
                for t in range(4): a(f"v_mov_b32 v{32+4*t}, s{S_U}")
                self.poll_emb2([([f"buffer_load_dwordx4 {q(32+4*t)}, v163, {WS}, {so[t]} offen sc1"], range(32+4*t, 36+4*t), 48+4*t, "-1")
                            for t in range(4)], 16, o.rdly, o.rgap, o.rpipe)
                return
            self.poll_emb([([f"buffer_load_dwordx4 {q(32+4*t)}, v163, {WS}, {so[t]} offen sc1"], range(32+4*t, 36+4*t), 48+4*t, "-1")
                            for t in range(4)], 16, o.rdly, o.rgap)
        if not o.glate: rpoll()
        elif o.glate == 1:
            a(f"buffer_load_ushort v160, v160, {sp(SRD_B,4)}, 0 offen")
            self.poll_tagged(gl, [27, 29], pre=rpoll, st=12)
            gfin()
        else:
            a(f"buffer_load_ushort v160, v160, {sp(SRD_B,4)}, 0 offen")
            self.poll_tagged(gl, [27, 29], st=12)
            gfin()
            rpoll()
        self.stamp(7)
        self.sum4q(48, 8)
        self.scatter4(8)
        a(f"v_add_f32_dpp v8, v8, v8 {ror8}")
        self.round1(8)
        a("v_mul_f32 v8, v8, v161")
        self.round1(8)
        a("v_add_f32 v8, v8, v160")
        a(f"v_mov_b32 v160, v8")
        self.pack4(8)
        self.flavor_store(S_M+8, f"buffer_store_dwordx4 v[8:11], v164, {WS}, 0 offen")
        self.stamp(8)
        a(f"""
        s_lshr_b32 s{S_T0}, s{S_HKV}, 1
        s_cmp_lg_u32 s{S_T0}, s{S_WAVE}
        s_cbranch_scc1 L_fin2
        s_mov_b32 s{S_T1}, {16*8192}
        s_mov_b32 s{S_T2}, {32*8192}
        s_mov_b32 s{S_T3}, {48*8192}
        v_mov_b32 v76, s{S_TB}
        v_mov_b32 v77, s{S_TB+1}
        v_mov_b32 v78, s{S_TB+2}
        v_mov_b32 v79, s{S_TB+3}
        """)
        if o.opipe: a(f"""
        s_xor_b32 s{S_U}, s{S_TB}, 1
        v_mov_b32 v64, s{S_U}
        v_mov_b32 v68, s{S_U}
        v_mov_b32 v72, s{S_U}
        s_mov_b32 exec_hi, 0
        v_mov_b32 v76, s{S_U}
        s_mov_b32 exec_hi, -1
        """)
        a(f"""
        s_and_b32 s{S_U}, s{S_HKV}, 1
        s_lshl_b32 s{S_U}, s{S_U}, 2
        s_lshl_b32 s{S_U}, 0x00010001, s{S_U}
        """)
        self.round1(160)
        self.srd(SRD_A, S_OUT, 4096)
        og = [([f"buffer_load_dwordx4 {q(64+4*t)}, v166, {WS}, {so[t]} offen sc1"],
                         range(64+4*t, 68+4*t), 48+4*t, "-1" if t < 3 else ("-1", "0")) for t in range(4)]
        if o.opipe: self.poll_emb2(og, 16, o.odly, o.ogap, o.opipe)
        else: self.poll_emb(og, 16, o.odly, o.ogap)
        self.sum4q(48, 8)
        self.scatter4(8)
        a(f"""
        v_add_f32_dpp v8, v8, v8 {ror8}
        v_add_f32_dpp v8, v8, v8 {ror4}
        """)
        self.round1(8)
        a("v_mul_f32 v8, v8, v162")
        self.round1(8)
        a(f"""
        v_add_f32 v8, v8, v160
        v_mov_b32_dpp v9, v8 quad_perm:[1,1,3,3] row_mask:0xf bank_mask:0xf
        v_cvt_pk_bf16_f32 v8, v8, v9
        v_mov_b32_dpp v9, v8 quad_perm:[2,2,2,2] row_mask:0xf bank_mask:0xf
        s_mov_b32 exec_lo, s{S_U}
        s_mov_b32 exec_hi, s{S_U}
        buffer_store_dwordx2 v[8:9], v165, {sp(SRD_A,4)}, 0 offen
        s_cmp_lg_u32 s2, 32
        s_cbranch_scc1 L_fin
        s_mov_b64 exec, 1
        s_add_u32 s{S_T0}, s{S_EPOCH}, 1
        v_mov_b32 v1, {WS_EPOCH}
        v_mov_b32 v2, s{S_T0}
        buffer_store_dword v2, v1, {WS}, 0 offen sc1
        """)
        a.label("L_fin")
        self.stamp(11)
        if o.dbl:
            a(f"""
            s_memrealtime {sp(S_U)}
            s_waitcnt lgkmcnt(0)
            s_sub_u32 s{S_T0}, s{S_ST+2*o.dbl}, s{S_ST}
            s_min_u32 s{S_T0}, s{S_T0}, 20000
            s_mul_i32 s{S_T0}, s{S_T0}, {o.dblk}
            s_mov_b32 s{S_T1}, s{S_U}
            L_dbl:
            s_memrealtime {sp(S_U)}
            s_waitcnt lgkmcnt(0)
            s_sub_u32 s{S_T2}, s{S_U}, s{S_T1}
            s_cmp_lt_u32 s{S_T2}, s{S_T0}
            s_cbranch_scc1 L_dbl
            """)
        a.label("L_fin2")
        self.flush_stamps(12, 0, 0)
        self.lite_end()
        a.label("L_end")
        a("s_endpgm")

    def aux_common(self, z=True):
        self.srd(SRD_WS, S_WS, WS_SIZE)
        self.consts()
        self.a(f"""
        v_mov_b32 v167, 0
        s_getreg_b32 s{S_LOC}, hwreg(HW_REG_XCC_ID, 0, 4)
        """)
        if z: self.a(f"""
        v_mov_b32 v166, 0
        s_mov_b32 s{S_CQ}, 0
        """)

    def mq_gemv(self, va=[4], Bs=[96], st=1, c0=0):
        a = self.a; VZ = 167; WS = sp(SRD_WS, 4)
        self.lds_wait(L_CNT+c0, 4, VZ, 1, sleep=0)
        self.stamp(st)
        self.gemv_mfma(2, va, 165, 8, Bs, [128+4*c for c in range(8)])
        self.lds_arrive(L_CNT+c0+4)
        self.flavor_masks(S_M+8, "0x55555555", "0x55555555")
        a(f"""
        s_add_u32 s{S_T1}, s{S_TAG}, s{S_LOC}
        v_mov_b32 v17, s{S_T1}
        v_mov_b32 v19, s{S_T1}
        """)
        self.lds_wait(L_CNT+c0+4, 4, VZ, 1, sleep=0)
        self.gemv_reduce(6, 8)
        a(f"""
        v_mov_b32 v16, v8
        v_mov_b32_dpp v18, v8 quad_perm:[1,1,3,3] row_mask:0xf bank_mask:0xf
        """)
        self.flavor_store(S_M+8, f"buffer_store_dwordx4 v[16:19], v7, {WS}, 0 offen")

    def sum4q(self, R, D):
        self.a(f"""
        v_pk_add_f32 {q(R,2)}, {q(R,2)}, {q(R+4,2)}
        v_pk_add_f32 {q(R+2,2)}, {q(R+2,2)}, {q(R+6,2)}
        v_pk_add_f32 {q(R+8,2)}, {q(R+8,2)}, {q(R+12,2)}
        v_pk_add_f32 {q(R+10,2)}, {q(R+10,2)}, {q(R+14,2)}
        v_pk_add_f32 {q(D,2)}, {q(R,2)}, {q(R+8,2)}
        v_pk_add_f32 {q(D+2,2)}, {q(R+2,2)}, {q(R+10,2)}
        """)

    def mq_addr(self):
        self.aff(4, L_AV, [(0,2,AVS),(2,1,16),(4,2,32)], [(S_WAVE,128)])
        self.aff(165, L_PART, [(3,1,PS),(0,3,16)], [(S_WAVE,2*PS)])
        self.aff(6, L_PART, [(4,2,2*PS),(0,3,128),(3,1,16)], [(S_WAVE,32)])
        self.a(f"""
        s_mov_b32 s{S_M+12}, 0xff0000ff
        s_mov_b32 s{S_M+13}, 0
        """)

    def lds_arrive(self, off, wait=False):
        self.a(f"""
        v_mov_b32 v1, 1
        s_mov_b64 exec, 1
        ds_add_u32 v167, v1 offset:{off}
        s_mov_b64 exec, -1
        """)

    def build(self):
        if self.o.stamps:
            for k in range(1, 12):
                self.a(f"s_mov_b64 {sp(S_ST+2*k)}, 0")
        self.prologue()
        self.aux()
        self.stream()
        self.a.lines.append(".p2align 8")
        self.a.label("L_last")
        return self.a.text()


NEARLY = 28

def header():
    ref = open("adaLN_cond__sliding_block_cached__geglu_ffn__decode.s.ref").read().split("\n")
    out = []
    for l in ref:
        if l.startswith("; @launch"): break
        out.append(l)
    return "\n".join(out) + "\n"


def main():
    ap = argparse.ArgumentParser()
    ap.add_argument("out")
    ap.add_argument("--stamps", action="store_true")
    ap.add_argument("--lite", action="store_true")
    ap.add_argument("--dbl", type=int, default=0)
    ap.add_argument("--cpf", type=int, default=1)
    ap.add_argument("--mh", type=int, default=0)
    ap.add_argument("--hbar", type=int, default=0)
    ap.add_argument("--mpause", type=int, default=0)
    ap.add_argument("--mpol", default="nt")
    ap.add_argument("--trick", type=int, default=1)
    ap.add_argument("--trickd", type=int, default=1)
    ap.add_argument("--msw", type=int, default=2)
    ap.add_argument("--g3", type=int, default=1)
    ap.add_argument("--fast", type=int, default=4)
    ap.add_argument("--wq", type=int, default=1)
    ap.add_argument("--wgate", type=int, default=1)
    ap.add_argument("--wpe", type=int, default=0)
    ap.add_argument("--wpw", type=int, default=0)
    ap.add_argument("--hpf", type=int, default=0)
    ap.add_argument("--wdl", type=int, default=0)
    ap.add_argument("--x1e", type=int, default=1)
    ap.add_argument("--ilw", type=int, default=3)
    ap.add_argument("--ml", type=int, default=0)
    ap.add_argument("--trigm", type=int, default=28)
    ap.add_argument("--trigmh", type=int, default=26)
    ap.add_argument("--trigmn", type=int, default=8)
    ap.add_argument("--sdly", type=int, default=0)
    ap.add_argument("--dsched", default="")
    ap.add_argument("--fst", type=int, default=0)
    ap.add_argument("--rpipe", type=int, default=0)
    ap.add_argument("--opipe", type=int, default=0)
    ap.add_argument("--wpp", default="sc1")
    ap.add_argument("--fpp", default="sc1")
    ap.add_argument("--dlyq", type=int, default=0)
    ap.add_argument("--trigh", type=int, default=0)
    ap.add_argument("--slh", type=int, default=0)
    ap.add_argument("--qsel", type=int, default=0)
    ap.add_argument("--fedly", type=int, default=0)
    ap.add_argument("--preop", type=int, default=0)
    ap.add_argument("--preap", type=int, default=0)
    ap.add_argument("--glate", type=int, default=2)
    ap.add_argument("--rdly", type=int, default=0)
    ap.add_argument("--fswap", type=int, default=3)
    ap.add_argument("--fpol2", default="nt")
    ap.add_argument("--ftrigq", type=int, default=19)
    ap.add_argument("--htrigq", type=int, default=19)
    ap.add_argument("--ftrigw", type=int, default=31)
    ap.add_argument("--rgap", type=int, default=0)
    ap.add_argument("--odly", type=int, default=28)
    ap.add_argument("--ogap", type=int, default=0)
    ap.add_argument("--wgap", type=int, default=0)
    ap.add_argument("--gpf", type=int, default=0)
    ap.add_argument("--fdly", type=int, default=0)
    ap.add_argument("--align", type=int, default=12)
    ap.add_argument("--dirty", type=int, default=0)
    ap.add_argument("--dirtypol", default="")
    ap.add_argument("--dblk", type=int, default=2)
    ap.add_argument("--depth", type=int, default=3)
    ap.add_argument("--tailfree", type=int, default=0)
    ap.add_argument("--nq", type=int, default=0)
    ap.add_argument("--chkstep", type=int, default=1)
    ap.add_argument("--qkextra", type=int, default=1)
    ap.add_argument("--trigw", type=int, default=31)
    ap.add_argument("--trigf", type=int, default=33)
    ap.add_argument("--pdm", type=int, default=1)
    ap.add_argument("--pdq", type=int, default=2)
    ap.add_argument("--gapm", type=int, default=14)
    ap.add_argument("--gapq", type=int, default=14)
    ap.add_argument("--slm", type=int, default=0)
    ap.add_argument("--slq", type=int, default=0)
    ap.add_argument("--trigq", type=int, default=19)
    ap.add_argument("--trigqn", type=int, default=1)
    ap.add_argument("--rec", type=int, default=0)
    ap.add_argument("--ppol", default="sc1")
    ap.add_argument("--pause", type=int, default=8)
    ap.add_argument("--pauseoff", type=int, default=24)
    ap.add_argument("--pausecnt", type=int, default=4)
    ap.add_argument("--pdh", type=int, default=3)
    ap.add_argument("--gaph", type=int, default=12)
    ap.add_argument("--dlyh", type=int, default=16)
    ap.add_argument("--spread", type=int, default=1)
    ap.add_argument("--predirty", type=int, default=1)
    ap.add_argument("--kadbg", type=int, default=0)
    ap.add_argument("--prepol", default="sc1")
    ap.add_argument("--kalean", type=int, default=0)
    ap.add_argument("--trigs", type=int, default=33)
    ap.add_argument("--trigp", type=int, default=0)
    ap.add_argument("--ppf", default="")
    ap.add_argument("--fdepth", type=int, default=6)
    ap.add_argument("--ldepth", type=int, default=0)
    ap.add_argument("--fsw", type=int, default=0)
    ap.add_argument("--lsw", type=int, default=16)
    ap.add_argument("--depth2", type=int, default=4)
    ap.add_argument("--sw2", type=int, default=24)
    ap.add_argument("--mearly", type=int, default=0)
    ap.add_argument("--clrfirst", type=int, default=0)
    ap.add_argument("--wdearly", type=int, default=1)
    ap.add_argument("--phalf", type=int, default=0)
    ap.add_argument("--hdepth", type=int, default=6)
    ap.add_argument("--abl", type=int, default=0)
    ap.add_argument("--swave", type=int, default=4)
    ap.add_argument("--cpol", default="")
    ap.add_argument("--xtpol", default="")
    ap.add_argument("--prio", type=int, default=0)
    ap.add_argument("--kvpol", default="nt")
    ap.add_argument("--wpol", default="nt")
    ap.add_argument("--fpol", default="nt")
    ap.add_argument("--sleep", type=int, default=0)
    ap.add_argument("--local", type=int, default=1)
    ap.add_argument("--qg", type=lambda x: int(x,0), default=0x1C0000)
    o = ap.parse_args()
    global WS_QG
    WS_QG = o.qg
    body = G(o).build()
    try: hd = header()
    except Exception: hd = "; generated\n"
    open(o.out, "w").write(kernel_file([(KN, body, 168, 102, 168)], [(KN, 256, 768, LDS_BYTES)], header=hd).replace(".p2align 8\n.type", f".p2align {o.align}\n.type"))


if __name__ == "__main__":
    main()
```

```python
import sys, argparse
from asmlib import *

WS_EPOCH = 0x0
WS_XT = 0xE000
WS_OP = 0x20000
WS_ST = 0xA0000
WS_AP = 0xB0000
WS_DP = 0xF0000
WS_X1 = 0x160000
WS_HG = 0x170000
WS_MOD = 0x180000
WS_QG = 0x1C0000
WS_STAMP = 0x200000
WS_SC = 0x300000
WS_SIZE = 0x1000000
L_CNT = 0x0
L_ZERO = 0x40
L_FLAG = 0x80
L_QF = 0x100
L_MX = 0x500
L_LS = 0x580
L_ACT = 0x600
L_AV = 0x800
AVS = 1024 + 64
L_PART = 0x1A00
PS = 1024 + 16
L_OL = 0x4000
OLS = 2048 + 32
L_PW = 0x8400
PWS = 16*144
LDS_BYTES = L_PW + 4*PWS

LOG2E = 0x3FB8AA3B
SCALE = 0x3DB504F3
TMO = 40000

S_X, S_K, S_V, S_WQ, S_WO, S_WG, S_WU = 4, 6, 8, 10, 12, 16, 18
S_WD, S_C, S_WM, S_OUT, S_DBG, S_WS = 20, 22, 24, 26, 28, 30
S_WAVE, S_HKV, S_IDX, S_B, S_CH = 32, 33, 34, 35, 36
S_TAG, S_EPOCH, S_TMO = 37, 38, 39
SRD_WS = 40
SRD_A = 44
SRD_B = 48
S_PLO, S_PHI = 52, 53
S_T0, S_T1, S_T2, S_T3 = 54, 55, 56, 57
S_M = 58
S_HI = 72
S_LOC = 73
S_ST = 74
S_CQ, S_TGT = 98, 99
S_U = 100
S_KH, S_J = 28, 29
S_TB = 6
S_PC = 14


def q(r, n=4): return f"v[{r}:{r+n-1}]"
def sp(r, n=2): return f"s[{r}:{r+n-1}]"


class G:
    def __init__(self, o):
        self.o = o
        self.a = Asm()
        self.nst = 0

    def stamp(self, k):
        if self.o.stamps or (self.o.lite and k == 0) or (self.o.dbl and k in (0, self.o.dbl)):
            self.a(f"s_memrealtime {sp(S_ST+2*k)}")

    def lite_end(self):
        if not self.o.lite: return
        self.a(f"""
        s_memrealtime {sp(S_ST+2)}
        s_mov_b64 exec, 1
        s_lshl_b32 s{S_T0}, s2, 8
        s_lshl_b32 s{S_T1}, s{S_WAVE}, 4
        s_add_u32 s{S_T0}, s{S_T0}, s{S_T1}
        s_add_u32 s{S_T0}, s{S_T0}, {WS_STAMP}
        v_mov_b32 v1, s{S_T0}
        s_waitcnt lgkmcnt(0)
        v_mov_b32 v2, s{S_ST}
        v_mov_b32 v3, s{S_ST+1}
        v_mov_b32 v4, s{S_ST+2}
        v_mov_b32 v5, s{S_ST+3}
        buffer_store_dwordx4 v[2:5], v1, {sp(SRD_WS,4)}, 0 offen
        """)

    def flush_stamps(self, n, slot, cond_wave):
        if not self.o.stamps: return
        a = self.a
        a(f"""
        s_waitcnt lgkmcnt(0)
        s_mov_b64 exec, -1
        s_lshl_b32 s{S_T0}, s2, 11
        s_lshl_b32 s{S_T1}, s{S_WAVE}, 7
        s_add_u32 s{S_T0}, s{S_T0}, s{S_T1}
        s_add_u32 s{S_T0}, s{S_T0}, {WS_STAMP}
        v_mbcnt_lo_u32_b32 v1, -1, 0
        v_lshlrev_b32 v1, 2, v1
        v_add_u32 v1, s{S_T0}, v1
        v_mov_b32 v2, 0
        """)
        for k in range(2*n): a(f"v_writelane_b32 v2, s{S_ST+k}, {k}")
        a(f"""
        s_mov_b32 exec_hi, 0
        buffer_store_dword v2, v1, {sp(SRD_WS,4)}, 0 offen
        """)

    def srd(self, dst, ptr, size):
        self.srd_hi(dst, size); self.srd_lo(dst, ptr)

    def srd_hi(self, dst, size):
        self.a(f"""
        s_mov_b32 s{dst+2}, {size}
        s_mov_b32 s{dst+3}, 0x20000
        """)

    def srd_lo(self, dst, ptr):
        self.a(f"s_mov_b64 {sp(dst)}, {sp(ptr)}")

    def transpose(self, src, dst, nrows=8):
        a = self.a
        ne = nrows // 2
        for e in range(ne):
            self.transpose_pair(src, dst, e, ne)

    def transpose_pair(self, src, dst, e, ne):
        a = self.a
        for d in range(4):
            lo, hi = src + 8*e + d, src + 8*e + 4 + d
            a(f"v_perm_b32 v{dst + (2*d)*ne + e}, v{hi}, v{lo}, s{S_PLO}")
            a(f"v_perm_b32 v{dst + (2*d+1)*ne + e}, v{hi}, v{lo}, s{S_PHI}")

    def transpose_inplace(self, b, t0, t1):
        a = self.a
        R = lambda row, d: b + 4*row + d
        for e in range(4):
            a(f"v_perm_b32 v{t0}, v{R(2*e+1,e)}, v{R(2*e,e)}, s{S_PLO}")
            a(f"v_perm_b32 v{R(2*e+1,e)}, v{R(2*e+1,e)}, v{R(2*e,e)}, s{S_PHI}")
            a(f"v_mov_b32 v{R(2*e,e)}, v{t0}")
            for d in range(e+1, 4):
                a(f"v_perm_b32 v{t0}, v{R(2*e+1,d)}, v{R(2*e,d)}, s{S_PLO}")
                a(f"v_perm_b32 v{t1}, v{R(2*e+1,d)}, v{R(2*e,d)}, s{S_PHI}")
                a(f"v_perm_b32 v{R(2*e,d)}, v{R(2*d+1,e)}, v{R(2*d,e)}, s{S_PLO}")
                a(f"v_perm_b32 v{R(2*e+1,d)}, v{R(2*d+1,e)}, v{R(2*d,e)}, s{S_PHI}")
                a(f"v_mov_b32 v{R(2*d,e)}, v{t0}")
                a(f"v_mov_b32 v{R(2*d+1,e)}, v{t1}")

    def rows_allreduce(self, op, r, t):
        self.a(f"""
        v_mov_b32 v{t}, v{r}
        v_permlane16_swap_b32 v{r}, v{t}
        {op} v{r}, v{r}, v{t}
        v_mov_b32 v{t}, v{r}
        v_permlane32_swap_b32 v{r}, v{t}
        {op} v{r}, v{r}, v{t}
        """)

    def wave_allreduce2(self, r0, r1, t0, t1):
        a = self.a
        for m in ("quad_perm:[1,0,3,2]", "quad_perm:[2,3,0,1]", "row_half_mirror", "row_mirror"):
            a(f"v_add_f32_dpp v{r0}, v{r0}, v{r0} {m} row_mask:0xf bank_mask:0xf")
            a(f"v_add_f32_dpp v{r1}, v{r1}, v{r1} {m} row_mask:0xf bank_mask:0xf")
        for sw in ("16", "32"):
            a(f"""
            v_mov_b32 v{t0}, v{r0}
            v_mov_b32 v{t1}, v{r1}
            v_permlane{sw}_swap_b32 v{r0}, v{t0}
            v_permlane{sw}_swap_b32 v{r1}, v{t1}
            v_add_f32 v{r0}, v{r0}, v{t0}
            v_add_f32 v{r1}, v{r1}, v{t1}
            """)

    def scatter4(self, r):
        self.a(f"""
        v_permlane32_swap_b32 v{r}, v{r+2}
        v_permlane32_swap_b32 v{r+1}, v{r+3}
        v_add_f32 v{r}, v{r}, v{r+2}
        v_add_f32 v{r+1}, v{r+1}, v{r+3}
        v_permlane16_swap_b32 v{r}, v{r+1}
        v_add_f32 v{r}, v{r}, v{r+1}
        """)

    def unpack(self, pk, lo, hi):
        self.a(f"""
        v_and_b32 v{hi}, s{S_HI}, v{pk}
        v_lshlrev_b32 v{lo}, 16, v{pk}
        """) if lo == pk else self.a(f"""
        v_lshlrev_b32 v{lo}, 16, v{pk}
        v_and_b32 v{hi}, s{S_HI}, v{pk}
        """)

    def round2(self, r0, r1, t):
        self.a(f"v_cvt_pk_bf16_f32 v{t}, v{r0}, v{r1}")
        self.unpack(t, r0, r1)

    def round1(self, r):
        self.a(f"""
        v_cvt_pk_bf16_f32 v{r}, v{r}, v{r}
        v_and_b32 v{r}, s{S_HI}, v{r}
        """)

    def lds_sync(self, cnt, target, vt0, vt1):
        a = self.a
        L = a.newlabel("Lsync"); E = a.newlabel("Lsyncx")
        a(f"""
        v_mov_b32 v{vt0}, {cnt}
        v_mov_b32 v{vt1}, 1
        s_waitcnt lgkmcnt(0)
        s_mov_b64 exec, 1
        ds_add_u32 v{vt0}, v{vt1}
        s_mov_b64 exec, -1
        s_mov_b32 s{S_TMO}, {TMO*8}
        {L}:
        ds_read_b32 v{vt1}, v{vt0}
        s_sub_u32 s{S_TMO}, s{S_TMO}, 1
        s_cbranch_scc1 {E}
        s_waitcnt lgkmcnt(0)
        v_readfirstlane_b32 s{S_T0}, v{vt1}
        s_cmp_lt_u32 s{S_T0}, {target}
        s_cbranch_scc1 {L}
        {E}:
        s_waitcnt lgkmcnt(0)
        """)

    def poll_tagged(self, loads, tagregs, pre=None, sleepy=True, wait0=0, st=S_T0, issued=0):
        a = self.a
        L = a.newlabel("Lpt"); E = a.newlabel("Lptx"); C = a.newlabel("Lptc")
        a(f"s_mov_b32 s{S_TMO}, {TMO}")
        if pre:
            for l in loads: a(l)
            pre()
            a(f"s_waitcnt vmcnt({wait0})\ns_branch {C}")
        if issued: a(f"s_waitcnt vmcnt(0)\ns_branch {C}")
        a.label(L)
        if self.o.sleep and sleepy: a(f"s_sleep {self.o.sleep}")
        for l in loads: a(l)
        a(f"""
        s_sub_u32 s{S_TMO}, s{S_TMO}, 1
        s_waitcnt vmcnt(0)
        s_cbranch_scc1 {E}
        """)
        a.label(C)
        for i, r in enumerate(tagregs):
            if i == 0: a(f"v_cmp_ne_u32 vcc, s{S_TAG}, v{r}")
            else:
                a(f"v_cmp_ne_u32 {sp(st)}, s{S_TAG}, v{r}")
                a(f"s_or_b64 vcc, vcc, {sp(st)}")
        a(f"s_cbranch_scc1 {L}" if len(tagregs) > 1 else f"s_cbranch_vccnz {L}")
        a.label(E)

    def embed(self, r, vm, n=4):
        for i in range(n): self.a(f"v_bfi_b32 v{r+i}, v{vm}, s{S_TB+i%4}, v{r+i}")

    def poll_emb(self, groups, tmp, dly=0, gap=0, mid=None):
        a = self.a
        L = a.newlabel("Lps"); E = a.newlabel("Lpsx")
        a(f"s_mov_b32 s{S_TMO}, {TMO}")
        for i, (loads, regs, dst, init) in enumerate(groups):
            if isinstance(init, tuple):
                a(f"s_mov_b32 s{S_M+2*i}, {init[0]}\ns_mov_b32 s{S_M+2*i+1}, {init[1]}")
            else:
                a(f"s_mov_b64 {sp(S_M+2*i)}, {init}")
        if dly > gap: a(f"s_sleep {dly-gap}")
        C = a.newlabel("Lpsc")
        if mid:
            for g in groups:
                for l in g[0]: a(l)
            mid(sum(len(g[0]) for g in groups))
            a(f"s_branch {C}")
        a.label(L)
        if gap: a(f"s_sleep {gap}")
        for i, (loads, regs, dst, init) in enumerate(groups):
            a(f"s_mov_b64 exec, {sp(S_M+2*i)}")
            for l in loads: a(l)
        a(f"""
        s_mov_b64 exec, -1
        s_sub_u32 s{S_TMO}, s{S_TMO}, 1
        s_cbranch_scc1 {E}
        """)
        a.label(C)
        left = sum(len(g[0]) for g in groups)
        for i, (loads, regs, dst, init) in enumerate(groups):
            left -= len(loads)
            a(f"s_waitcnt vmcnt({left})")
            rs = list(regs)
            if dst is None:
                for k, r in enumerate(rs): a(f"v_xor_b32 v{tmp+k}, s{S_TAG}, v{r}")
                assert len(rs) == 2
                a(f"v_or_b32 v{tmp}, v{tmp}, v{tmp+1}\nv_cmp_ne_u32 {sp(S_M+2*i)}, 0, v{tmp}")
                continue
            for k, r in enumerate(rs): a(f"v_xor_b32 v{dst+k}, s{S_TB+k%4}, v{r}")
            rs = [dst+k for k in range(len(rs))]
            a(f"v_or3_b32 v{tmp}, v{rs[0]}, v{rs[1]}, v{rs[2]}")
            rs = rs[3:]
            while len(rs) >= 2:
                a(f"v_or3_b32 v{tmp}, v{tmp}, v{rs[0]}, v{rs[1]}"); rs = rs[2:]
            a(f"v_or_b32 v{tmp}, v{tmp}, v{rs[0]}")
            a(f"v_cmp_ne_u32_sdwa {sp(S_M+2*i)}, v{tmp}, v167 src0_sel:BYTE_0 src1_sel:DWORD")
        a(f"s_or_b64 vcc, {sp(S_M)}, {sp(S_M+2)}")
        for i in range(2, len(groups)):
            a(f"s_or_b64 vcc, vcc, {sp(S_M+2*i)}")
        a(f"""
        s_cbranch_scc1 {L}
        {E}:
        s_waitcnt vmcnt(0)
        """)


    def poll_emb2(self, groups, tmp, dly=0, gap=0, D=3):
        a = self.a
        L = a.newlabel("Lps"); E = a.newlabel("Lpsx")
        a(f"s_mov_b32 s{S_TMO}, {TMO*4}")
        for i, (loads, regs, dst, init) in enumerate(groups):
            if isinstance(init, tuple):
                a(f"s_mov_b32 s{S_M+2*i}, {init[0]}\ns_mov_b32 s{S_M+2*i+1}, {init[1]}")
            else:
                a(f"s_mov_b64 {sp(S_M+2*i)}, {init}")
        if dly: a(f"s_sleep {dly}")
        a.label(L)
        for i, (loads, regs, dst, init) in enumerate(groups):
            a(f"s_mov_b64 exec, {sp(S_M+2*i)}")
            for l in loads: a(l)
        n = sum(len(g[0]) for g in groups)
        a(f"""
        s_mov_b64 exec, -1
        s_sub_u32 s{S_TMO}, s{S_TMO}, 1
        s_cbranch_scc1 {E}
        """)
        if gap: a(f"s_sleep {gap}")
        a(f"s_waitcnt vmcnt({(D-1)*n})")
        for i, (loads, regs, dst, init) in enumerate(groups):
            rs = list(regs)
            if isinstance(dst, tuple):
                for (d, r) in dst: a(f"v_mov_b32 v{d}, v{r}")
                raise Exception("unsupported")
            for k, r in enumerate(rs): a(f"v_xor_b32 v{dst+k}, s{S_TB+k%4}, v{r}")
            rs = [dst+k for k in range(len(rs))]
            a(f"v_or3_b32 v{tmp}, v{rs[0]}, v{rs[1]}, v{rs[2]}")
            rs = rs[3:]
            while len(rs) >= 2:
                a(f"v_or3_b32 v{tmp}, v{tmp}, v{rs[0]}, v{rs[1]}"); rs = rs[2:]
            a(f"v_or_b32 v{tmp}, v{tmp}, v{rs[0]}")
            a(f"v_cmp_ne_u32_sdwa {sp(S_M+2*i)}, v{tmp}, v167 src0_sel:BYTE_0 src1_sel:DWORD")
        a(f"s_or_b64 vcc, {sp(S_M)}, {sp(S_M+2)}")
        for i in range(2, len(groups)):
            a(f"s_or_b64 vcc, vcc, {sp(S_M+2*i)}")
        a(f"""
        s_cbranch_scc1 {L}
        {E}:
        """)
    def capture(self, fn):
        old = self.a
        self.a = Asm(); self.a.nlabel = old.nlabel
        fn()
        lines = self.a.lines; old.nlabel = self.a.nlabel
        self.a = old
        return lines

    def aff(self, vd, base, lt=(), st=(), vt=1):
        a = self.a
        first = base == 0 and len(st) > 0
        if not first: a(f"s_mov_b32 s{S_U}, {base}")
        for (sr, mul) in st:
            d = S_U if first else S_U+1
            if mul == 1:
                a(f"s_mov_b32 s{S_U}, s{sr}" if first else f"s_add_u32 s{S_U}, s{S_U}, s{sr}")
            elif mul in (2, 4, 8, 16) and not first:
                a(f"s_lshl{mul.bit_length()-1}_add_u32 s{S_U}, s{sr}, s{S_U}")
            else:
                a(f"s_lshl_b32 s{d}, s{sr}, {mul.bit_length()-1}" if mul & (mul-1) == 0 else f"s_mul_i32 s{d}, s{sr}, {mul}")
                if not first: a(f"s_add_u32 s{S_U}, s{S_U}, s{S_U+1}")
            first = False
        acc = f"s{S_U}"
        if not lt: a(f"v_mov_b32 v{vd}, {acc}")
        for (sh, w, mul) in lt:
            if sh == 0 and w >= 6: src = "v0"
            else:
                src = f"v{vt}"
                if sh + w >= 6: a(f"v_lshrrev_b32 v{vt}, {sh}, v0")
                elif sh == 0: a(f"v_and_b32 v{vt}, {(1<<w)-1}, v0")
                else: a(f"v_bfe_u32 v{vt}, v0, {sh}, {w}")
            if mul & (mul-1) == 0:
                a(f"v_lshl_add_u32 v{vd}, {src}, {mul.bit_length()-1}, {acc}")
            else:
                a(f"v_mul_u32_u24 v{vt}, {mul}, {src}\nv_add_u32 v{vd}, {acc}, v{vt}")
            acc = f"v{vd}"

    def flavor_masks(self, dst, lo, hi):
        self.a(f"""
        s_cmp_lg_u32 s{S_LOC}, 0
        s_cselect_b32 s{dst}, {lo}, 0
        s_cselect_b32 s{dst+1}, {hi}, 0
        s_cselect_b32 s{dst+2}, 0, {lo}
        s_cselect_b32 s{dst+3}, 0, {hi}
        """)

    def flavor_store(self, m, ins):
        self.a(f"""
        s_mov_b64 exec, {sp(m)}
        {ins}
        s_mov_b64 exec, {sp(m+2)}
        {ins} sc1
        s_mov_b64 exec, -1
        """)

    def quad_reduce(self, r, r2):
        a = self.a
        for i in range(4): a(f"v_add_f32 v{r+i}, v{r+i}, v{r2+i}")
        for m in ("[1,0,3,2]", "[2,3,0,1]"):
            for i in range(4):
                a(f"v_add_f32_dpp v{r+i}, v{r+i}, v{r+i} quad_perm:{m} row_mask:0xf bank_mask:0xf")
        self.embed(r, 31)

    def tile_loads(self, va, srd, offs, dst, pol):
        a = self.a
        cur = None
        for i, off in enumerate(offs):
            hi, lo = off & ~4095, off & 4095
            if hi == 0: so = "0"
            else:
                if cur != hi: a(f"s_mov_b32 s{S_T0}, {hi}"); cur = hi
                so = f"s{S_T0}"
            a(f"buffer_load_dwordx4 {q(dst+4*i)}, v{va}, {sp(srd,4)}, {so} offen offset:{lo} {pol}")

    def tile_loads_k(self, va, srd, stride, sk, dst, pol, n=8):
        a = self.a
        for i in range(n):
            so = "0" if i == 0 else f"s{sk}" if i == 1 else f"s{S_T0}"
            if i == 2: a(f"s_lshl_b32 s{S_T0}, s{sk}, 1")
            elif i > 2: a(f"s_add_u32 s{S_T0}, s{S_T0}, s{sk}")
            a(f"buffer_load_dwordx4 {q(dst+4*i)}, v{va}, {sp(srd,4)}, {so} offen {pol}")

    def gemv_reduce(self, vr, R):
        a = self.a
        a(f"""
        ds_read_b128 {q(R)}, v{vr}
        ds_read_b128 {q(R+4)}, v{vr} offset:{PS}
        s_waitcnt lgkmcnt(0)
        v_pk_add_f32 {q(R,2)}, {q(R,2)}, {q(R+4,2)}
        v_pk_add_f32 {q(R+2,2)}, {q(R+2,2)}, {q(R+6,2)}
        """)
        self.scatter4(R)

    def pack4(self, R):
        self.a(f"""
        v_mov_b32_dpp v{R+1}, v{R} quad_perm:[1,1,3,3] row_mask:0xf bank_mask:0xf
        v_mov_b32 v{R+3}, s{S_TAG}
        v_cvt_pk_bf16_f32 v{R}, v{R}, v{R+1}
        v_mov_b32 v{R+1}, s{S_TAG}
        v_mov_b32_dpp v{R+2}, v{R} quad_perm:[2,2,2,2] row_mask:0xf bank_mask:0xf
        """)

    def round8(self, X, T):
        for i in range(4): self.a(f"v_cvt_pk_bf16_f32 v{T+i}, v{X+2*i}, v{X+2*i+1}")
        for i in range(4): self.unpack(T+i, X+2*i, X+2*i+1)

    def layernorm(self, X, T):
        a = self.a
        bc = "op_sel_hi:[1,0]"; ng = "neg_lo:[0,1] neg_hi:[0,1]"
        a(f"v_readfirstlane_b32 s{S_U}, v{X}")
        for i in range(4): a(f"v_pk_add_f32 {q(T+2*i,2)}, {q(X+2*i,2)}, {sp(S_U)} {bc} {ng}")
        a(f"""
        v_pk_add_f32 {q(T+8,2)}, {q(T,2)}, {q(T+2,2)}
        v_pk_mul_f32 {q(T+10,2)}, {q(T,2)}, {q(T,2)}
        v_pk_fma_f32 {q(T+10,2)}, {q(T+2,2)}, {q(T+2,2)}, {q(T+10,2)}
        v_pk_add_f32 {q(T,2)}, {q(T+4,2)}, {q(T+6,2)}
        v_pk_fma_f32 {q(T+10,2)}, {q(T+4,2)}, {q(T+4,2)}, {q(T+10,2)}
        v_pk_add_f32 {q(T+8,2)}, {q(T+8,2)}, {q(T,2)}
        v_pk_fma_f32 {q(T+10,2)}, {q(T+6,2)}, {q(T+6,2)}, {q(T+10,2)}
        v_add_f32 v{T+8}, v{T+8}, v{T+9}
        v_add_f32 v{T+10}, v{T+10}, v{T+11}
        v_permlane32_swap_b32 v{T+8}, v{T+10}
        v_add_f32 v{T+8}, v{T+8}, v{T+10}
        v_add_f32_dpp v{T+8}, v{T+8}, v{T+8} quad_perm:[1,0,3,2] row_mask:0xf bank_mask:0xf
        v_add_f32_dpp v{T+8}, v{T+8}, v{T+8} quad_perm:[2,3,0,1] row_mask:0xf bank_mask:0xf
        v_add_f32_dpp v{T+8}, v{T+8}, v{T+8} row_half_mirror row_mask:0xf bank_mask:0xf
        v_add_f32_dpp v{T+8}, v{T+8}, v{T+8} row_mirror row_mask:0xf bank_mask:0xf
        v_readlane_b32 s{S_T0}, v{T+8}, 0
        v_readlane_b32 s{S_T1}, v{T+8}, 16
        v_readlane_b32 s{S_T2}, v{T+8}, 32
        v_readlane_b32 s{S_T3}, v{T+8}, 48
        v_mov_b32 v{T+10}, 0x3b000000
        v_mul_f32 v{T+8}, s{S_T0}, v{T+10}
        v_mul_f32 v{T+9}, s{S_T2}, v{T+10}
        v_fmac_f32 v{T+8}, s{S_T1}, v{T+10}          ; E[d]
        v_fmac_f32 v{T+9}, s{S_T3}, v{T+10}          ; E[d^2]
        v_fma_f32 v{T+9}, -v{T+8}, v{T+8}, v{T+9}    ; var
        v_add_f32 v{T+8}, s{S_U}, v{T+8}             ; mean
        v_max_f32 v{T+9}, 0, v{T+9}
        v_cvt_pk_bf16_f32 v{T+10}, v{T+8}, v{T+9}
        v_lshlrev_b32 v{T+8}, 16, v{T+10}
        v_and_b32 v{T+10}, s{S_HI}, v{T+10}
        v_add_f32 v{T+10}, 0x3727c5ac, v{T+10}
        v_cvt_pk_bf16_f32 v{T+10}, v{T+10}, v{T+10}
        v_and_b32 v{T+10}, s{S_HI}, v{T+10}
        v_sqrt_f32 v{T+10}, v{T+10}
        """)
        for i in range(4): a(f"v_pk_add_f32 {q(X+2*i,2)}, {q(X+2*i,2)}, {q(T+8,2)} {bc} {ng}")
        a(f"""
        v_cvt_pk_bf16_f32 v{T+10}, v{T+10}, v{T+10}
        v_and_b32 v{T+10}, s{S_HI}, v{T+10}
        v_rcp_f32 v{T+10}, v{T+10}
        """)
        self.round8(X, T)
        for i in range(4): a(f"v_pk_mul_f32 {q(X+2*i,2)}, {q(X+2*i,2)}, {q(T+10,2)} {bc}")
        self.round8(X, T)

    def gettag(self, wait=True):
        if wait: self.a("s_waitcnt lgkmcnt(0)")
        self.a(f"""
        s_lshl_b32 s{S_TAG}, s{S_EPOCH}, 1
        s_add_u32 s{S_TAG}, s{S_TAG}, 0x9E3779B8
        """)

    def tagbytes(self):
        self.a(f"""
        s_mul_i32 s{S_TB+3}, s{S_EPOCH}, 0x01010101
        s_add_u32 s{S_TB+3}, s{S_TB+3}, 0x5B3C1E87
        s_and_b32 s{S_TB}, s{S_TB+3}, 0xff
        s_bfe_u32 s{S_TB+1}, s{S_TB+3}, 0x80008
        s_bfe_u32 s{S_TB+2}, s{S_TB+3}, 0x80010
        s_lshr_b32 s{S_TB+3}, s{S_TB+3}, 24
        """)

    def predirty(self):
        self.a(f"""
        s_mov_b32 exec_lo, 0x00010001
        s_mov_b32 exec_hi, 0x00010001
        buffer_load_dword v16, v7, {sp(SRD_WS,4)}, 0 offen {self.o.prepol}
        s_mov_b64 exec, -1
        """)

    def xt_publish(self, pre=False, allw=False):
        a = self.a
        if pre and self.o.predirty: self.predirty()
        L = a.newlabel("Lxt")
        if not allw: a(f"""
        s_cmp_lg_u32 s{S_WAVE}, 1
        s_cbranch_scc1 {L}
        """)
        self.aff(1, WS_XT, [], [(S_HKV,256),(S_IDX,8)])
        a(f"""
        v_mov_b32 v2, s{S_LOC}
        v_mov_b32 v3, s{S_TAG}
        s_mov_b64 exec, 1
        buffer_store_dwordx2 v[2:3], v1, {sp(SRD_WS,4)}, 0 offen {self.o.xtpol}
        s_mov_b64 exec, -1
        {L}:
        """)


    def ln_mod_fast(self, X, T, C1, SH, out):
        a = self.a
        bc = "op_sel_hi:[1,0]"; ng = "neg_lo:[0,1] neg_hi:[0,1]"
        a(f"v_readfirstlane_b32 s{S_U}, v{X}")
        for i in range(4): a(f"v_pk_add_f32 {q(X+2*i,2)}, {q(X+2*i,2)}, {sp(S_U)} {bc} {ng}")
        a(f"""
        v_pk_add_f32 {q(T,2)}, {q(X,2)}, {q(X+2,2)}
        v_pk_mul_f32 {q(T+2,2)}, {q(X,2)}, {q(X,2)}
        v_pk_fma_f32 {q(T+2,2)}, {q(X+2,2)}, {q(X+2,2)}, {q(T+2,2)}
        v_pk_add_f32 {q(T+4,2)}, {q(X+4,2)}, {q(X+6,2)}
        v_pk_fma_f32 {q(T+2,2)}, {q(X+4,2)}, {q(X+4,2)}, {q(T+2,2)}
        v_pk_add_f32 {q(T,2)}, {q(T,2)}, {q(T+4,2)}
        v_pk_fma_f32 {q(T+2,2)}, {q(X+6,2)}, {q(X+6,2)}, {q(T+2,2)}
        v_add_f32 v{T}, v{T}, v{T+1}
        v_add_f32 v{T+2}, v{T+2}, v{T+3}
        v_mov_b32 v{T+4}, 0x3b000000
        v_mov_b32 v{T+5}, 0x3727c5ac
        v_permlane32_swap_b32 v{T}, v{T+2}
        v_add_f32 v{T}, v{T}, v{T+2}
        v_add_f32_dpp v{T}, v{T}, v{T} quad_perm:[1,0,3,2] row_mask:0xf bank_mask:0xf
        v_add_f32_dpp v{T}, v{T}, v{T} quad_perm:[2,3,0,1] row_mask:0xf bank_mask:0xf
        v_add_f32_dpp v{T}, v{T}, v{T} row_half_mirror row_mask:0xf bank_mask:0xf
        v_add_f32_dpp v{T}, v{T}, v{T} row_mirror row_mask:0xf bank_mask:0xf
        v_readlane_b32 s{S_T0}, v{T}, 0
        v_readlane_b32 s{S_T1}, v{T}, 16
        v_readlane_b32 s{S_T2}, v{T}, 32
        v_readlane_b32 s{S_T3}, v{T}, 48
        v_mul_f32 v{T}, s{S_T0}, v{T+4}
        v_mul_f32 v{T+2}, s{S_T2}, v{T+4}
        v_fmac_f32 v{T}, s{S_T1}, v{T+4}            ; E[d]
        v_fmac_f32 v{T+2}, s{S_T3}, v{T+4}          ; E[d^2]
        v_fma_f32 v{T+2}, -v{T}, v{T}, v{T+2}       ; var
        v_max_f32 v{T+2}, 0, v{T+2}
        v_add_f32 v{T+2}, v{T+5}, v{T+2}
        v_rsq_f32 v{T+2}, v{T+2}
        """)
        for i in range(4): a(f"v_pk_add_f32 {q(X+2*i,2)}, {q(X+2*i,2)}, {q(T,2)} {bc} {ng}")
        for i in range(4): a(f"v_pk_mul_f32 {q(C1+2*i,2)}, {q(C1+2*i,2)}, {q(T+2,2)} {bc}")
        for i in range(4): a(f"v_pk_fma_f32 {q(X+2*i,2)}, {q(X+2*i,2)}, {q(C1+2*i,2)}, {q(SH+2*i,2)}")
        for i in range(4): a(f"v_cvt_pk_bf16_f32 v{out+i}, v{X+2*i}, v{X+2*i+1}")
    def gemv_mfma(self, nkb, va, vd, A, Bs, Dq, fill=(), ilw=0):
        a = self.a
        fill = list(fill)
        cs = 128 if nkb == 2 else 64
        for i in range(len(Bs)): a(f"ds_read_b128 {q(A+4*i)}, v{va[i]}")
        npre = len(fill) - 3*(8*len(Bs) - (8 if ilw else 0))
        for _ in range(max(npre, 0)): a(fill.pop(0))
        for i, B in enumerate(Bs):
            a(f"s_waitcnt lgkmcnt({len(Bs)-1-i})")
            last = i == len(Bs)-1
            if last and ilw: a(f"s_mov_b64 exec, {sp(S_M+12)}")
            for c in range(8):
                a(f"v_mfma_f32_16x16x32_bf16 {q(Dq[c])}, {q(A+4*i)}, {q(B+4*c)}, {'0' if i == 0 else q(Dq[c])}")
                if last and ilw:
                    if c >= ilw: a(f"ds_write_b128 v{vd}, {q(Dq[c-ilw])} offset:{(c-ilw)*cs}")
                else:
                    for _ in range(3):
                        if fill: a(fill.pop(0))
        assert not fill
        if not ilw: a(f"s_mov_b64 exec, {sp(S_M+12)}")
        for c in range(8-ilw if ilw else 0, 8):
            a(f"ds_write_b128 v{vd}, {q(Dq[c])} offset:{c*cs}")
        a("s_mov_b64 exec, -1")

    def roundn(self, X, T, n):
        for i in range(n//2): self.a(f"v_cvt_pk_bf16_f32 v{T+i}, v{X+2*i}, v{X+2*i+1}")
        for i in range(n//2): self.unpack(T+i, X+2*i, X+2*i+1)

    def modulate(self, X, C1, SH, T, out, n=8):
        a = self.a
        for i in range(n//2): a(f"v_pk_mul_f32 {q(X+2*i,2)}, {q(X+2*i,2)}, {q(C1+2*i,2)}")
        self.roundn(X, T, n)
        for i in range(n//2): a(f"v_pk_add_f32 {q(X+2*i,2)}, {q(X+2*i,2)}, {q(SH+2*i,2)}")
        for i in range(n//2): a(f"v_cvt_pk_bf16_f32 v{out+i}, v{X+2*i}, v{X+2*i+1}")

    def poll_pipe(self, sets, done, gap, sl=0, rec=None, or1=None):
        a = self.a
        D = len(sets); nl = len(sets[0][0])
        L = a.newlabel("Lpp"); E = a.newlabel("Lppx")
        DL = [a.newlabel("Lppd") for _ in sets]
        a(f"s_mov_b32 s{S_TMO}, {TMO}")
        for k, (loads, tags) in enumerate(sets):
            for l in loads: a(l)
            if k < D-1 and gap: a(f"s_sleep {gap}")
        a.label(L)
        for k, (loads, tags) in enumerate(sets):
            a(f"s_waitcnt vmcnt({(D-1)*nl})")
            t = self.PT
            if len(tags) <= 5:
                a(f"v_xor_b32 v{t}, s{S_TAG}, v{tags[0]}")
                for r in tags[1:]:
                    a(f"v_xor_b32 v{t+1}, s{S_TAG}, v{r}\nv_or_b32 v{t}, v{t}, v{t+1}")
            else:
                if len(tags) % 2 == 0: tags = list(tags) + [tags[-1]]
                for i in range(1, len(tags), 2):
                    a(f"v_max3_u32 v{t}, v{tags[0] if i == 1 else t}, v{tags[i]}, v{tags[i+1]}")
                    a(f"v_min3_u32 v{t+1}, v{tags[0] if i == 1 else t+1}, v{tags[i]}, v{tags[i+1]}")
                a(f"v_xor_b32 v{t}, s{S_TAG}, v{t}\nv_xor_b32 v{t+1}, s{S_TAG}, v{t+1}\nv_or_b32 v{t}, v{t}, v{t+1}")
            a(f"v_cmp_lt_u32 vcc, {1 if or1 else 0}, v{t}")
            a(f"s_cbranch_vccz {DL[k]}")
            if 0: a(f"s_cbranch_scc0 {DL[k]}" if len(tags) > 1 else f"s_cbranch_vccz {DL[k]}")
            if sl: a(f"s_sleep {sl}")
            for l in loads: a(l)
        a(f"""
        s_sub_u32 s{S_TMO}, s{S_TMO}, 1
        s_cbranch_scc0 {L}
        s_waitcnt vmcnt(0)
        """)
        for k in range(D):
            a.label(DL[k])
            done(k)
            if k < D-1: a(f"s_branch {E}")
        a.label(E)
        if rec is not None and self.o.stamps and self.o.rec:
            a(f"""
            s_waitcnt lgkmcnt(0)
            s_sub_u32 s{S_T0}, {TMO}, s{S_TMO}
            s_mul_i32 s{S_T0}, s{S_T0}, 100
            s_add_u32 s{S_ST+2*rec}, s{S_ST}, s{S_T0}
            s_addc_u32 s{S_ST+2*rec+1}, s{S_ST+1}, 0
            """)

    def lds_wait(self, off, target, vz, vt, sleep=1):
        a = self.a
        L = a.newlabel("Lw"); E = a.newlabel("Lwx")
        a(f"""
        s_mov_b32 s{S_TMO}, {TMO*8}
        {L}:
        ds_read_b32 v{vt}, v{vz} offset:{off}
        s_sub_u32 s{S_TMO}, s{S_TMO}, 1
        s_cbranch_scc1 {E}
        """)
        if sleep: a(f"s_sleep {sleep}")
        a(f"""
        s_waitcnt lgkmcnt(0)
        v_readfirstlane_b32 s{S_T0}, v{vt}
        s_cmp_lt_u32 s{S_T0}, {target}
        s_cbranch_scc1 {L}
        {E}:
        s_waitcnt lgkmcnt(0)
        """)

    def consts(self):
        self.a(f"""
        s_mov_b32 s{S_PLO}, 0x05040100
        s_mov_b32 s{S_PHI}, 0x07060302
        s_mov_b32 s{S_HI}, 0xffff0000
        """)

    def prologue(self):
        a = self.a
        self.stamp(0)
        a(f"""
        s_cmp_ge_u32 s2, 256
        s_cbranch_scc1 L_end
        s_load_dwordx16 s[4:19], s[0:1], 0
        s_load_dwordx8 s[20:27], s[0:1], 64
        s_load_dwordx2 s[30:31], s[0:1], 104
        v_lshrrev_b32 v1, 6, v0
        v_and_b32 v0, 63, v0
        s_and_b32 s{S_HKV}, s2, 7
        v_readfirstlane_b32 s{S_WAVE}, v1
        s_lshr_b32 s{S_IDX}, s2, 3
        s_and_b32 s{S_B}, s{S_IDX}, 3
        s_cmp_lt_u32 s{S_WAVE}, 4
        s_cbranch_scc0 L_str
        """)

    def stream_defs(self):
        o = self.o
        kreg = lambda t, u: 32 + 16*t + 4*u
        vreg = lambda t, u: 96 + 16*t + 4*u
        dreg = lambda t, u: (8 + 4*u) if t == 0 else (32 + 16*(t-1) + 4*u)
        so = [f"s{S_CQ}", f"s{S_T1}", f"s{S_T2}", f"s{S_T3}"]
        loads = []
        for (rf, va, srd) in ((kreg, 4, SRD_A), (vreg, 5, SRD_B)):
            for t in range(4):
                for u in range(4):
                    loads.append(f"buffer_load_dwordx4 {q(rf(t,u))}, v{va}, {sp(srd,4)}, {so[t]} offen offset:{u*1024} {o.kvpol}")
        return loads, kreg, dreg

    def stream_early(self):
        a = self.a; o = self.o
        loads, kreg, dreg = self.stream_defs()
        S_W = 3
        a(f"""
        L_str:
        s_lshr_b32 s{S_CH}, s{S_IDX}, 2
        s_sub_u32 s{S_W}, s{S_WAVE}, 4
        s_lshl3_add_u32 s{S_T0}, s{S_B}, s{S_HKV}
        s_lshl_b32 s{S_T0}, s{S_T0}, 7
        s_add_u32 s{S_T0}, s{S_T0}, s{S_CH}
        s_lshl3_add_u32 s{S_T0}, s{S_T0}, s{S_W}
        s_addk_i32 s{S_T0}, 768
        s_lshl_b32 s{S_T0}, s{S_T0}, 12
        v_bfe_u32 v1, v0, 2, 2
        v_lshrrev_b32 v2, 4, v0
        v_and_b32 v3, 3, v0
        v_lshlrev_b32 v6, 8, v1
        v_lshl_add_u32 v6, v2, 6, v6
        v_lshl_add_u32 v6, v3, 4, v6
        v_add_u32 v4, s{S_T0}, v6
        v_lshl_add_u32 v5, v0, 4, s{S_T0}
        s_lshr_b32 s{S_CQ}, s{S_CH}, 1
        s_lshl_b32 s{S_CQ}, s{S_CQ}, 18
        """)
        self.srd_hi(SRD_A, 0x8000000)
        if (o.mh or o.ml): a(f"""
        s_cmp_lt_u32 s{S_IDX}, 20
        s_waitcnt lgkmcnt(0)
        """)
        else: a(f"""
        s_sub_u32 s{S_T0}, s{S_IDX}, 20
        s_bitcmp1_b32 s{S_HKV}, 0
        s_cselect_b32 s{S_T1}, {8 if o.msw == 1 else 6 if o.fswap else 7}, {8 if o.fswap else 7}
        s_cmp_lt_u32 s{S_IDX}, {NEARLY}
        s_waitcnt lgkmcnt(0)
        """)
        self.srd_lo(SRD_A, S_K)
        a("s_barrier" if o.hbar else f"""
        s_cbranch_scc0 L_sH0
        s_barrier
        L_sH0:
        """)
        for l in loads[:o.depth]: a(l)
        if (o.mh or o.ml): a(f"""
        s_cbranch_scc1 L_sN
        s_cmp_lt_u32 s{S_IDX}, {NEARLY}
        s_cbranch_scc1 L_sF
        s_branch L_sH
        """)
        else: a(f"""
        s_cbranch_scc0 L_sH
        s_cmp_lt_u32 s{S_T0}, s{S_T1}
        s_cbranch_scc1 L_sF
        s_branch L_sN{"0" if o.fast else ""}
        """)

    def stream(self):
        a = self.a; o = self.o
        loads, kreg, dreg = self.stream_defs()
        if o.fast: a(f"""
        L_sN0:
        s_lshr_b32 s{S_T0}, s{S_IDX}, 1
        s_cmp_eq_u32 s{S_T0}, 5
        s_cbranch_scc1 L_s{"F" if o.fast == 1 else "G"}
        """)
        if o.msw == 2: a(f"s_cmp_eq_u32 s{S_T0}, 13\ns_cbranch_scc1 L_sG")
        if o.mpause: a(f"s_cmp_lt_u32 s{S_IDX}, 4\ns_cbranch_scc1 L_sM")
        elif o.g3: a(f"s_and_b32 s{S_T0}, s2, 0xe7\ns_cmp_eq_u32 s{S_T0}, 3\ns_cbranch_scc1 L_sG")
        a.label("L_sN")
        self.stream_body(False, loads, kreg, dreg, "", o.depth2, o.sw2)
        if o.fast > 1:
            a.label("L_sG")
            self.stream_body(False, loads, kreg, dreg, "g", o.fast, 0)
        if o.mpause:
            a.label("L_sM")
            self.stream_body(False, loads, kreg, dreg, "m", o.mpause, 3)
        a.label("L_sF")
        self.stream_body(False, loads, kreg, dreg, "f", o.fdepth, o.fsw)
        a.label("L_sH")
        self.stream_body(True, loads, kreg, dreg)

    def stream_body(self, h, loads, kreg, dreg, X="", depth=0, sw=0):
        a = self.a; o = self.o
        S_W = 3
        S_N = S_TGT
        X = "h" if h else X
        depth = o.hdepth if h else depth or o.depth
        dn = lambda n: depth if (h or n >= sw) else o.depth
        if o.dsched and X == "" and not h:
            ds = [int(c) for c in o.dsched]
            dn = lambda n: ds[n // 4]
        first = o.pause if h else dn(0)
        assert o.depth <= 4 and o.spread == 1
        for l in loads[o.depth:min(first, 4)]: a(l)
        a(f"""
        s_xor_b32 s{S_T1}, s{S_CQ}, {1<<18}
        s_xor_b32 s{S_T2}, s{S_CQ}, {2<<18}
        s_xor_b32 s{S_T3}, s{S_CQ}, {3<<18}
        """)
        for l in loads[4:first]: a(l)
        self.srd(SRD_B, S_V, 0x8000000)
        self.srd(SRD_WS, S_WS, WS_SIZE)
        self.consts()
        a(f"""
        v_mov_b32 v163, 0
        v_mov_b32 v161, 1
        """)
        a(f"s_load_dword s{S_EPOCH}, {sp(S_WS)}, {WS_EPOCH}")
        if (h and not o.hbar) or ((o.mh or o.ml) and X == "f"): a("s_barrier")
        if o.gpf: a(f"""
        s_cmp_lt_u32 s{S_IDX}, 16
        s_cselect_b32 s12, s{S_WG}, s{S_WU}
        s_cselect_b32 s13, s{S_WG+1}, s{S_WU+1}
        s_mov_b32 s14, {512*3584}
        s_mov_b32 s15, 0x20000
        s_mul_i32 s10, s{S_HKV}, 7
        s_lshr_b32 s10, s10, 1
        s_and_b32 s11, s{S_IDX}, 15
        """)
        gpf = f"buffer_load_dword v4, v4, s[12:15], 0 offen {o.ppf}"
        pf = 1 if o.gpf == 31 else 0
        a(f"""
        v_cmp_eq_u32 {sp(S_M)}, 1, v3
        v_cmp_eq_u32 {sp(S_M+2)}, 2, v3
        v_cmp_eq_u32 {sp(S_M+4)}, 3, v3
        v_lshlrev_b32 v7, 5, v1                 ; h*32
        s_lshr_b32 s{S_T0}, s{S_CH}, 1
        s_and_b32 s{S_N}, s{S_CH}, 1
        """)
        self.aff(160, WS_ST, [(2,2,512)], [(S_HKV,2048),(S_T0,128),(S_B,32),(S_N,16)], vt=2)
        self.aff(164, 0, [(2,2,32)], [(S_W,4)], vt=2)
        self.aff(165, L_OL, [(0,6,4)], [(S_W,OLS)], vt=2)
        self.aff(166, L_OL, [(0,2,2*OLS),(2,4,16)], [(S_W,256)], vt=2)
        self.aff(167, WS_OP, [(4,2,16384),(2,2,64)], [(S_HKV,65536),(S_CH,2048),(S_W,256),(S_B,16)], vt=2)
        def cnt_add(off):
            a(f"""
            s_mov_b64 exec, 1
            ds_add_u32 v163, v161 offset:{off}
            s_mov_b64 exec, -1
            """)
        if X == "m": self.lds_wait(L_CNT+24, 4, 163, 162, sleep=2)
        if h:
            for i in range(o.trick):
                a(f"s_waitcnt vmcnt({o.trickd-1})")
                a(loads[first]); first += 1
            self.lds_wait(L_CNT+o.pauseoff, o.pausecnt, 163, 162, sleep=2)
            if o.htrigq < first: cnt_add(L_CNT+20)

        def step(n, wait=True):
            if wait and n < 32 - o.tailfree and n >= dn(n): a(f"s_waitcnt vmcnt({dn(n)-1})")
            a(loads[n])
            if n == 16 and o.gpf: self.aff(4, 0, [(4,2,3584),(0,4,32)], [(11,32*3584),(S_W,4*3584),(10,128)], vt=2)
            if n == o.gpf: a(gpf)
            if n == (o.ftrigw if X == "f" else o.trigw): cnt_add(L_CNT+12)
            if n == o.trigf: cnt_add(L_CNT+16)
            if n == (o.ftrigq if X == "f" else o.htrigq if h else o.trigq): cnt_add(L_CNT+20)
            if n == o.trigs: cnt_add(L_CNT+28)
            if o.ml and X != "f" and n == (o.trigmh if h else o.trigm): cnt_add(L_CNT+44)
            if n == o.trigp or (o.trigh and n == o.trigh): cnt_add(L_CNT+32)
            if n in (4, 8, 12, 16, 24, 28): self.stamp({4:6,8:7,12:8,16:9,24:10,28:11}[n])
        N0 = min(n for n in range(16, 32) if n - dn(n) >= 15)
        chk = [n for n in range(max(N0, o.nq), 31) if (n - N0) % o.chkstep == 0]
        rd = f"ds_read_b32 v162, v163 offset:{L_CNT+8}"
        for n in range(first, 32):
            step(n)
            if n in chk:
                a(f"""
                s_waitcnt lgkmcnt(0)
                v_readfirstlane_b32 s{S_T0}, v162
                s_cmp_ge_u32 s{S_T0}, 4
                s_cbranch_scc1 L{X}_qk{n}
                """)
            if n + 1 in chk: a(rd)
        self.stamp(2)
        a(f"s_mov_b32 s{S_N}, 32")
        self.lds_wait(L_CNT+8, 4, 163, 162, sleep=0)
        a.label(f"L{X}_QK")
        self.stamp(1)
        a(f"""
        ds_read_b128 v[0:3], v6 offset:{L_QF}
        ds_read_b32 v162, v163 offset:{L_FLAG}
        s_waitcnt lgkmcnt(0)
        v_readfirstlane_b32 s{S_LOC}, v162
        """)
        for t in range(4):
            for u in range(4):
                a(f"v_mfma_f32_16x16x32_bf16 {q(dreg(t,u))}, {q(kreg(t,u))}, v[0:3], 0")
        self.flavor_masks(S_M+6, "0x11111111", "0x11111111")
        self.gettag(False)
        self.tagbytes()
        qp = {1: "[1,0,3,2]", 2: "[2,3,0,1]", 3: "[3,2,1,0]"}
        for t in range(4):
            for rho in range(4):
                w = 24 + t if rho == 0 else 27 + rho
                c = [dreg(t, x ^ rho) + x for x in range(4)]
                a(f"""
                v_cndmask_b32 v{w}, v{c[0]}, v{c[1]}, {sp(S_M)}
                v_cndmask_b32 v{w}, v{w}, v{c[2]}, {sp(S_M+2)}
                v_cndmask_b32 v{w}, v{w}, v{c[3]}, {sp(S_M+4)}
                """)
            for rho in range(1, 4):
                a(f"v_add_f32_dpp v{24+t}, v{27+rho}, v{24+t} quad_perm:{qp[rho]} row_mask:0xf bank_mask:0xf")
        self.round2(24, 25, 28); self.round2(26, 27, 29)
        a(f"s_mov_b32 s{S_T0}, {SCALE}")
        for t in range(4): a(f"v_mul_f32 v{24+t}, s{S_T0}, v{24+t}")
        self.round2(24, 25, 28); self.round2(26, 27, 29)
        a(f"""
        v_max3_f32 v28, v24, v25, v26
        v_max_f32 v28, v28, v27
        v_max_f32_dpp v28, v28, v28 quad_perm:[1,0,3,2] row_mask:0xf bank_mask:0xf
        v_max_f32_dpp v28, v28, v28 quad_perm:[2,3,0,1] row_mask:0xf bank_mask:0xf
        """)
        self.rows_allreduce("v_max_f32", 28, 29)
        a(f"""
        v_min_u32 v28, -2, v28
        ds_write_b32 v164, v28 offset:{L_MX}
        """)
        ex = o.qkextra
        rets = sorted({min(n + 1 + ex, 32) for n in chk} | {32}, reverse=True)
        for r in rets[:-1]:
            a(f"s_cmp_eq_u32 s{S_N}, {r}\ns_cbranch_scc1 L{X}_B{r}")
        for n in range(rets[-1], 32):
            if n in rets: a.label(f"L{X}_B{n}")
            step(n)
        if chk: self.stamp(2)
        a.label(f"L{X}_B32")
        a(f"s_waitcnt vmcnt({8+pf})")
        self.transpose(96, 32)
        L = a.newlabel("Lb3"); E = a.newlabel("Lb3x")
        a(f"""
        s_mov_b32 s{S_TMO}, {TMO*8}
        {L}:
        ds_read_b128 v[8:11], v7 offset:{L_MX}
        ds_read_b128 v[12:15], v7 offset:{L_MX+16}
        s_sub_u32 s{S_TMO}, s{S_TMO}, 1
        s_cbranch_scc1 {E}
        s_waitcnt lgkmcnt(0)
        v_max3_u32 v16, v8, v9, v10
        v_max3_u32 v17, v11, v12, v13
        v_max3_u32 v16, v16, v14, v15
        v_max_u32 v16, v16, v17
        v_cmp_eq_u32 vcc, -1, v16
        s_cbranch_vccnz {L}
        {E}:
        """)
        self.stamp(3)
        a(f"""
        s_mov_b32 s{S_T0}, {LOG2E}
        s_waitcnt lgkmcnt(0)
        v_max3_f32 v8, v8, v9, v10
        v_max3_f32 v12, v11, v12, v13
        v_max3_f32 v8, v8, v14, v15
        v_max_f32 v8, v8, v12
        v_mul_f32 v162, s{S_T0}, v8
        """)
        for t in range(4): a(f"v_fma_f32 v{24+t}, v{24+t}, s{S_T0}, -v162")
        for t in range(4): a(f"v_exp_f32 v{24+t}, v{24+t}")
        for t in range(4):
            a(f"v_mov_b32_dpp v{28+t}, v{24+t} quad_perm:[1,1,3,3] row_mask:0xf bank_mask:0xf")
        for t in range(4):
            a(f"v_cvt_pk_bf16_f32 v{8+2*t}, v{24+t}, v{28+t}")
        for t in range(4):
            a(f"v_mov_b32_dpp v{9+2*t}, v{8+2*t} quad_perm:[2,2,2,2] row_mask:0xf bank_mask:0xf")
        for c in range(8):
            a(f"v_mfma_f32_16x16x32_bf16 {q(96+4*c)}, v[8:11], {q(32+4*c)}, 0")
        a(f"""
        v_add_f32 v24, v24, v25
        v_add_f32 v26, v26, v27
        v_add_f32 v24, v24, v26
        v_add_f32_dpp v24, v24, v24 quad_perm:[1,0,3,2] row_mask:0xf bank_mask:0xf
        v_add_f32_dpp v24, v24, v24 quad_perm:[2,3,0,1] row_mask:0xf bank_mask:0xf
        """)
        self.rows_allreduce("v_add_f32", 24, 25)
        a(f"""
        v_min_u32 v24, -2, v24
        v_mov_b32 v31, 0xff
        """)
        if o.stf: a(f"""
        v_mov_b32 v28, v162
        v_mov_b32 v30, s{S_TAG}
        s_cmp_eq_u32 s{S_W}, 7
        s_cselect_b32 s{S_T0}, 0xffff, 0
        s_and_b32 s{S_M+10}, s{S_M+6}, s{S_T0}
        s_mov_b32 s{S_M+11}, 0
        s_and_b32 s{S_M+12}, s{S_M+8}, s{S_T0}
        s_mov_b32 s{S_M+13}, 0
        """)
        a(f"""
        s_waitcnt vmcnt({4+pf})
        """)
        self.transpose_pair(128, 64, 0, 4)
        self.transpose_pair(128, 64, 1, 4)
        a(f"s_waitcnt vmcnt({2+pf})")
        self.transpose_pair(128, 64, 2, 4)
        a(f"s_waitcnt vmcnt({pf})")
        self.stamp(4)
        if o.gpf == 32: a(gpf)
        self.transpose_pair(128, 64, 3, 4)
        for c in range(8):
            a(f"v_mfma_f32_16x16x32_bf16 {q(96+4*c)}, v[12:15], {q(64+4*c)}, {q(96+4*c)}")
        if (o.ftrigw if X == "f" else o.trigw) == 32: cnt_add(L_CNT+12)
        if o.trigs == 32: cnt_add(L_CNT+28)
        if o.ml and X != "f" and (o.trigmh if h else o.trigm) == 32: cnt_add(L_CNT+44)
        if o.trigp == 32: cnt_add(L_CNT+32)
        if o.trigf == 32: cnt_add(L_CNT+16)
        for c in range(8):
            a(f"ds_write_b32 v165, v{96+4*c} offset:{c*256}")
        a(f"ds_write_b32 v164, v24 offset:{L_LS}")
        L = a.newlabel("Lb4"); E = a.newlabel("Lb4x")
        a(f"""
        s_mov_b32 s{S_TMO}, {TMO*8}
        {L}:
        ds_read_b128 v[16:19], v7 offset:{L_LS}
        ds_read_b128 v[20:23], v7 offset:{L_LS+16}
        ds_read_b128 v[8:11], v166
        ds_read_b128 v[12:15], v166 offset:{OLS}
        s_sub_u32 s{S_TMO}, s{S_TMO}, 1
        s_cbranch_scc1 {E}
        s_waitcnt lgkmcnt(2)
        v_max3_u32 v24, v16, v17, v18
        v_max3_u32 v25, v19, v20, v21
        v_max3_u32 v24, v24, v22, v23
        v_max_u32 v24, v24, v25
        v_cmp_eq_u32 vcc, -1, v24
        s_waitcnt lgkmcnt(0)
        s_cbranch_vccnz {L}
        {E}:
        s_waitcnt lgkmcnt(0)
        """)
        self.quad_reduce(8, 12)
        self.flavor_store(S_M+6, f"buffer_store_dwordx4 v[8:11], v167, {sp(SRD_WS,4)}, 0 offen")
        self.stamp(5)
        if o.stf:
            a(f"""
            s_cmp_lg_u32 s{S_W}, 7
            s_cbranch_scc1 L{X}_nost
            v_pk_add_f32 v[16:17], v[16:17], v[18:19]
            v_pk_add_f32 v[20:21], v[20:21], v[22:23]
            v_pk_add_f32 v[16:17], v[16:17], v[20:21]
            v_add_f32 v29, v16, v17
            """)
            self.flavor_store(S_M+10, f"buffer_store_dwordx3 v[28:30], v160, {sp(SRD_WS,4)}, 0 offen")
            a.label(f"L{X}_nost")
        if o.gpf == 33: a(gpf)
        if (o.ftrigw if X == "f" else o.trigw) == 33: cnt_add(L_CNT+12)
        if o.trigf == 33: cnt_add(L_CNT+16)
        if o.trigs == 33: cnt_add(L_CNT+28)
        if o.ml and X != "f" and (o.trigmh if h else o.trigm) == 33: cnt_add(L_CNT+44)
        if o.trigp == 33: cnt_add(L_CNT+32)
        if not o.stf:
            a(f"""
            s_cmp_lg_u32 s{S_W}, 7
            s_cbranch_scc1 L{X}_send
            v_pk_add_f32 v[16:17], v[16:17], v[18:19]
            v_pk_add_f32 v[20:21], v[20:21], v[22:23]
            s_and_b32 s{S_M+6}, s{S_M+6}, 0xffff
            v_pk_add_f32 v[16:17], v[16:17], v[20:21]
            s_mov_b32 s{S_M+7}, 0
            s_and_b32 s{S_M+8}, s{S_M+8}, 0xffff
            v_add_f32 v163, v16, v17
            s_mov_b32 s{S_M+9}, 0
            v_mov_b32 v164, s{S_TAG}
            """)
            self.flavor_store(S_M+6, f"buffer_store_dwordx3 v[162:164], v160, {sp(SRD_WS,4)}, 0 offen")
        a.label(f"L{X}_send")
        if o.hpf and X != "f":
            a(f"""
            s_mov_b64 exec, -1
            s_add_u32 s{S_T0}, s{S_IDX}, 4
            s_and_b32 s{S_T0}, s{S_T0}, 31
            s_cmp_lt_u32 s{S_T0}, 8
            s_cbranch_scc0 L{X}_nopf
            s_bitcmp1_b32 s{S_T0}, 0
            s_cselect_b32 s12, s{S_WG}, s{S_WU}
            s_cselect_b32 s13, s{S_WG+1}, s{S_WU+1}
            s_mov_b32 s14, {512*3584}
            s_mov_b32 s15, 0x20000
            s_lshr_b32 s{S_T0}, s{S_T0}, 1
            s_mul_i32 s10, s{S_HKV}, 7
            s_add_u32 s10, s10, 1
            s_lshr_b32 s10, s10, 1
            v_mbcnt_lo_u32_b32 v0, -1, 0
            v_mbcnt_hi_u32_b32 v0, -1, v0
            """)
            if o.hpf == 1: self.aff(4, 0, [(2,4,3584),(0,2,128)], [(S_T0,128*3584),(S_W,16*3584),(10,128)], vt=2)
            else:
                a(f"s_and_b32 s11, s{S_T0}, 1\ns_lshr_b32 s{S_T0}, s{S_T0}, 1\ns_mov_b32 exec_hi, 0")
                self.aff(4, 128*3584, [(2,3,3584),(0,2,128)], [(S_T0,256*3584),(11,64*3584),(S_W,8*3584),(10,128)], vt=2)
            a(f"""
            buffer_load_dword v4, v4, s[12:15], 0 offen {o.ppf}
            s_waitcnt vmcnt(0)
            L{X}_nopf:
            """)
        if o.dirty:
            a(f"""
            s_mov_b64 exec, -1
            s_lshl_b32 s{S_T0}, s2, 3
            s_add_u32 s{S_T0}, s{S_T0}, s{S_W}
            s_mul_i32 s{S_T0}, s{S_T0}, {1024*o.dirty}
            s_add_u32 s{S_T0}, s{S_T0}, 0x400000
            v_mbcnt_lo_u32_b32 v1, -1, 0
            v_mbcnt_hi_u32_b32 v1, -1, v1
            v_lshlrev_b32 v1, 4, v1
            """)
            for i in range(o.dirty): a(f"buffer_store_dwordx4 v[8:11], v1, {sp(SRD_WS,4)}, s{S_T0} offen offset:{1024*i} {o.dirtypol}")
        self.flush_stamps(12, 1, o.swave)
        self.lite_end()
        if o.gpf: a("s_waitcnt vmcnt(0)")
        a("s_endpgm")
        for n in chk:
            a.label(f"L{X}_qk{n}")
            m = n + 1
            while m < min(n + 1 + ex, 32):
                step(m, wait=False); m += 1
            a(f"s_mov_b32 s{S_N}, {m}\ns_branch L{X}_QK")

    def aux(self):
        a = self.a; o = self.o
        ror8 = "row_ror:8 row_mask:0xf bank_mask:0xf"
        ror4 = "row_ror:4 row_mask:0xf bank_mask:0xf"
        WS = sp(SRD_WS, 4)
        VZ = 167
        self.PT = 24
        if o.prio: a(f"s_setprio {o.prio}")
        if o.cpf: a(f"""
        s_getpc_b64 {sp(S_M)}
        L_pc:
        s_lshl2_add_u32 s{S_T2}, s{S_IDX}, s{S_WAVE}
        s_min_u32 s{S_T2}, s{S_T2}, (L_last-L_pc)/256-1
        s_lshl_b32 s{S_T2}, s{S_T2}, 8
        v_lshl_add_u32 v3, v0, 2, s{S_T2}
        global_load_dword v162, v3, {sp(S_M)}
        """)
        a(f"""
        s_cmp_eq_u32 s{S_WAVE}, 1
        s_cselect_b32 s{S_T0}, -1, 0
        s_mul_i32 s{S_T1}, s{S_WAVE}, {L_MX}
        v_mov_b32 v1, s{S_T0}
        v_lshl_add_u32 v2, v0, 2, s{S_T1}
        ds_write_b32 v2, v1
        s_and_b32 s{S_KH}, s{S_IDX}, 1
        s_sub_u32 s{S_J}, s{S_IDX}, 4
        s_cmp_lt_u32 s{S_J}, 16
        s_cbranch_scc0 L_MH
        s_lshr_b32 s{S_T0}, s{S_J}, 1
        s_lshl3_add_u32 s3, s{S_HKV}, s{S_T0}
        """)
        self.aff(2, 0, [(3,3,8*8192),(0,3,16)], [(3,128),(S_WAVE,64*8192),(S_KH,256*8192)])
        self.srd_hi(SRD_B, 512*8192)
        a(f"s_movk_i32 s{S_T1}, 8192\ns_waitcnt lgkmcnt(0)")
        self.srd_lo(SRD_B, S_WQ)
        self.tile_loads_k(2, SRD_B, 8192, S_T1, 32, o.wpol)
        a(f"""
        s_load_dword s{S_EPOCH}, {sp(S_WS)}, {WS_EPOCH}
        s_barrier
        s_branch L_Q
        """)
        self.stream_early()
        if (o.mh or o.ml): a(f"""
        L_MH:
        s_cmp_lt_u32 s{S_IDX}, 4
        s_cbranch_scc0 L_HF
        s_lshr_b32 s{S_T0}, s{S_IDX}, 1
        s_lshl3_add_u32 s3, s{S_T0}, s{S_HKV}
        """)
        else: a(f"""
        L_MH:
        s_cmp_lt_u32 s{S_IDX}, {NEARLY}
        s_cbranch_scc0 L_H
        s_sub_u32 s{S_T0}, s{S_IDX}, 16
        s_cmp_lt_u32 s{S_IDX}, 4
        s_cselect_b32 s{S_T0}, s{S_IDX}, s{S_T0}
        s_lshr_b32 s{S_T0}, s{S_T0}, 1
        s_lshl3_add_u32 s3, s{S_T0}, s{S_HKV}
        """)
        if o.msw:
            a(f"s_mov_b32 s{S_T0}, s3")
            for x, y in ((19,41),(27,45),(35,47)):
                a(f"s_cmp_eq_u32 s{S_T0}, {x}\ns_cselect_b32 s3, {y}, s3\ns_cmp_eq_u32 s{S_T0}, {y}\ns_cselect_b32 s3, {x}, s3")
        self.aff(2, 0, [(3,3,8*6144),(0,3,16)], [(3,128),(S_WAVE,64*6144),(S_KH,256*6144)])
        self.aff(1, 0, [(0,6,8)], [(S_WAVE,1024),(S_KH,512)])
        self.srd_hi(SRD_B, 512*6144)
        self.srd_hi(SRD_A, 4096)
        a(f"s_movk_i32 s{S_T1}, 6144\ns_waitcnt lgkmcnt(0)")
        if o.abl & 1: a(f"""
        s_cmp_lt_u32 s{S_IDX}, 4
        s_cselect_b32 s{S_T1}, s{S_T1}, 0
        s_cselect_b32 s{S_T2}, -1, 0x70
        v_and_b32 v2, s{S_T2}, v2
        """)
        self.srd_lo(SRD_A, S_C)
        self.srd_lo(SRD_B, S_WM)
        a(f"buffer_load_dwordx2 v[8:9], v1, {sp(SRD_A,4)}, 0 offen {o.cpol}")
        self.tile_loads_k(2, SRD_B, 6144, S_T1, 32, o.mpol)
        a(f"""
        s_load_dword s{S_EPOCH}, {sp(S_WS)}, {WS_EPOCH}
        s_barrier
        L_M2:
        """)
        self.aux_common()
        self.aff(5, L_AV, [(0,6,8)], [(S_WAVE,AVS)])
        self.aff(7, WS_MOD, [(4,2,24576),(0,4,8)], [(3,512),(S_WAVE,128),(S_KH,98304)])
        self.mq_addr()
        self.gettag()
        self.xt_publish(allw=True)
        a("s_waitcnt vmcnt(9)")
        for i in range(2): self.unpack(8+i, 16+2*i, 17+2*i)
        a(f"s_mov_b32 s{S_T0}, {LOG2E ^ 0x80000000}")
        for i in range(4): a(f"v_mul_f32 v{24+i}, s{S_T0}, v{16+i}")
        for i in range(4): a(f"v_exp_f32 v{24+i}, v{24+i}")
        for i in range(4): a(f"v_add_f32 v{24+i}, 1.0, v{24+i}")
        for i in range(4): a(f"v_rcp_f32 v{24+i}, v{24+i}")
        for i in range(4): a(f"v_mul_f32 v{16+i}, v{16+i}, v{24+i}")
        for i in range(2): a(f"v_cvt_pk_bf16_f32 v{28+i}, v{16+2*i}, v{17+2*i}")
        a(f"ds_write_b64 v5, v[28:29]")
        self.lds_arrive(L_CNT)
        for e in range(4):
            a(f"s_waitcnt vmcnt({7-2*e})")
            self.transpose_pair(32, 96, e, 4)
        a(f"s_mov_b32 s{S_LOC}, 0")
        self.mq_gemv()
        a("s_branch L_pubd")

        def fsel():
            a(f"""
            s_sub_u32 s3, s{S_IDX}, 20
            s_bitcmp1_b32 s{S_HKV}, 0
            s_cselect_b32 s{S_T1}, {6 if o.fswap else 7}, {8 if o.fswap else 7}
            s_cselect_b32 s{S_T2}, {1 if o.fswap else 0}, 0
            s_cmp_ge_u32 s3, s{S_T1}
            """)
        def fprep():
            a(f"""
            s_mul_i32 s{S_T0}, s{S_HKV}, 7
            s_add_u32 s3, s3, s{S_T2}
            s_add_u32 s3, s3, s{S_T0}                   ; f
            s_and_b32 s12, s3, 6
            s_cmp_eq_u32 s12, 6
            s_cselect_b32 s10, {1 if o.fswap in (1, 3) else 0}, {1 if o.fswap == 1 else 0}
            s_and_b32 s10, s3, s10
            s_xor_b32 s11, s10, 1
            s_and_b32 s{S_T2}, s{S_WAVE}, 1
            s_lshr_b32 s{S_T3}, s{S_WAVE}, 1
            s_cmp_eq_u32 s{S_T2}, 0
            s_cselect_b32 s{SRD_A}, s{S_WG}, s{S_WU}
            s_cselect_b32 s{SRD_A+1}, s{S_WG+1}, s{S_WU+1}
            s_mov_b32 s{SRD_A+2}, {512*3584}
            s_mov_b32 s{SRD_A+3}, 0x20000
            """)
            self.srd(SRD_B, S_WD, 1792*1024)
            self.aff(2, 0, [(2,4,8*3584),(0,2,16)], [(S_T3,256*3584),(3,64),(10,128*3584)])
            self.aff(3, 0, [(4,2,8192),(0,4,16)], [(3,32768),(S_WAVE,256)])
        def fb1(X, lo=0, hi=8):
            if lo >= hi: return
            if o.fswap == 3:
                a(f"s_cmp_eq_u32 s12, 6\ns_cbranch_scc0 L_fnt{X}")
                self.tile_loads(2, SRD_A, [j*3584 for j in range(lo, hi)], 32+4*lo, "")
                a(f"s_branch L_f2{X}\nL_fnt{X}:")
            self.tile_loads(2, SRD_A, [j*3584 for j in range(lo, hi)], 32+4*lo, o.fpol)
            a.label(f"L_f2{X}")
        def fwd():
            if o.abl & 2: a("v_and_b32 v3, 0x70, v3")
            self.tile_loads(3, SRD_B, [(0 if o.abl & 2 else j*1024) for j in range(8)], 96, o.wpol)
        if (o.mh or o.ml):
            a(f"""
            L_HF:
            s_cmp_lt_u32 s{S_IDX}, {NEARLY}
            s_cbranch_scc0 L_H
            s_waitcnt lgkmcnt(0)
            s_load_dword s{S_EPOCH}, {sp(S_WS)}, {WS_EPOCH}
            s_barrier
            """)
            if o.mh:
                fsel()
                a("s_cbranch_scc1 L_fe2")
                fprep()
            if o.fedly: a(f"s_sleep {o.fedly}")
            if o.mh & 1: fb1("e")
            if o.mh & 2: fwd()
            a.label("L_fe2")
            self.aux_common()
            self.gettag()
            self.xt_publish()
            a("s_branch L_qp")
        a.label("L_H")
        self.aff(1, 0, [(0,6,4)], [(S_B,1024),(S_WAVE,256)])
        a(f"""
        v_xor_b32 v2, 256, v1
        v_xor_b32 v3, 512, v1
        v_xor_b32 v4, 768, v1
        s_waitcnt lgkmcnt(0)
        """)
        self.srd(SRD_A, S_X, 4096)
        for i in range(4): a(f"buffer_load_dword v{8+i}, v{1+i}, {sp(SRD_A,4)}, 0 offen {o.cpol}")
        a(f"s_load_dword s{S_EPOCH}, {sp(S_WS)}, {WS_EPOCH}")
        HR = 32
        if o.mh:
            HR = 64
            a(f"""
            s_barrier
            s_sub_u32 s{S_T0}, s{S_IDX}, 26
            s_lshl3_add_u32 s3, s{S_T0}, s{S_HKV}
            """)
            self.aff(1, 0, [(0,6,16)], [(S_WAVE,1024)])
            self.srd_lo(SRD_A, S_C)
            self.srd(SRD_B, S_WM, 512*6144)
            a(f"buffer_load_dwordx4 v[12:15], v1, {sp(SRD_A,4)}, 0 offen {o.cpol}")
            self.aff(2, 0, [(3,3,8*6144),(0,3,16)], [(3,128),(S_WAVE,64*6144)])
            a(f"s_movk_i32 s{S_T1}, 6144\nv_add_u32 v3, {256*6144}, v2")
            self.tile_loads_k(2, SRD_B, 6144, S_T1, 32, o.wpol)
            self.tile_loads_k(3, SRD_B, 6144, S_T1, 64, o.wpol)
        if o.hbar: a("s_barrier")
        self.aux_common()
        if not o.mh and not o.hbar: a("s_barrier")
        self.aff(164, WS_MOD, [(0,6,16)], [(S_B,24576),(S_WAVE,1024)])
        self.aff(163, WS_XT, [(0,5,8)], [(S_HKV,256)])
        self.aff(7, WS_HG, [(0,6,8)], [(S_HKV,8192),(S_B,2048),(S_WAVE,512)])
        self.gettag()
        if o.mh:
            self.xt_publish(True, allw=True)
            nx = 1 + (1 if o.predirty else 0)
            a(f"s_waitcnt vmcnt({17+nx})")
        elif o.hbar == 2:
            self.xt_publish(True, allw=True)
            a(f"s_waitcnt vmcnt({1 + (1 if o.predirty else 0)})")
        else:
            self.xt_publish(True)
            a("s_waitcnt vmcnt(0)")
        for i in range(4): self.unpack(8+i, 128+2*i, 129+2*i)
        self.layernorm(128, 136)
        if o.mh:
            self.aff(5, L_AV, [(0,6,16)], [(S_WAVE,AVS)])
            self.aff(162, WS_MOD, [(4,2,24576),(0,4,8)], [(3,512),(S_WAVE,128)])
            self.mq_addr()
            a(f"v_add_u32 v161, 512, v4\ns_waitcnt vmcnt({16+nx})")
            for i in range(4): self.unpack(12+i, 148+2*i, 149+2*i)
            a(f"s_mov_b32 s{S_T0}, {LOG2E ^ 0x80000000}")
            for i in range(8): a(f"v_mul_f32 v{24+i}, s{S_T0}, v{148+i}")
            for i in range(8): a(f"v_exp_f32 v{24+i}, v{24+i}")
            for i in range(8): a(f"v_add_f32 v{24+i}, 1.0, v{24+i}")
            for i in range(8): a(f"v_rcp_f32 v{24+i}, v{24+i}")
            for i in range(8): a(f"v_mul_f32 v{148+i}, v{148+i}, v{24+i}")
            for i in range(4): a(f"v_cvt_pk_bf16_f32 v{28+i}, v{148+2*i}, v{149+2*i}")
            a(f"ds_write_b128 v5, v[28:31]")
            self.lds_arrive(L_CNT)
            a(f"s_waitcnt vmcnt({8+nx})")
            self.transpose(32, 96)
            a(f"s_waitcnt vmcnt(0)")
            self.transpose(64, 32)
        a(f"""
        s_mov_b32 s{S_T1}, 4096
        s_mov_b32 s{S_T2}, 98304
        s_mov_b32 s{S_T3}, {98304+4096}
        """)
        self.stamp(4)
        if o.dlyh: a(f"s_sleep {o.dlyh}")
        sets = []
        for k in range(o.pdm):
            R = HR + 20*k
            ld = [f"buffer_load_dwordx4 {q(R+4*i)}, v164, {WS}, {so_} offen {o.ppol}"
                  for i, so_ in enumerate(("0", f"s{S_T2}", f"s{S_T1}", f"s{S_T3}"))]
            ld.append(f"buffer_load_dwordx2 {q(R+16,2)}, v163, {WS}, 0 offen {o.ppol}")
            sets.append((ld, [R+1+2*i for i in range(8)] + ([R+17] if o.xtw else [])))
        def mdone(k):
            R = HR + 20*k
            for i in range(2):
                a(f"v_add_f32 v{136+i}, v{R+8+2*i}, v{R+12+2*i}")
                a(f"v_add_f32 v{138+i}, v{R+2*i}, v{R+4+2*i}")
            a(f"""
            v_cmp_ne_u32 vcc, s{S_LOC}, v{R+16}
            v_cmp_ne_u32 {sp(S_T2)}, s{S_TAG}, v{R+17}
            """)
        self.poll_pipe(sets, mdone, o.gapm, o.slm, rec=9)
        self.stamp(1)
        if o.fp32 < 2: self.roundn(136, 24, 4)
        a(f"""
        s_or_b64 vcc, vcc, {sp(S_T2)}
        s_cselect_b32 s{S_LOC}, 0, {1 if o.local else 0}
        v_add_f32 v136, 1.0, v136
        v_add_f32 v137, 1.0, v137
        s_add_u32 s{S_T1}, s{S_TAG}, s{S_LOC}
        """)
        if o.fp32 < 2: self.roundn(136, 24, 2)
        self.flavor_masks(S_M+8, "0x55555555", "0x55555555")
        if o.fp32 > 1: a("v_pk_fma_f32 v[128:129], v[128:129], v[136:137], v[138:139]\nv_cvt_pk_bf16_f32 v16, v128, v129")
        else: self.modulate(128, 136, 138, 24, 16, n=2)
        a(f"""
        v_mov_b32 v17, s{S_T1}
        v_mov_b32 v19, s{S_T1}
        v_mov_b32_dpp v18, v16 quad_perm:[1,1,3,3] row_mask:0xf bank_mask:0xf
        """)
        self.flavor_store(S_M+8, f"buffer_store_dwordx4 v[16:19], v7, {WS}, 0 offen")
        if o.mh:
            self.stamp(2)
            self.lds_arrive(L_CNT+24)
            a(f"s_mov_b32 s{S_LOC}, 0\nv_mov_b32 v7, v162")
            self.mq_gemv([4, 161], [96, 32], 4)
            self.stamp(5)
            a("s_branch L_qp")
        else: a("s_branch L_pubd")

        a.label("L_Q")
        self.aux_common(False)
        a(f"""
        s_lshl_b32 s{S_CQ}, s{S_J}, 2
        s_add_u32 s{S_CQ}, s{S_CQ}, s{S_WAVE}        ; r
        s_lshr_b32 s{S_T0}, s{S_CQ}, 4
        s_and_b32 s{S_T1}, s{S_HKV}, 1
        s_and_b32 s{S_T2}, s{S_CQ}, 15
        """)
        self.aff(166, WS_DP, [(2,4,8192),(0,2,16)], [(S_T0,2048),(S_T1,1024),(S_T2,64)])
        self.aff(7, WS_QG, [(4,2,65536),(0,4,8)], [(3,512),(S_WAVE,128),(S_KH,32768)])
        self.aff(5, L_AV, [(0,6,8)], [(S_WAVE,AVS)])
        self.aff(164, WS_HG, [(0,6,16)], [(S_HKV,8192),(S_WAVE,2048),(S_KH,1024)])
        self.mq_addr()
        def preop():
            a(f"""
            s_mov_b64 exec, 0xff
            buffer_load_dword v26, v26, {WS}, 0 offen {o.prepol}
            s_mov_b32 exec_lo, 0xf
            buffer_load_dword v27, v27, {WS}, 0 offen {o.prepol}
            s_mov_b64 exec, -1
            """)
        def preap():
            a(f"""
            s_mov_b32 exec_hi, 0
            buffer_load_dword v28, v28, {WS}, 0 offen {o.prepol}
            s_mov_b64 exec, -1
            """)
        def opaddr():
            self.aff(26, WS_OP, [(0,3,128)], [(S_HKV,65536),(S_J,4096),(S_WAVE,1024)])
            self.aff(27, WS_ST, [(0,2,128)], [(S_HKV,2048),(S_WAVE,512)])
        def apaddr():
            self.aff(28, WS_AP, [(0,5,8192)], [(S_CQ,128)])
        if o.preop == 4: opaddr(); preop()
        if o.preap == 4: apaddr(); preap()
        self.gettag()
        self.xt_publish(o.predirty == 1)
        a("s_waitcnt vmcnt(0)")
        self.transpose(32, 96)
        if o.predirty == 2: self.predirty()
        if o.dlyq: a(f"s_sleep {o.dlyq}")
        if o.trigh: self.lds_wait(L_CNT+32, 1, VZ, 1, sleep=4)
        sets = [([f"buffer_load_dwordx4 {q(32+4*k)}, v164, {WS}, 0 offen {o.ppol}"], [33+4*k, 35+4*k]) for k in range(o.pdh)]
        def hdone(k):
            a(f"v_mov_b32 v{33+4*k}, v{34+4*k}\nds_write_b64 v5, {q(32+4*k,2)}")
        self.poll_pipe(sets, hdone, o.gaph, o.slh, rec=9, or1=True)
        self.lds_arrive(L_CNT)
        a(f"""
        v_and_b32 v24, 1, v24
        v_readfirstlane_b32 s{S_LOC}, v24
        """)
        self.mq_gemv()
        a.label("L_pubd")
        self.stamp(2)
        self.lds_arrive(L_CNT+24)

        a.label("L_qp")
        self.aff(4, WS_QG, [(0,6,16)], [(S_B,65536),(S_HKV,4096),(S_WAVE,1024)])
        self.aff(6, L_QF, [(0,6,4)], [(S_WAVE,256)])
        a(f"s_mov_b32 s{S_T2}, 32768")
        sets = []
        for k in range(o.pdq):
            R = 128 + 8*k
            sets.append(([f"buffer_load_dwordx4 {q(R)}, v4, {WS}, 0 offen {o.ppol}",
                          f"buffer_load_dwordx4 {q(R+4)}, v4, {WS}, s{S_T2} offen {o.ppol}"], [R+1, R+3, R+5, R+7]))
        def qdone(k):
            R = 128 + 8*k
            a(f"v_add_f32 v12, v{R}, v{R+4}\nv_add_f32 v13, v{R+2}, v{R+6}")
        if o.trigq: self.lds_wait(L_CNT+20, o.trigqn, VZ, 1, sleep=4)
        if o.qsel:
            L = a.newlabel("Lpq"); E = a.newlabel("Lpqx")
            a(f"""
            s_mov_b32 s{S_TMO}, {TMO}
            s_mov_b64 {sp(S_M)}, -1
            s_mov_b64 {sp(S_M+2)}, -1
            {L}:
            s_mov_b64 exec, {sp(S_M)}
            buffer_load_dwordx4 v[128:131], v4, {WS}, 0 offen {o.ppol}
            s_mov_b64 exec, {sp(S_M+2)}
            buffer_load_dwordx4 v[132:135], v4, {WS}, s{S_T2} offen {o.ppol}
            s_mov_b64 exec, -1
            s_sub_u32 s{S_TMO}, s{S_TMO}, 1
            s_cbranch_scc1 {E}
            s_waitcnt vmcnt(1)
            v_xor_b32 v24, s{S_TAG}, v129
            v_xor_b32 v25, s{S_TAG}, v131
            v_or_b32 v24, v24, v25
            v_cmp_lt_u32 {sp(S_M)}, 1, v24
            s_waitcnt vmcnt(0)
            v_xor_b32 v26, s{S_TAG}, v133
            v_xor_b32 v25, s{S_TAG}, v135
            v_or_b32 v25, v26, v25
            v_cmp_lt_u32 {sp(S_M+2)}, 1, v25
            s_or_b64 vcc, {sp(S_M)}, {sp(S_M+2)}
            s_cbranch_scc1 {L}
            {E}:
            s_waitcnt vmcnt(0)
            v_or_b32 v24, v24, v25
            """)
            qdone(0)
        else: self.poll_pipe(sets, qdone, o.gapq, o.slq, rec=10, or1=True)
        a(f"""
        v_and_b32 v24, 1, v24
        v_cvt_pk_bf16_f32 v12, v12, v13
        ds_write_b32 v{VZ}, v24 offset:{L_FLAG}
        ds_write_b32 v6, v12
        v_readfirstlane_b32 s{S_LOC}, v24
        """)
        self.lds_arrive(L_CNT+8)
        self.stamp(3)
        self.tagbytes()
        a(f"""
        s_cmp_lt_u32 s{S_J}, 16
        s_cbranch_scc1 L_Rpre
        """)
        if o.ml: a(f"""
        s_add_u32 s{S_T0}, s{S_IDX}, 4
        s_and_b32 s{S_T0}, s{S_T0}, 31
        s_cmp_lt_u32 s{S_T0}, 8
        s_cbranch_scc1 L_ML
        """)
        else: a(f"""
        s_cmp_lt_u32 s{S_IDX}, 4
        s_cbranch_scc1 L_S
        """)
        fsel()
        a(f"""
        s_waitcnt vmcnt(0)
        s_cbranch_scc1 L_fin2
        """)
        fprep()
        self.aff(161, 0, [(2,4,8*3584),(0,2,16)], [(S_T3,256*3584),(3,64),(11,128*3584)])
        self.aff(162, L_AV, [(0,2,AVS),(2,2,16),(4,2,64)], [(S_T3,512),(11,256)])
        self.aff(4, L_AV, [(0,2,AVS),(2,2,16),(4,2,64)], [(S_T3,512),(10,256)])
        self.aff(5, L_PART, [(2,2,PS),(0,2,16)], [(S_T3,4*PS),(S_T2,512)])
        self.aff(6, L_PART, [(4,2,2*PS),(0,4,64)], [(S_WAVE,16)])
        self.aff(7, WS_X1, [(0,6,16)], [(S_HKV,8192),(S_WAVE,2048)])
        self.aff(144, L_AV, [(0,6,8)], [(S_WAVE,AVS)])
        self.aff(145, L_ACT, [(4,2,64),(0,3,2)], [(S_WAVE,16)])
        self.aff(151, L_ACT, [(0,2,64),(4,2,16)], [])
        a(f"""
        v_mov_b32 v150, {L_ZERO}
        v_mov_b32 v160, 0xff
        v_bfe_u32 v8, v0, 2, 2
        """)
        for x in range(4):
            a(f"v_cmp_eq_u32 vcc, {x}, v8\nv_cndmask_b32 v{146+x}, v150, v151, vcc")
        self.aff(150, WS_DP, [(0,4,64),(4,2,16)], [(3,8192),(S_WAVE,2048)])
        self.aff(151, WS_SC, [(0,6,32)], [(S_HKV,16384),(S_WAVE,4096)])
        a(f"""
        s_mov_b32 s{S_M+12}, 0x00f0000f
        s_mov_b32 s{S_M+13}, 0xf0000f00
        """)
        if o.mh & 1: self.transpose_inplace(32, 1, 8)
        if o.mh & 2: self.transpose_inplace(96, 1, 8)
        if o.wdearly and o.mh != 3 and not o.wdl:
            self.lds_wait(L_CNT+12, 8, VZ, 1, sleep=2)
            if o.mh & 2: fb1("")
            else: fwd()
            if o.fpd: a(f"s_sleep {o.fpd}")
            fb1("p", 0, o.fpre)
        self.lds_wait(L_CNT+16, 8, VZ, 1, sleep=o.tsl)
        if o.fdly: a(f"s_sleep {o.fdly}")
        self.stamp(4)
        if not o.wdearly and not o.mh & 2 and not o.wdl: fwd()
        if not o.mh or (o.mh == 2 and not o.wdearly): fb1("", o.fpre, 8)
        self.tile_loads(161, SRD_A, [j*3584 for j in range(8)], 64, o.fpol2)
        XR = 24 if o.x1e else 8
        xl = [f"buffer_load_dwordx4 {q(XR)}, v7, {WS}, 0 offen {o.fpp}", f"buffer_load_dwordx4 {q(XR+4)}, v7, {WS}, 0 offen offset:1024 {o.fpp}"]
        nw = 8 if o.wdl else 0
        def ftr():
            if o.wdl: fwd()
            elif not o.mh:
                a("s_waitcnt vmcnt(20)")
                self.transpose_inplace(96, 1, 2)
            if o.mh != 3:
                a(f"s_waitcnt vmcnt({12+nw})")
                self.transpose_inplace(96 if o.mh == 1 else 32, 1, 2)
            a(f"s_waitcnt vmcnt({4+nw})")
            self.stamp(5)
            if o.x1e:
                for l in xl: a(l)
            self.transpose_inplace(64, 1, 2)
        self.poll_tagged([f"buffer_load_dwordx4 {q(8+4*z)}, v151, {WS}, 0 offen offset:{(z>>1)*2048+(z&1)*16} sc1" for z in range(4)],
                         [9+2*i for i in range(8)], pre=ftr, wait0=nw + (2 if o.x1e else 0))
        for z in range(4):
            self.unpack(8+4*z, 136+2*z, 137+2*z)
            self.unpack(10+4*z, 128+2*z, 129+2*z)
        self.stamp(6)
        self.poll_tagged(xl, [XR+1, XR+3, XR+5, XR+7], sleepy=False, issued=o.x1e)
        self.stamp(9)
        for i in range(4): self.unpack(XR+2*i, 152+2*i, 153+2*i)
        if o.fp32: self.ln_mod_fast(152, 16, 128, 136, 12)
        else:
            self.layernorm(152, 8)
            self.modulate(152, 128, 136, 8, 12)
        a(f"""
        ds_write_b64 v144, v[12:13]
        ds_write_b64 v144, v[14:15] offset:512
        s_waitcnt lgkmcnt(0)
        """)
        if o.fst: self.stamp(1)
        a("s_barrier")
        if o.fst: self.stamp(2)
        fill = [str(l).strip() for l in self.capture(lambda: self.transpose_inplace(96, 1, 2))] if o.wdl else []
        self.gemv_mfma(4, [4, 162], 5, 8, [32, 64], [128, 132, 136, 140, 16, 20, 24, 28], fill, o.ilw)
        a(f"""
        s_waitcnt lgkmcnt(0)
        """)
        if o.fst: self.stamp(7)
        a("s_barrier")
        if o.fst: self.stamp(8)
        self.gemv_reduce(6, 8)
        if not o.fp32: self.round1(8)
        a(f"""
        v_mov_b32 v11, 0x3d372713                    ; 0.044715
        v_mul_f32 v10, v8, v8
        v_mov_b32_dpp v9, v8 {ror8}
        v_fma_f32 v10, v10, v11, 1.0
        v_mul_f32 v10, v10, v8                       ; x + 0.044715 x^3
        v_mul_f32 v10, 0xc0135761, v10               ; -2*sqrt(2/pi)*log2e
        v_exp_f32 v10, v10
        v_add_f32 v10, 1.0, v10
        v_rcp_f32 v10, v10
        """)
        if o.fp32: a("v_mul_f32 v8, v8, v9\nv_mul_f32 v8, v8, v10")
        else:
            a("v_mul_f32 v8, v8, v10                        ; gelu")
            self.round1(8)
            a("v_mul_f32 v8, v8, v9")
        a(f"""
        v_cvt_pk_bf16_f32 v8, v8, v8
        s_mov_b32 exec_lo, 0x00ff00ff
        s_mov_b32 exec_hi, 0x00ff00ff
        ds_write_b16 v145, v8
        s_mov_b64 exec, -1
        s_waitcnt lgkmcnt(0)
        """)
        if o.fst: self.stamp(3)
        a("s_barrier")
        if o.fst: self.stamp(4)
        for x in range(4): a(f"ds_read_b128 {q(8+4*x)}, v{146+x}")
        for x in range(4):
            a(f"s_waitcnt lgkmcnt({3-x})")
            for hf in range(2):
                c = 4*hf + x
                a(f"v_mfma_f32_16x16x32_bf16 {q(128+4*hf)}, {q(8+4*x)}, {q(96+4*c)}, {'0' if x == 0 else q(128+4*hf)}")
        self.embed(128, 160)
        a(f"buffer_store_dwordx4 v[128:131], v150, {WS}, 0 offen sc1")
        self.embed(132, 160)
        a(f"buffer_store_dwordx4 v[132:135], v150, {WS}, 0 offen offset:1024 sc1")
        self.stamp(10)
        a("s_branch L_fin2")

        if o.ml:
            a(f"""
            L_ML:
            s_lshr_b32 s{S_T0}, s{S_T0}, 1
            s_lshl_b32 s{S_T0}, s{S_T0}, 2
            s_lshr_b32 s{S_T0}, 0x4352, s{S_T0}
            s_and_b32 s{S_T0}, s{S_T0}, 15
            s_lshl3_add_u32 s3, s{S_T0}, s{S_HKV}
            """)
            self.aff(1, 0, [(0,6,8)], [(S_WAVE,1024),(S_KH,512)])
            self.srd(SRD_A, S_C, 4096)
            self.srd(SRD_B, S_WM, 512*6144)
            a(f"buffer_load_dwordx2 v[8:9], v1, {sp(SRD_A,4)}, 0 offen {o.cpol}")
            self.aff(2, 0, [(3,3,8*6144),(0,3,16)], [(3,128),(S_WAVE,64*6144),(S_KH,256*6144)])
            self.aff(5, L_AV, [(0,6,8)], [(S_WAVE,AVS)])
            self.aff(7, WS_MOD, [(4,2,24576),(0,4,8)], [(3,512),(S_WAVE,128),(S_KH,98304)])
            self.mq_addr()
            a("s_waitcnt vmcnt(0)")
            for i in range(2): self.unpack(8+i, 16+2*i, 17+2*i)
            a(f"s_mov_b32 s{S_T0}, {LOG2E ^ 0x80000000}")
            for i in range(4): a(f"v_mul_f32 v{24+i}, s{S_T0}, v{16+i}")
            for i in range(4): a(f"v_exp_f32 v{24+i}, v{24+i}")
            for i in range(4): a(f"v_add_f32 v{24+i}, 1.0, v{24+i}")
            for i in range(4): a(f"v_rcp_f32 v{24+i}, v{24+i}")
            for i in range(4): a(f"v_mul_f32 v{16+i}, v{16+i}, v{24+i}")
            for i in range(2): a(f"v_cvt_pk_bf16_f32 v{28+i}, v{16+2*i}, v{17+2*i}")
            a(f"ds_write_b64 v5, v[28:29]")
            self.lds_arrive(L_CNT+36)
            a(f"s_movk_i32 s{S_T1}, 6144")
            self.lds_wait(L_CNT+44, o.trigmn, VZ, 1, sleep=2)
            self.stamp(7)
            self.tile_loads_k(2, SRD_B, 6144, S_T1, 32, o.wpol)
            for e in range(4):
                a(f"s_waitcnt vmcnt({6-2*e})")
                self.transpose_pair(32, 96, e, 4)
            a(f"s_mov_b32 s13, s{S_LOC}\ns_mov_b32 s{S_LOC}, 0")
            self.mq_gemv(st=8, c0=36)
            self.stamp(9)
            a(f"""
            s_mov_b32 s{S_LOC}, s13
            s_cmp_lt_u32 s{S_IDX}, 4
            s_cbranch_scc0 L_fin2
            """)
        a.label("L_S")
        self.aff(4, WS_MOD + 1536*8, [(0,6,16)], [(S_B,24576),(S_WAVE,1024)])
        self.aff(7, WS_SC, [(0,6,16)], [(S_HKV,16384),(S_B,4096),(S_WAVE,1024)])
        self.flavor_masks(S_M+8, "-1", "-1")
        a(f"""
        v_add_u32 v5, 4096, v4
        s_mov_b32 s{S_T2}, 98304
        v_mov_b32 v17, s{S_TAG}
        v_mov_b32 v19, s{S_TAG}
        """)
        self.lds_wait(L_CNT+28, 8, VZ, 1, sleep=2)
        if o.sdly: a(f"s_sleep {o.sdly}")
        self.stamp(4)
        if o.mh:
            self.poll_tagged([f"buffer_load_dwordx4 {q(32+4*i)}, v{4+i}, {WS}, 0 offen sc1" for i in range(2)], [33+2*i for i in range(4)])
            self.stamp(5)
            a(f"""
            v_mov_b32 v10, v36
            v_mov_b32 v11, v38
            v_cvt_pk_bf16_f32 v16, v32, v34
            """)
        else:
            self.poll_tagged([f"buffer_load_dwordx4 {q(32+4*i)}, v{4+(i>>1)}, {WS}, {('0', 's%d' % S_T2)[i&1]} offen sc1" for i in range(4)],
                         [33+2*i for i in range(8)])
            self.stamp(5)
            a(f"""
            v_add_f32 v8, v32, v36
            v_add_f32 v9, v34, v38
            v_add_f32 v10, v40, v44
            v_add_f32 v11, v42, v46
            v_cvt_pk_bf16_f32 v16, v8, v9
            """)
        self.round2(10, 11, 12)
        a(f"""
        v_add_f32 v10, 1.0, v10
        v_add_f32 v11, 1.0, v11
        v_cvt_pk_bf16_f32 v18, v10, v11
        """)
        self.flavor_store(S_M+8, f"buffer_store_dwordx4 v[16:19], v7, {WS}, 0 offen")
        self.stamp(6)
        a("s_branch L_fin2")

        a.label("L_Rpre")
        self.srd(SRD_B, S_X, 4096)
        self.srd(SRD_A, S_WO, 4096*1024)
        a(f"""
        s_and_b32 s{S_T1}, s{S_J}, 3
        s_lshr_b32 s{S_T2}, s{S_J}, 2
        """)
        if o.wq: a(f"s_bfe_u32 s{S_T3}, s{S_J}, 0x10001\ns_xor_b32 s{S_T2}, s{S_T2}, s{S_T3}")
        self.aff(5, WS_ST, [(0,4,32)], [(S_HKV,2048),(S_T1,512)])
        if o.preop in (1, 2, 3): opaddr()
        if o.preop == 1: preop()
        if o.preap in (1, 2, 3): apaddr()
        if o.preap == 1: preap()
        self.aff(2, 0, [(4,1,65536),(5,1,1024),(0,4,16)], [(S_HKV,4*131072),(S_T1,131072),(S_T2,256),(S_WAVE,2048)])
        self.aff(4, WS_OP, [(2,2,4096),(4,2,128),(0,2,16)], [(S_HKV,65536),(S_T1,16384),(S_WAVE,512)])
        self.aff(6, L_PW, [(0,4,144),(4,2,16)], [(S_WAVE,PWS)])
        self.aff(7, L_PW, [(3,3,144),(0,3,16)], [(S_WAVE,8*144)])
        self.aff(3, WS_AP, [(0,6,16)], [(S_HKV,4*8192),(S_T1,8192),(S_T2,2048),(S_WAVE,1024)])
        self.aff(21, 0, [(4,2,1024),(0,3,2)], [(S_CQ,16)])
        self.aff(30, WS_MOD + 1024*8, [(4,2,24576),(0,3,8)] if o.mh else [(4,2,24576),(3,1,98304),(0,3,8)], [(S_CQ,64)])
        a(f"s_and_b32 s{S_T3}, s{S_HKV}, 1")
        self.aff(163, WS_AP, [(3,3,8192),(0,3,16)], [(S_CQ,128)])
        self.aff(164, WS_X1, [(4,2,2048),(2,1,16)], [(S_HKV,8192),(S_CQ,32)])
        self.aff(165, 0, [(4,2,1024)], [(S_CQ,16),(S_T3,8)])
        self.flavor_masks(S_M+8, "0x00110011", "0x00110011")
        a(f"s_movk_i32 s10, {1536*8}")
        if 3 in (o.preop, o.preap):
            self.lds_wait(L_CNT+28, 8, VZ, 1, sleep=2)
            if o.preop == 3: preop()
            if o.preap == 3: preap()
        self.lds_wait(L_CNT+12, 8, VZ, 1, sleep=2)
        self.stamp(4)
        if o.preop == 2: preop()
        if o.preap == 2: preap()
        self.tile_loads(2, SRD_A, [j*8192 for j in range(8)], 32, o.wpol)
        gl = [f"buffer_load_dwordx2 v[26:27], v30, {WS}, 0 offen sc1",
              f"buffer_load_dwordx2 v[28:29], v30, {WS}, s10 offen sc1"]
        def gfin():
            a(f"""
            v_lshlrev_b32 v160, 16, v160                ; x
            """)
            if o.mh: a("v_cvt_pk_bf16_f32 v2, v26, v28"); self.unpack(2, 161, 162)
            else:
                a(f"v_add_f32_dpp v161, v26, v26 {ror8}\nv_add_f32_dpp v162, v28, v28 {ror8}")
                self.round2(161, 162, 2)
        def wtr(k=3):
            for e in range(4):
                a(f"s_waitcnt vmcnt({k+6-2*e})")
                self.transpose_pair(32, 96, e, 4)
            for i in range(16): a(f"v_mov_b32 v{144+i}, 0")
        if not o.glate:
            a(f"buffer_load_ushort v160, v21, {sp(SRD_B,4)}, 0 offen")
            self.poll_tagged(gl, [27, 29], pre=wtr)
            gfin()
        elif o.wpe:
            a("v_mov_b32 v160, v21")
            for i in range(16): a(f"v_mov_b32 v{144+i}, 0")
            for e in range(4 - o.wpe):
                a(f"s_waitcnt vmcnt({6-2*e})")
                self.transpose_pair(32, 96, e, 4)
            if o.wpw: a(f"s_waitcnt vmcnt({2*o.wpe - o.wpw})")
        else:
            a("v_mov_b32 v160, v21")
            wtr(0)
        def wmid(nl):
            for e in range(4 - o.wpe, 4):
                a(f"s_waitcnt vmcnt({nl+6-2*e})")
                self.transpose_pair(32, 96, e, 4)
            self.stamp(9)
        if not o.rec and not o.wpe: self.stamp(9)
        if o.wgate: self.lds_wait(L_CNT+16, 8, VZ, 1, sleep=o.tsl)
        if o.wgate > 1: a(f"s_sleep {o.wgate}")
        a("v_mov_b32 v31, 0xff")
        groups = [([f"buffer_load_dwordx3 v[8:10], v5, {WS}, 0 offen {o.wpp}",
                    f"buffer_load_dwordx3 v[12:14], v5, {WS}, 0 offen offset:16 {o.wpp}"], [10, 14], None, "-1")]
        groups += [([f"buffer_load_dwordx4 {q(64+8*e+4*z)}, v4, {WS}, 0 offen offset:{e*2048+z*64} {o.wpp}" for z in range(2)],
                   range(64+8*e, 72+8*e), 128+8*e, "-1") for e in range(2)]
        self.poll_emb(groups, 16, 0, o.wgap, wmid if o.wpe else None)
        self.stamp(5)
        bc = "op_sel_hi:[1,0]"
        a(f"""
        v_max_f32 v16, v8, v12
        v_max_f32_dpp v16, v16, v16 {ror8}
        v_max_f32_dpp v16, v16, v16 {ror4}
        v_sub_f32 v8, v8, v16
        v_sub_f32 v10, v12, v16
        v_exp_f32 v8, v8
        v_exp_f32 v10, v10
        v_mul_f32 v16, v8, v9
        v_fmac_f32 v16, v10, v13
        """)
        for i in range(4): a(f"v_pk_mul_f32 {q(128+2*i,2)}, {q(128+2*i,2)}, v[8:9] {bc}")
        a(f"v_add_f32_dpp v16, v16, v16 {ror8}")
        for i in range(4): a(f"v_pk_fma_f32 {q(128+2*i,2)}, {q(136+2*i,2)}, v[10:11], {q(128+2*i,2)} op_sel_hi:[1,0,1]")
        a(f"v_add_f32_dpp v16, v16, v16 {ror4}")
        for i in range(8): a(f"v_add_f32_dpp v{128+i}, v{128+i}, v{128+i} {ror8}")
        a(f"v_rcp_f32 v16, v16")
        for i in range(8): a(f"v_add_f32_dpp v{128+i}, v{128+i}, v{128+i} {ror4}")
        for i in range(4): a(f"v_pk_mul_f32 {q(128+2*i,2)}, {q(128+2*i,2)}, v[16:17] {bc}")
        for x in range(4):
            m = 0x000f000f << (4*x)
            a(f"s_mov_b32 exec_lo, {m}\ns_mov_b32 exec_hi, {m}")
            for i in range(4): a(f"v_cvt_pk_bf16_f32 v{144+4*x+i}, v{128+2*i}, v{129+2*i}")
        a("s_mov_b64 exec, -1")
        for x in range(4):
            for hf in range(2):
                D = 16 + 4*hf
                a(f"v_mfma_f32_16x16x32_bf16 {q(D)}, {q(144+4*x)}, {q(96+4*(4*hf+x))}, {'0' if x == 0 else q(D)}")
        for hf in range(2): a(f"ds_write_b128 v6, {q(16+4*hf)} offset:{hf*64}")
        a(f"""
        s_mov_b32 s{S_T1}, {8*8192}
        s_mov_b32 s{S_T2}, {16*8192}
        s_mov_b32 s{S_T3}, {24*8192}
        s_cmp_ge_u32 s{S_WAVE}, 2
        s_waitcnt lgkmcnt(0)
        s_barrier
        s_cbranch_scc1 L_R{"s" if o.rsl else ""}
        """)
        for k in range(4): a(f"ds_read_b128 {q(8+4*k)}, v7 offset:{k*PWS}")
        a(f"""
        s_waitcnt lgkmcnt(2)
        v_pk_add_f32 v[8:9], v[8:9], v[12:13]
        v_pk_add_f32 v[10:11], v[10:11], v[14:15]
        s_waitcnt lgkmcnt(0)
        v_pk_add_f32 v[16:17], v[16:17], v[20:21]
        v_pk_add_f32 v[18:19], v[18:19], v[22:23]
        v_pk_add_f32 v[8:9], v[8:9], v[16:17]
        v_pk_add_f32 v[10:11], v[10:11], v[18:19]
        """)
        self.embed(8, 31)
        a(f"buffer_store_dwordx4 v[8:11], v3, {WS}, 0 offen sc1")
        self.stamp(6)
        if o.rsl: a(f"s_branch L_R\nL_Rs:\ns_sleep {o.rsl}")
        a.label("L_R")
        so = ["0", f"s{S_T1}", f"s{S_T2}", f"s{S_T3}"]
        def rpoll():
            if o.rpipe:
                a(f"s_xor_b32 s{S_U}, s{S_TB}, 1")
                for t in range(4): a(f"v_mov_b32 v{32+4*t}, s{S_U}")
                self.poll_emb2([([f"buffer_load_dwordx4 {q(32+4*t)}, v163, {WS}, {so[t]} offen sc1"], range(32+4*t, 36+4*t), 48+4*t, "-1")
                            for t in range(4)], 16, o.rdly, o.rgap, o.rpipe)
                return
            self.poll_emb([([f"buffer_load_dwordx4 {q(32+4*t)}, v163, {WS}, {so[t]} offen sc1"], range(32+4*t, 36+4*t), 48+4*t, "-1")
                            for t in range(4)], 16, o.rdly, o.rgap)
        if not o.glate: rpoll()
        elif o.glate == 1:
            a(f"buffer_load_ushort v160, v160, {sp(SRD_B,4)}, 0 offen")
            self.poll_tagged(gl, [27, 29], pre=rpoll, st=12)
            gfin()
        else:
            a(f"buffer_load_ushort v160, v160, {sp(SRD_B,4)}, 0 offen")
            self.poll_tagged(gl, [27, 29], st=12)
            gfin()
            rpoll()
        self.stamp(7)
        self.sum4q(48, 8)
        self.scatter4(8)
        a(f"v_add_f32_dpp v8, v8, v8 {ror8}")
        if o.fp32: a("v_fma_f32 v8, v8, v161, v160")
        else:
            self.round1(8)
            a("v_mul_f32 v8, v8, v161")
            self.round1(8)
            a("v_add_f32 v8, v8, v160")
        a(f"v_mov_b32 v160, v8")
        self.pack4(8)
        self.flavor_store(S_M+8, f"buffer_store_dwordx4 v[8:11], v164, {WS}, 0 offen")
        self.stamp(8)
        a(f"""
        s_lshr_b32 s{S_T0}, s{S_HKV}, 1
        s_cmp_lg_u32 s{S_T0}, s{S_WAVE}
        s_cbranch_scc1 L_fin2
        s_mov_b32 s{S_T1}, {16*8192}
        s_mov_b32 s{S_T2}, {32*8192}
        s_mov_b32 s{S_T3}, {48*8192}
        v_mov_b32 v76, s{S_TB}
        v_mov_b32 v77, s{S_TB+1}
        v_mov_b32 v78, s{S_TB+2}
        v_mov_b32 v79, s{S_TB+3}
        """)
        if o.opipe: a(f"""
        s_xor_b32 s{S_U}, s{S_TB}, 1
        v_mov_b32 v64, s{S_U}
        v_mov_b32 v68, s{S_U}
        v_mov_b32 v72, s{S_U}
        s_mov_b32 exec_hi, 0
        v_mov_b32 v76, s{S_U}
        s_mov_b32 exec_hi, -1
        """)
        a(f"""
        s_and_b32 s{S_U}, s{S_HKV}, 1
        s_lshl_b32 s{S_U}, s{S_U}, 2
        s_lshl_b32 s{S_U}, 0x00010001, s{S_U}
        """)
        self.round1(160)
        self.srd(SRD_A, S_OUT, 4096)
        og = [([f"buffer_load_dwordx4 {q(64+4*t)}, v166, {WS}, {so[t]} offen sc1"],
                         range(64+4*t, 68+4*t), 48+4*t, "-1" if t < 3 else ("-1", "0")) for t in range(4)]
        if o.opipe: self.poll_emb2(og, 16, o.odly, o.ogap, o.opipe)
        else: self.poll_emb(og, 16, o.odly, o.ogap)
        self.sum4q(48, 8)
        self.scatter4(8)
        a(f"""
        v_add_f32_dpp v8, v8, v8 {ror8}
        v_add_f32_dpp v8, v8, v8 {ror4}
        """)
        if o.fp32: a("v_fma_f32 v8, v8, v162, v160")
        else:
            self.round1(8)
            a("v_mul_f32 v8, v8, v162")
            self.round1(8)
            a("v_add_f32 v8, v8, v160")
        a(f"""
        v_mov_b32_dpp v9, v8 quad_perm:[1,1,3,3] row_mask:0xf bank_mask:0xf
        v_cvt_pk_bf16_f32 v8, v8, v9
        v_mov_b32_dpp v9, v8 quad_perm:[2,2,2,2] row_mask:0xf bank_mask:0xf
        s_mov_b32 exec_lo, s{S_U}
        s_mov_b32 exec_hi, s{S_U}
        buffer_store_dwordx2 v[8:9], v165, {sp(SRD_A,4)}, 0 offen
        s_cmp_lg_u32 s2, 32
        s_cbranch_scc1 L_fin
        s_mov_b64 exec, 1
        s_add_u32 s{S_T0}, s{S_EPOCH}, 1
        v_mov_b32 v1, {WS_EPOCH}
        v_mov_b32 v2, s{S_T0}
        buffer_store_dword v2, v1, {WS}, 0 offen sc1
        """)
        a.label("L_fin")
        self.stamp(11)
        if o.dbl:
            a(f"""
            s_memrealtime {sp(S_U)}
            s_waitcnt lgkmcnt(0)
            s_sub_u32 s{S_T0}, s{S_ST+2*o.dbl}, s{S_ST}
            s_min_u32 s{S_T0}, s{S_T0}, 20000
            s_mul_i32 s{S_T0}, s{S_T0}, {o.dblk}
            s_mov_b32 s{S_T1}, s{S_U}
            L_dbl:
            s_memrealtime {sp(S_U)}
            s_waitcnt lgkmcnt(0)
            s_sub_u32 s{S_T2}, s{S_U}, s{S_T1}
            s_cmp_lt_u32 s{S_T2}, s{S_T0}
            s_cbranch_scc1 L_dbl
            """)
        a.label("L_fin2")
        self.flush_stamps(12, 0, 0)
        self.lite_end()
        a.label("L_end")
        a("s_endpgm")

    def aux_common(self, z=True):
        self.srd(SRD_WS, S_WS, WS_SIZE)
        self.consts()
        self.a(f"""
        v_mov_b32 v167, 0
        s_getreg_b32 s{S_LOC}, hwreg(HW_REG_XCC_ID, 0, 4)
        """)
        if z: self.a(f"""
        v_mov_b32 v166, 0
        s_mov_b32 s{S_CQ}, 0
        """)

    def mq_gemv(self, va=[4], Bs=[96], st=1, c0=0):
        a = self.a; VZ = 167; WS = sp(SRD_WS, 4)
        self.lds_wait(L_CNT+c0, 4, VZ, 1, sleep=0)
        self.stamp(st)
        self.gemv_mfma(2, va, 165, 8, Bs, [128+4*c for c in range(8)])
        self.lds_arrive(L_CNT+c0+4)
        self.flavor_masks(S_M+8, "0x55555555", "0x55555555")
        a(f"""
        s_add_u32 s{S_T1}, s{S_TAG}, s{S_LOC}
        v_mov_b32 v17, s{S_T1}
        v_mov_b32 v19, s{S_T1}
        """)
        self.lds_wait(L_CNT+c0+4, 4, VZ, 1, sleep=0)
        self.gemv_reduce(6, 8)
        a(f"""
        v_mov_b32 v16, v8
        v_mov_b32_dpp v18, v8 quad_perm:[1,1,3,3] row_mask:0xf bank_mask:0xf
        """)
        self.flavor_store(S_M+8, f"buffer_store_dwordx4 v[16:19], v7, {WS}, 0 offen")

    def sum4q(self, R, D):
        self.a(f"""
        v_pk_add_f32 {q(R,2)}, {q(R,2)}, {q(R+4,2)}
        v_pk_add_f32 {q(R+2,2)}, {q(R+2,2)}, {q(R+6,2)}
        v_pk_add_f32 {q(R+8,2)}, {q(R+8,2)}, {q(R+12,2)}
        v_pk_add_f32 {q(R+10,2)}, {q(R+10,2)}, {q(R+14,2)}
        v_pk_add_f32 {q(D,2)}, {q(R,2)}, {q(R+8,2)}
        v_pk_add_f32 {q(D+2,2)}, {q(R+2,2)}, {q(R+10,2)}
        """)

    def mq_addr(self):
        self.aff(4, L_AV, [(0,2,AVS),(2,1,16),(4,2,32)], [(S_WAVE,128)])
        self.aff(165, L_PART, [(3,1,PS),(0,3,16)], [(S_WAVE,2*PS)])
        self.aff(6, L_PART, [(4,2,2*PS),(0,3,128),(3,1,16)], [(S_WAVE,32)])
        self.a(f"""
        s_mov_b32 s{S_M+12}, 0xff0000ff
        s_mov_b32 s{S_M+13}, 0
        """)

    def lds_arrive(self, off, wait=False):
        self.a(f"""
        v_mov_b32 v1, 1
        s_mov_b64 exec, 1
        ds_add_u32 v167, v1 offset:{off}
        s_mov_b64 exec, -1
        """)

    def build(self):
        if self.o.stamps:
            for k in range(1, 12):
                self.a(f"s_mov_b64 {sp(S_ST+2*k)}, 0")
        self.prologue()
        self.aux()
        self.stream()
        self.a.lines.append(".p2align 8")
        self.a.label("L_last")
        return self.a.text()


NEARLY = 28

def header():
    ref = open("adaLN_cond__sliding_block_cached__geglu_ffn__decode.s.ref").read().split("\n")
    out = []
    for l in ref:
        if l.startswith("; @launch"): break
        out.append(l)
    return "\n".join(out) + "\n"


def main():
    ap = argparse.ArgumentParser()
    ap.add_argument("out")
    ap.add_argument("--stamps", action="store_true")
    ap.add_argument("--lite", action="store_true")
    ap.add_argument("--dbl", type=int, default=0)
    ap.add_argument("--cpf", type=int, default=1)
    ap.add_argument("--mh", type=int, default=0)
    ap.add_argument("--fpre", type=int, default=0)
    ap.add_argument("--fpd", type=int, default=0)
    ap.add_argument("--rsl", type=int, default=3)
    ap.add_argument("--stf", type=int, default=1)
    ap.add_argument("--tsl", type=int, default=1)
    ap.add_argument("--fp32", type=int, default=1)
    ap.add_argument("--xtw", type=int, default=0)
    ap.add_argument("--hbar", type=int, default=0)
    ap.add_argument("--mpause", type=int, default=0)
    ap.add_argument("--mpol", default="nt")
    ap.add_argument("--trick", type=int, default=1)
    ap.add_argument("--trickd", type=int, default=1)
    ap.add_argument("--msw", type=int, default=2)
    ap.add_argument("--g3", type=int, default=1)
    ap.add_argument("--fast", type=int, default=4)
    ap.add_argument("--wq", type=int, default=1)
    ap.add_argument("--wgate", type=int, default=1)
    ap.add_argument("--wpe", type=int, default=4)
    ap.add_argument("--wpw", type=int, default=0)
    ap.add_argument("--hpf", type=int, default=0)
    ap.add_argument("--wdl", type=int, default=0)
    ap.add_argument("--x1e", type=int, default=1)
    ap.add_argument("--ilw", type=int, default=3)
    ap.add_argument("--ml", type=int, default=0)
    ap.add_argument("--trigm", type=int, default=28)
    ap.add_argument("--trigmh", type=int, default=26)
    ap.add_argument("--trigmn", type=int, default=8)
    ap.add_argument("--sdly", type=int, default=0)
    ap.add_argument("--dsched", default="")
    ap.add_argument("--fst", type=int, default=0)
    ap.add_argument("--rpipe", type=int, default=0)
    ap.add_argument("--opipe", type=int, default=0)
    ap.add_argument("--wpp", default="sc1")
    ap.add_argument("--fpp", default="sc1")
    ap.add_argument("--dlyq", type=int, default=0)
    ap.add_argument("--trigh", type=int, default=0)
    ap.add_argument("--slh", type=int, default=0)
    ap.add_argument("--qsel", type=int, default=0)
    ap.add_argument("--fedly", type=int, default=0)
    ap.add_argument("--preop", type=int, default=0)
    ap.add_argument("--preap", type=int, default=0)
    ap.add_argument("--glate", type=int, default=2)
    ap.add_argument("--rdly", type=int, default=0)
    ap.add_argument("--fswap", type=int, default=3)
    ap.add_argument("--fpol2", default="nt")
    ap.add_argument("--ftrigq", type=int, default=19)
    ap.add_argument("--htrigq", type=int, default=19)
    ap.add_argument("--ftrigw", type=int, default=31)
    ap.add_argument("--rgap", type=int, default=0)
    ap.add_argument("--odly", type=int, default=28)
    ap.add_argument("--ogap", type=int, default=0)
    ap.add_argument("--wgap", type=int, default=0)
    ap.add_argument("--gpf", type=int, default=0)
    ap.add_argument("--fdly", type=int, default=0)
    ap.add_argument("--align", type=int, default=12)
    ap.add_argument("--dirty", type=int, default=0)
    ap.add_argument("--dirtypol", default="")
    ap.add_argument("--dblk", type=int, default=2)
    ap.add_argument("--depth", type=int, default=3)
    ap.add_argument("--tailfree", type=int, default=0)
    ap.add_argument("--nq", type=int, default=0)
    ap.add_argument("--chkstep", type=int, default=1)
    ap.add_argument("--qkextra", type=int, default=1)
    ap.add_argument("--trigw", type=int, default=31)
    ap.add_argument("--trigf", type=int, default=33)
    ap.add_argument("--pdm", type=int, default=1)
    ap.add_argument("--pdq", type=int, default=2)
    ap.add_argument("--gapm", type=int, default=14)
    ap.add_argument("--gapq", type=int, default=14)
    ap.add_argument("--slm", type=int, default=0)
    ap.add_argument("--slq", type=int, default=0)
    ap.add_argument("--trigq", type=int, default=19)
    ap.add_argument("--trigqn", type=int, default=1)
    ap.add_argument("--rec", type=int, default=0)
    ap.add_argument("--ppol", default="sc1")
    ap.add_argument("--pause", type=int, default=8)
    ap.add_argument("--pauseoff", type=int, default=24)
    ap.add_argument("--pausecnt", type=int, default=4)
    ap.add_argument("--pdh", type=int, default=3)
    ap.add_argument("--gaph", type=int, default=12)
    ap.add_argument("--dlyh", type=int, default=16)
    ap.add_argument("--spread", type=int, default=1)
    ap.add_argument("--predirty", type=int, default=1)
    ap.add_argument("--kadbg", type=int, default=0)
    ap.add_argument("--prepol", default="sc1")
    ap.add_argument("--kalean", type=int, default=0)
    ap.add_argument("--trigs", type=int, default=33)
    ap.add_argument("--trigp", type=int, default=0)
    ap.add_argument("--ppf", default="")
    ap.add_argument("--fdepth", type=int, default=6)
    ap.add_argument("--ldepth", type=int, default=0)
    ap.add_argument("--fsw", type=int, default=0)
    ap.add_argument("--lsw", type=int, default=16)
    ap.add_argument("--depth2", type=int, default=4)
    ap.add_argument("--sw2", type=int, default=24)
    ap.add_argument("--mearly", type=int, default=0)
    ap.add_argument("--clrfirst", type=int, default=0)
    ap.add_argument("--wdearly", type=int, default=1)
    ap.add_argument("--phalf", type=int, default=0)
    ap.add_argument("--hdepth", type=int, default=6)
    ap.add_argument("--abl", type=int, default=0)
    ap.add_argument("--swave", type=int, default=4)
    ap.add_argument("--cpol", default="")
    ap.add_argument("--xtpol", default="")
    ap.add_argument("--prio", type=int, default=0)
    ap.add_argument("--kvpol", default="nt")
    ap.add_argument("--wpol", default="nt")
    ap.add_argument("--fpol", default="nt")
    ap.add_argument("--sleep", type=int, default=0)
    ap.add_argument("--local", type=int, default=1)
    ap.add_argument("--qg", type=lambda x: int(x,0), default=0x1C0000)
    o = ap.parse_args()
    global WS_QG
    WS_QG = o.qg
    body = G(o).build()
    try: hd = header()
    except Exception: hd = "; generated\n"
    open(o.out, "w").write(kernel_file([(KN, body, 168, 102, 168)], [(KN, 256, 768, LDS_BYTES)], header=hd).replace(".p2align 8\n.type", f".p2align {o.align}\n.type"))


if __name__ == "__main__":
    main()
```
